```python
import torch

def _softmax(x, axis=-1):
    return torch.softmax(x, dim=axis)
def _gelu(x):
    return torch.nn.functional.gelu(x, approximate="tanh")
def _silu(x):
    return torch.nn.functional.silu(x)
def _sigmoid(x):
    return torch.sigmoid(x)
def _layernorm(x, axis=-1, eps=1e-5):
    m = x.mean(dim=axis, keepdim=True)
    v = x.var(dim=axis, keepdim=True, unbiased=False)
    return (x - m) / torch.sqrt(v + eps)
def _scatter_add(tgt, idx, src, axis=0):
    return tgt.clone().index_add_(axis, idx, src)
def _segment_sum(src, seg, n):
    out = torch.zeros((n,) + src.shape[1:], dtype=src.dtype)
    return out.index_add_(0, seg, src)
def _pad(x, pw):
    flat = tuple(v for pair in reversed(pw) for v in pair)
    return torch.nn.functional.pad(x, flat)

kernel_name = 'sequential_preLN__gqa_block_cached__mixer_channel_mlp__decode'

def setup_inputs():

    _w = (lambda a: (lambda t: t.to(torch.bfloat16) if t.is_floating_point() else t)(torch.as_tensor(a)))
    def _A_setup():
        B, Sq, D = 4, 1, 512
        Hq, Hkv, Sk, Dh = 32, 8, 4096, 128
        assert Hq % Hkv == 0, (Hq, Hkv)
        return {
            "x": _w((lambda *s: torch.randn(*s, dtype=torch.bfloat16) * 0.05)(B, Sq, D)),
            "k_cache": _w((lambda *s: torch.randn(*s, dtype=torch.bfloat16) * 3.2)(B, Hkv, Sk, Dh)),
            "v_cache": _w((lambda *s: torch.randn(*s, dtype=torch.bfloat16) * 0.4)(B, Hkv, Sk, Dh)),
            "wq": _w((lambda *s: torch.randn(*s, dtype=torch.bfloat16) * 3.2)(D, Hq * Dh) * (D ** -0.5)),
            "wo": _w((lambda *s: torch.randn(*s, dtype=torch.bfloat16) * 0.4)(Hq * Dh, D) * ((Hq * Dh) ** -0.5)),
        }
    _A_in = _A_setup()

    def _B_setup():
        B, S, D, F = 4, 1, 512, 1792
        return {
            "x": _w((lambda *s: torch.randn(*s, dtype=torch.bfloat16) * 0.05)(B, S, D)),
            "w1": _w((lambda *s: torch.randn(*s, dtype=torch.bfloat16) * 3.2)(D, F) * (D ** -0.5)),
            "b1": _w((lambda *s: torch.randn(*s, dtype=torch.bfloat16) * 3.2)(F)),
            "w2": _w((lambda *s: torch.randn(*s, dtype=torch.bfloat16) * 0.4)(F, D) * (F ** -0.5)),
            "b2": _w((lambda *s: torch.randn(*s, dtype=torch.bfloat16) * 0.8)(D)),
        }
    _B_in = _B_setup()

    return {
        "A_x": _A_in["x"],
        "A_k_cache": _A_in["k_cache"],
        "A_v_cache": _A_in["v_cache"],
        "A_wq": _A_in["wq"],
        "A_wo": _A_in["wo"],
        "B_x": _B_in["x"],
        "B_w1": _B_in["w1"],
        "B_b1": _B_in["b1"],
        "B_w2": _B_in["w2"],
        "B_b2": _B_in["b2"],
    }

def reference(A_x, A_k_cache, A_v_cache, A_wq, A_wo, B_x, B_w1, B_b1, B_w2, B_b2):
    def _A_ref(x, k_cache, v_cache, wq, wo):
        B, Sq, D = x.shape
        Hq, Dh = 32, 128
        Hkv = k_cache.shape[1]
        rep = Hq // Hkv
        q = (lambda x, *d: x.permute(*d))((x @ wq).reshape(B, Sq, Hq, Dh), 0, 2, 1, 3)
        k = (lambda x, n, axis: torch.repeat_interleave(x, n, dim=axis))(k_cache, rep, axis=1)
        v = (lambda x, n, axis: torch.repeat_interleave(x, n, dim=axis))(v_cache, rep, axis=1)
        scores = torch.einsum("bhqd,bhkd->bhqk", q, k) * (Dh ** -0.5)
        p = _softmax(scores, axis=-1)
        o = torch.einsum("bhqk,bhkd->bhqd", p, v)
        return (lambda x, *d: x.permute(*d))(o, 0, 2, 1, 3).reshape(B, Sq, Hq * Dh) @ wo

    def _B_ref(x, w1, b1, w2, b2):
        y = _layernorm(x, axis=-1)
        h = _gelu(torch.einsum("bsd,df->bsf", y, w1) + b1)
        return torch.einsum("bsf,fd->bsd", h, w2) + b2

    x = A_x
    h = x + _A_ref(_layernorm(x, axis=-1), A_k_cache, A_v_cache, A_wq, A_wo)
    h2 = h + _B_ref(_layernorm(h, axis=-1), B_w1, B_b1, B_w2, B_b2)
    return h2
```

```python
import sys

NAME = "sequential_preLN__gqa_block_cached__mixer_channel_mlp__decode"

L_K    = 0
L_ST   = 131072
L_M    = 147456
L_OACC = L_M
L_ZB   = L_M + 2048
L_LACC = L_M + 2560
L_CNTL = L_M + 2576
L_CNTV = L_M + 2580
L_XH   = L_M + 3072
L_Q    = L_M + 7168
L_MB   = L_M + 8192
L_OB   = L_M + 8320
L_H1   = L_M + 9344
L_B1   = L_M + 9600
LDS_TOTAL = L_M + 9728
L_W1 = 0
L_W2 = 32768

W_E     = 0x0
W_FLAG  = 0x1000
W_QG    = 0x2000
W_ML    = 0x20000
W_OP    = 0x30000
W_HP    = 0xC0000
W_H     = 0x100000
W_OUT   = 0x110000
W_DBG   = 0x200000

NJ = 56
POLL_LIMIT = 20000

class Asm:
    def __init__(self): self.l = []
    def __call__(self, s):
        for x in s.split("\n"):
            x = x.strip()
            if x: self.l.append(("" if x.endswith(":") else "  ") + x)
    def text(self): return "\n".join(self.l) + "\n"

def gen(W=2, nt=True, stamps=False, dump=False, sleep_q=2, mimic=True):
    A = Asm()
    NT = " nt" if nt else ""
    SC = " sc0 sc1"
    uid = [0]
    def lab(p):
        uid[0] += 1; return "L_%s_%d" % (p, uid[0])
    nst = [0]
    def stamp(i):
        if stamps:
            A("s_memrealtime s[%d:%d]" % (64 + 2 * i, 65 + 2 * i))
            A("s_waitcnt lgkmcnt(0)")
    def stamp_flush():
        if stamps:
            A("s_lshl_b32 s44, s2, 4\ns_add_u32 s44, s44, s3\ns_lshl_b32 s44, s44, 7\ns_add_u32 s44, s44, %d" % W_DBG)
            A("s_add_u32 s46, s32, s44\ns_addc_u32 s47, s33, 0")
            A("s_mov_b64 exec, 1\nv_mov_b32 v2, 0")
            for i in range(0, 12, 2):
                A("v_mov_b32 v4, s%d\nv_mov_b32 v5, s%d\nv_mov_b32 v6, s%d\nv_mov_b32 v7, s%d" % (64 + 2 * i, 65 + 2 * i, 66 + 2 * i, 67 + 2 * i))
                A("global_store_dwordx4 v2, v[4:7], s[46:47] offset:%d" % (i * 8))
                A("s_nop 1")
            A("s_mov_b64 exec, -1")
    def bf16r(dst, src, tmp=None):
        A("v_cvt_pk_bf16_f32 v%d, v%d, v%d" % (dst, src, src))
        A("v_and_b32 v%d, 0xffff0000, v%d" % (dst, dst))
    def red16(reg, op="add", tmp=None):
        for k in (8, 4, 2, 1):
            A("s_nop 1")
            A("v_%s_f32_dpp v%d, v%d, v%d row_ror:%d row_mask:0xf bank_mask:0xf" % (op, reg, reg, reg, k))
    def red_x16(reg, tmp, op="add"):
        A("v_mov_b32 v%d, v%d" % (tmp, reg)); A("s_nop 1")
        A("v_permlane16_swap_b32 v%d, v%d" % (reg, tmp)); A("s_nop 0")
        A("v_%s_f32 v%d, v%d, v%d" % (op, reg, reg, tmp))
    def red_x32(reg, tmp, op="add"):
        A("v_mov_b32 v%d, v%d" % (tmp, reg)); A("s_nop 1")
        A("v_permlane32_swap_b32 v%d, v%d" % (reg, tmp)); A("s_nop 0")
        A("v_%s_f32 v%d, v%d, v%d" % (op, reg, reg, tmp))
    def red_multi(regs, tmps, which, op="add"):
        ins = "v_permlane16_swap_b32" if which == 16 else "v_permlane32_swap_b32"
        for r, t in zip(regs, tmps): A("v_mov_b32 v%d, v%d" % (t, r))
        if len(regs) < 3: A("s_nop 1")
        for r, t in zip(regs, tmps): A("%s v%d, v%d" % (ins, r, t))
        A("s_nop 0")
        for r, t in zip(regs, tmps): A("v_%s_f32 v%d, v%d, v%d" % (op, r, r, t))
    def poll_begin(cnt="s60"):
        l = lab("poll"); A("s_mov_b32 %s, %d" % (cnt, POLL_LIMIT)); A(l + ":"); return l
    def poll_end(l, sleep, cnt="s60"):
        d = lab("pdone")
        A("s_cbranch_vccz %s" % d)
        A("s_sub_u32 %s, %s, 1" % (cnt, cnt))
        A("s_cbranch_scc1 %s" % d)
        if sleep: A("s_sleep %d" % sleep)
        A("s_branch %s" % l)
        A(d + ":")
    def sentinel_check(regs, tmp):
        regs = list(regs)
        A("v_max3_u32 v%d, v%d, v%d, v%d" % (tmp, regs[0], regs[1], regs[2]))
        i = 3
        while i + 1 < len(regs):
            A("v_max3_u32 v%d, v%d, v%d, v%d" % (tmp, tmp, regs[i], regs[i + 1])); i += 2
        if i < len(regs):
            A("v_max_u32 v%d, v%d, v%d" % (tmp, tmp, regs[i]))
        A("v_cmp_eq_u32 vcc, -1, v%d" % tmp)
    def lds_spin(addr_v, val, tmp):
        l = poll_begin("s61")
        A("ds_read_b32 v%d, v%d" % (tmp, addr_v))
        A("s_waitcnt lgkmcnt(0)")
        A("v_cmp_ne_u32 vcc, %d, v%d" % (val, tmp))
        poll_end(l, 1, "s61")

    K = NAME + "_kernel"
    A("%s:" % K)
    stamp(0)
    A("s_cmp_ge_u32 s2, 256")
    A("s_cbranch_scc1 L_exit")
    A("s_load_dwordx16 s[8:23], s[0:1], 0")
    A("s_load_dwordx8 s[24:31], s[0:1], 64")
    A("s_load_dwordx2 s[32:33], s[0:1], 96")
    A("v_lshrrev_b32 v1, 6, v0")
    A("v_and_b32 v0, 63, v0")
    A("v_readfirstlane_b32 s3, v1")
    A("s_and_b32 s34, s2, 7")
    A("s_lshr_b32 s35, s2, 3")
    A("s_lshr_b32 s36, s35, 3")
    A("s_and_b32 s37, s35, 7")
    A("v_lshrrev_b32 v2, 4, v0")
    A("v_and_b32 v3, 15, v0")
    A("s_cmp_lt_u32 s3, 4")
    A("s_cbranch_scc1 L_chain")

    A("s_sub_u32 s44, s3, 4")
    A("s_lshl_b32 s45, s36, 3\ns_add_u32 s45, s45, s34\ns_lshl_b32 s45, s45, 20")
    A("s_lshl_b32 s46, s37, 17\ns_add_u32 s45, s45, s46")
    A("s_lshl_b32 s47, s44, 14\ns_add_u32 s45, s45, s47")
    for u in range(4):
        A("v_add_u32 v8, %d, v2" % (4 * u))
        A("v_xor_b32 v8, v8, v3")
        A("v_lshlrev_b32 v8, 4, v8")
        A("v_lshl_add_u32 v%d, v2, 8, v8" % (4 + u))
    A("v_lshlrev_b32 v8, 4, v3")
    A("v_lshl_add_u32 v9, v2, 10, v8")
    A("s_mov_b32 m0, s47")
    A("s_waitcnt lgkmcnt(0)")
    A("s_add_u32 s48, s10, s45\ns_addc_u32 s49, s11, 0")
    A("s_add_u32 s50, s12, s45\ns_addc_u32 s51, s13, 0")
    A("s_mov_b32 s52, s47")
    for i in range(16):
        T, u = i >> 2, i & 3
        if u == 0 and T > 0:
            A("s_add_u32 s48, s48, 4096\ns_addc_u32 s49, s49, 0\ns_add_u32 s52, s52, 4096\ns_mov_b32 m0, s52\ns_nop 0")
        A("global_load_lds_dwordx4 v%d, s[48:49] offset:%d%s" % (4 + u, u * 1024, NT))
        if i == W:
            A("s_barrier")
        if W and i >= W:
            A("s_waitcnt vmcnt(%d)" % W)
    stamp(1)
    VB = 96
    def vload(idx):
        T, r = idx >> 2, idx & 3
        if r == 0 and T > 0:
            A("s_add_u32 s50, s50, 4096\ns_addc_u32 s51, s51, 0")
        A("global_load_dwordx4 v[%d:%d], v9, s[50:51] offset:%d%s" % (VB + 4 * idx, VB + 4 * idx + 3, r * 256, NT))
    for idx in range(8): vload(idx)
    for t in range(4):
        A("v_add_u32 v8, %d, v2" % (4 * t))
        A("v_xor_b32 v8, v8, v3")
        A("v_lshlrev_b32 v8, 4, v8")
        A("v_lshl_add_u32 v8, v3, 8, v8")
        A("v_add_u32 v%d, s47, v8" % (10 + t))
    A("v_lshrrev_b32 v8, 2, v3")
    A("v_lshlrev_b32 v14, 8, v8")
    A("v_lshl_add_u32 v14, v2, 4, v14")
    A("v_add_u32 v14, %d, v14" % L_Q)
    A("v_lshlrev_b32 v15, 5, v8")
    A("v_add_u32 v15, %d, v15" % L_MB)
    A("v_lshlrev_b32 v88, 2, v8")
    A("v_add_u32 v88, %d, v88" % L_LACC)
    A("v_and_b32 v8, 1, v3\nv_lshlrev_b32 v8, 4, v8\nv_mov_b32 v91, 0xffff\nv_lshlrev_b32 v91, v8, v91")
    A("v_and_b32 v8, 3, v3")
    A("v_cmp_gt_u32 vcc, 2, v8")
    A("s_nop 1")
    A("v_cndmask_b32 v89, 0, v91, vcc")
    A("v_cndmask_b32 v90, v91, 0, vcc")
    A("v_lshlrev_b32 v92, 2, v0\nv_add_u32 v92, %d, v92" % L_OACC)
    A("s_mov_b32 s53, 0x3db504f3")
    A("s_mov_b32 s54, 0x3fb8aa3b")
    stamp(2)
    A("s_barrier")
    stamp(3)
    for t in range(4):
        A("ds_read_b128 v[%d:%d], v14 offset:%d" % (16 + 4 * t, 19 + 4 * t, t * 64))
    A("s_waitcnt vmcnt(8)")
    def kfr(T, buf):
        for t in range(4):
            A("ds_read_b128 v[%d:%d], v%d offset:%d" % (buf + 4 * t, buf + 4 * t + 3, 10 + t, T * 4096))
    def qk(T, buf):
        for t in range(4):
            c = "0" if t == 0 else "v[%d:%d]" % (64 + 4 * T, 67 + 4 * T)
            A("v_mfma_f32_16x16x32_bf16 v[%d:%d], v[%d:%d], v[%d:%d], %s" % (64 + 4 * T, 67 + 4 * T, buf + 4 * t, buf + 4 * t + 3, 16 + 4 * t, 19 + 4 * t, c))
    kfr(0, 32); kfr(1, 48)
    A("s_waitcnt lgkmcnt(4)"); qk(0, 32)
    kfr(2, 32)
    A("s_waitcnt lgkmcnt(4)"); qk(1, 48)
    kfr(3, 48)
    A("s_waitcnt lgkmcnt(4)"); qk(2, 32)
    A("s_waitcnt lgkmcnt(0)"); qk(3, 48)
    def round_pair(a, b):
        A("v_cvt_pk_bf16_f32 v8, v%d, v%d" % (a, b))
        A("v_lshlrev_b32 v%d, 16, v8" % a)
        A("v_and_b32 v%d, 0xffff0000, v8" % b)
        A("v_mul_f32 v%d, s53, v%d" % (a, a))
        A("v_mul_f32 v%d, s53, v%d" % (b, b))
        A("v_cvt_pk_bf16_f32 v8, v%d, v%d" % (a, b))
        A("v_lshlrev_b32 v%d, 16, v8" % a)
        A("v_and_b32 v%d, 0xffff0000, v8" % b)
    for T in range(3):
        round_pair(64 + 4 * T, 65 + 4 * T); round_pair(66 + 4 * T, 67 + 4 * T)
    A("s_nop 7")
    round_pair(76, 77); round_pair(78, 79)
    A("v_max3_f32 v8, v64, v65, v66")
    for i in range(67, 79, 2):
        A("v_max3_f32 v8, v8, v%d, v%d" % (i, i + 1))
    A("v_max_f32 v8, v8, v79")
    red_x16(8, 93, "max"); red_x32(8, 93, "max")
    A("s_lshl_b32 s55, s44, 2")
    A("v_add_u32 v93, s55, v15")
    A("s_mov_b32 exec_lo, 0x1111\ns_mov_b32 exec_hi, 0")
    A("ds_write_b32 v93, v8")
    A("s_mov_b64 exec, -1")
    A("s_waitcnt lgkmcnt(0)")
    A("s_barrier")
    A("ds_read_b128 v[32:35], v15")
    A("ds_read_b128 v[36:39], v15 offset:16")
    A("s_waitcnt lgkmcnt(0)")
    A("v_max3_f32 v8, v32, v33, v34\nv_max3_f32 v8, v8, v35, v36\nv_max3_f32 v8, v8, v37, v38\nv_max_f32 v8, v8, v39")
    A("v_mul_f32 v8, s54, v8")
    for i in range(16):
        A("v_fma_f32 v%d, v%d, s54, -v8" % (64 + i, 64 + i))
    for i in range(16):
        A("v_exp_f32 v%d, v%d" % (64 + i, 64 + i))
    A("s_nop 0")
    A("v_add_f32 v8, v64, v65")
    for i in range(2, 16): A("v_add_f32 v8, v8, v%d" % (64 + i))
    for i in range(16):
        A("v_cvt_pk_bf16_f32 v%d, v%d, v%d" % (64 + i, 64 + i, 64 + i))
    red_x16(8, 93, "add"); red_x32(8, 93, "add")
    A("s_mov_b32 exec_lo, 0x1111\ns_mov_b32 exec_hi, 0")
    A("ds_add_f32 v88, v8")
    A("s_mov_b32 exec_lo, 1")
    A("v_mov_b32 v93, %d\nv_mov_b32 v94, 1" % L_CNTL)
    A("ds_add_u32 v93, v94")
    A("s_mov_b64 exec, -1")
    stamp(4)
    for idx in range(8, 16): vload(idx)
    A("s_mov_b64 exec, 1")
    A("ds_add_u32 v93, v94 offset:4")
    A("s_mov_b64 exec, -1")
    stamp(5)
    for idx in range(16):
        ta = 94 if False else (32 + 2 * (idx & 3))
        A("v_and_b32 v%d, v%d, v89" % (ta, 64 + idx))
        A("v_and_b32 v%d, v%d, v90" % (ta + 1, 64 + idx))
        A("s_waitcnt vmcnt(%d)" % (15 - idx))
        if idx == 0:
            A("s_nop 0")
        c0 = "0" if idx == 0 else "v[80:83]"
        c1 = "0" if idx == 0 else "v[84:87]"
        A("s_nop 0")
        A("v_mfma_f32_16x16x16_bf16 v[80:83], v[%d:%d], v[%d:%d], %s" % (VB + 4 * idx, VB + 4 * idx + 1, ta, ta + 1, c0))
        A("v_mfma_f32_16x16x16_bf16 v[84:87], v[%d:%d], v[%d:%d], %s" % (VB + 4 * idx + 2, VB + 4 * idx + 3, ta, ta + 1, c1))
    stamp(6)
    A("s_nop 7")
    for y in range(2):
        for r in range(4):
            A("ds_add_f32 v92, v%d offset:%d" % (80 + 4 * y + r, (y * 4 + r) * 256))
    A("s_waitcnt lgkmcnt(0)")
    A("s_barrier")
    stamp(7)
    def drole():
        A("s_sub_u32 s56, s37, s34\ns_sub_u32 s56, s56, 1\ns_and_b32 s56, s56, 7")
        A("s_lshl_b32 s57, s36, 3\ns_add_u32 s57, s57, s34")
        A("s_lshl_b32 s41, s57, 1\ns_add_u32 s41, s41, s56")
        A("s_cmp_lt_u32 s56, 2\ns_cselect_b32 s40, 1, 0")
        A("s_cmp_lt_u32 s57, 28\ns_cselect_b32 s40, s40, 0")
    drole()
    A("s_cmp_eq_u32 s40, 0")
    A("s_cbranch_scc1 L_stream_end")
    A("s_and_b32 s56, s44, 1\ns_lshr_b32 s57, s44, 1")
    A("v_lshrrev_b32 v8, 2, v3\nv_lshl_add_u32 v8, v2, 3, v8")
    A("v_and_b32 v93, 3, v3\nv_lshlrev_b32 v93, 3, v93")
    A("v_lshl_add_u32 v4, v8, 6, v93")
    A("s_lshl_b32 s58, s57, 13\ns_lshl_b32 s59, s56, 5\ns_add_u32 s58, s58, s59\ns_add_u32 s58, s58, %d" % L_W1)
    A("v_add_u32 v4, s58, v4")
    for ks in range(4):
        A("ds_read_b64_tr_b16 v[%d:%d], v4 offset:%d" % (32 + 4 * ks, 33 + 4 * ks, ks * 2048))
        A("ds_read_b64_tr_b16 v[%d:%d], v4 offset:%d" % (34 + 4 * ks, 35 + 4 * ks, ks * 2048 + 256))
    A("v_lshl_add_u32 v5, v8, 10, v93")
    A("s_lshl_b32 s58, s44, 7\ns_add_u32 s58, s58, %d" % L_W2)
    A("v_add_u32 v5, s58, v5")
    A("s_waitcnt lgkmcnt(0)")
    for t in range(4):
        A("ds_read_b64_tr_b16 v[%d:%d], v5 offset:%d" % (48 + 4 * t, 49 + 4 * t, t * 32))
        A("ds_read_b64_tr_b16 v[%d:%d], v5 offset:%d" % (50 + 4 * t, 51 + 4 * t, t * 32 + 4096))
    A("v_and_b32 v6, 3, v3\nv_lshlrev_b32 v6, 10, v6\nv_lshl_add_u32 v6, v2, 4, v6")
    A("s_lshl_b32 s58, s57, 8\ns_add_u32 s58, s58, %d" % L_XH)
    A("v_add_u32 v6, s58, v6")
    A("v_lshlrev_b32 v7, 2, v0\ns_lshl_b32 s58, s56, 8\ns_add_u32 s58, s58, %d\nv_add_u32 v7, s58, v7" % L_ZB)
    A("v_and_b32 v10, 3, v3\nv_lshlrev_b32 v10, 6, v10\nv_lshl_add_u32 v10, v2, 4, v10\nv_add_u32 v10, %d, v10" % L_H1)
    A("v_lshrrev_b32 v11, 2, v3")
    A("v_cmp_eq_u32 s[90:91], 1, v11\nv_cmp_eq_u32 s[92:93], 2, v11\nv_cmp_eq_u32 s[94:95], 3, v11")
    A("v_and_b32 v12, 3, v3\nv_mul_u32_u24 v12, %d, v12\nv_lshl_add_u32 v12, v2, 4, v12" % (NJ * 256))
    A("s_mul_i32 s58, s44, %d\ns_lshl_b32 s59, s41, 8\ns_add_u32 s58, s58, s59\ns_add_u32 s58, s58, %d" % (4 * NJ * 256, W_OUT))
    A("v_add_u32 v12, s58, v12")
    A("v_lshlrev_b32 v13, 4, v0\ns_lshl_b32 s58, s44, 11\ns_add_u32 s58, s58, %d\nv_add_u32 v13, s58, v13" % W_H)
    A("v_lshlrev_b32 v14, 3, v0\ns_lshl_b32 s58, s44, 10\ns_add_u32 s58, s58, %d\nv_add_u32 v14, s58, v14" % L_XH)
    A("s_waitcnt lgkmcnt(0)")
    A("s_barrier")
    stamp(8)
    A("s_cmp_ge_u32 s44, 4")
    A("s_cbranch_scc1 L_d1")
    p = poll_begin()
    A("global_load_dwordx4 v[16:19], v13, s[32:33]%s" % SC)
    A("global_load_dwordx4 v[20:23], v13, s[32:33] offset:1024%s" % SC)
    A("s_waitcnt vmcnt(0)")
    sentinel_check(range(16, 24), 24)
    poll_end(p, 1)
    stamp(9)
    def ln8(mim):
        A("v_add_f32 v24, v16, v17\nv_add_f32 v25, v18, v19\nv_add_f32 v26, v20, v21\nv_add_f32 v27, v22, v23")
        A("v_add_f32 v24, v24, v25\nv_add_f32 v26, v26, v27\nv_add_f32 v24, v24, v26")
        red16(24); red_x16(24, 25); red_x32(24, 25)
        A("v_mul_f32 v24, 0x3b000000, v24")
        for i in range(8): A("v_sub_f32 v%d, v%d, v24" % (64 + i, 16 + i))
        A("v_mul_f32 v25, v64, v64")
        for i in range(1, 8): A("v_fma_f32 v25, v%d, v%d, v25" % (64 + i, 64 + i))
        red16(25); red_x16(25, 26); red_x32(25, 26)
        A("v_mul_f32 v25, 0x3b000000, v25")
        if mim:
            bf16r(24, 24); bf16r(25, 25)
            A("v_add_f32 v25, 0x3727c5ac, v25")
            bf16r(25, 25)
            A("v_sqrt_f32 v25, v25\ns_nop 0"); bf16r(25, 25)
            A("v_rcp_f32 v25, v25")
            for i in range(0, 8, 2):
                A("v_sub_f32 v%d, v%d, v24\nv_sub_f32 v%d, v%d, v24" % (64 + i, 16 + i, 65 + i, 17 + i))
                A("v_cvt_pk_bf16_f32 v26, v%d, v%d" % (64 + i, 65 + i))
                A("v_lshlrev_b32 v%d, 16, v26\nv_and_b32 v%d, 0xffff0000, v26" % (64 + i, 65 + i))
            for i in range(0, 8, 2):
                A("v_mul_f32 v%d, v%d, v25\nv_mul_f32 v%d, v%d, v25" % (64 + i, 64 + i, 65 + i, 65 + i))
                A("v_cvt_pk_bf16_f32 v%d, v%d, v%d" % (72 + i // 2, 64 + i, 65 + i))
                A("v_lshlrev_b32 v%d, 16, v%d\nv_and_b32 v%d, 0xffff0000, v%d" % (16 + i, 72 + i // 2, 17 + i, 72 + i // 2))
        else:
            A("v_add_f32 v25, 0x3727c5ac, v25")
            A("v_rsq_f32 v25, v25\ns_nop 0")
            for i in range(0, 8, 2):
                A("v_mul_f32 v%d, v%d, v25\nv_mul_f32 v%d, v%d, v25" % (16 + i, 64 + i, 17 + i, 65 + i))
                A("v_cvt_pk_bf16_f32 v%d, v%d, v%d" % (72 + i // 2, 16 + i, 17 + i))
    ln8(mimic); ln8(mimic)
    A("ds_write_b64 v14, v[72:73]")
    A("ds_write_b64 v14, v[74:75] offset:512")
    A("s_waitcnt lgkmcnt(0)")
    A("L_d1:")
    A("s_barrier")
    for ks in range(4):
        A("ds_read_b128 v[%d:%d], v6 offset:%d" % (16 + 4 * ks, 19 + 4 * ks, ks * 64))
    for ks in range(4):
        A("s_waitcnt lgkmcnt(%d)" % (3 - ks))
        c = "0" if ks == 0 else "v[80:83]"
        A("v_mfma_f32_16x16x32_bf16 v[80:83], v[%d:%d], v[%d:%d], %s" % (32 + 4 * ks, 35 + 4 * ks, 16 + 4 * ks, 19 + 4 * ks, c))
    A("s_nop 7")
    A("v_cndmask_b32 v80, v80, v81, s[90:91]\nv_cndmask_b32 v80, v80, v82, s[92:93]\nv_cndmask_b32 v80, v80, v83, s[94:95]")
    A("ds_add_f32 v7, v80")
    A("s_waitcnt lgkmcnt(0)")
    A("s_barrier")
    A("s_cmp_ge_u32 s44, 2")
    A("s_cbranch_scc1 L_d3")
    A("v_lshrrev_b32 v16, 2, v3\nv_lshl_add_u32 v16, v2, 2, v16")
    A("s_lshl_b32 s58, s44, 4\nv_add_u32 v16, s58, v16")
    A("v_lshlrev_b32 v17, 2, v16\nv_add_u32 v17, %d, v17" % L_B1)
    A("ds_read_b32 v18, v7")
    A("ds_read_b32 v19, v17")
    A("v_and_b32 v20, 3, v3\nv_lshlrev_b32 v20, 6, v20\nv_lshl_add_u32 v20, v16, 1, v20\nv_add_u32 v20, %d, v20" % L_H1)
    A("s_waitcnt lgkmcnt(0)")
    if mimic:
        bf16r(18, 18)
    A("v_add_f32 v18, v18, v19")
    if mimic:
        bf16r(18, 18)
    A("v_mul_f32 v19, v18, v18")
    A("v_mov_b32 v21, 0x3d372713")
    A("v_fma_f32 v19, v19, v21, 1.0")
    A("v_mul_f32 v19, v19, v18")
    A("v_mul_f32 v19, 0xc0135761, v19")
    A("v_exp_f32 v19, v19\ns_nop 0")
    A("v_add_f32 v19, 1.0, v19")
    A("v_rcp_f32 v19, v19\ns_nop 0")
    A("v_mul_f32 v18, v18, v19")
    A("v_cvt_pk_bf16_f32 v18, v18, v18")
    A("ds_write_b16 v20, v18")
    A("s_waitcnt lgkmcnt(0)")
    A("L_d3:")
    A("s_barrier")
    A("ds_read_b128 v[16:19], v10")
    A("s_waitcnt lgkmcnt(0)")
    for t in range(4):
        A("v_mfma_f32_16x16x32_bf16 v[%d:%d], v[%d:%d], v[16:19], 0" % (64 + 4 * t, 67 + 4 * t, 48 + 4 * t, 51 + 4 * t))
    A("s_mov_b32 exec_lo, 0x000f000f\ns_mov_b32 exec_hi, 0x000f000f")
    A("s_nop 5")
    for t in range(4):
        A("global_store_dwordx4 v12, v[%d:%d], s[32:33] offset:%d%s" % (64 + 4 * t, 67 + 4 * t, t * 64, SC))
    A("s_mov_b64 exec, -1")
    stamp(10)
    A("L_stream_end:")
    stamp(11)
    stamp_flush()
    A("s_endpgm")

    A("L_chain:")
    A("s_waitcnt lgkmcnt(0)")
    A("v_mov_b32 v4, 0")
    A("global_load_dword v5, v4, s[32:33]%s" % SC)
    A("s_lshl_b32 s38, s34, 2\ns_add_u32 s38, s38, s36")
    A("s_cmp_eq_u32 s37, s34\ns_cselect_b32 s39, 1, 0")
    drole()
    A("s_cmp_eq_u32 s3, 1\ns_cbranch_scc1 L_c1")
    A("s_cmp_eq_u32 s3, 2\ns_cbranch_scc1 L_c2")
    A("s_cmp_eq_u32 s3, 3\ns_cbranch_scc1 L_c3")
    A("v_lshlrev_b32 v6, 10, v2\nv_lshl_add_u32 v6, v3, 6, v6")
    for i in range(4):
        A("global_load_dwordx4 v[%d:%d], v6, s[8:9] offset:%d" % (16 + 4 * i, 19 + 4 * i, i * 16))
    A("s_lshl_b32 s44, s34, 5\ns_add_u32 s44, s44, s35\ns_lshl_b32 s44, s44, 5")
    A("s_add_u32 s46, s14, s44\ns_addc_u32 s47, s15, 0")
    A("v_lshrrev_b32 v7, 1, v0\nv_lshlrev_b32 v7, 13, v7\nv_and_b32 v8, 1, v0\nv_lshl_add_u32 v7, v8, 4, v7")
    A("s_mov_b32 s48, %d" % L_ST)
    for i in range(16):
        A("s_mov_b32 m0, s48\ns_add_u32 s48, s48, 1024")
        A("global_load_lds_dwordx4 v7, s[46:47]")
        A("s_add_u32 s46, s46, 0x40000\ns_addc_u32 s47, s47, 0")
    A("v_lshlrev_b32 v9, 3, v3")
    A("s_lshl_b32 s44, s36, 10\ns_lshl_b32 s45, s37, 7\ns_add_u32 s44, s44, s45")
    A("v_add_u32 v10, s44, v9")
    A("v_add_u32 v11, s45, v9")
    A("global_load_dwordx2 v[120:121], v10, s[8:9]")
    A("global_load_dwordx2 v[122:123], v11, s[26:27]")
    A("global_load_dwordx2 v[124:125], v10, s[28:29]")
    A("s_barrier")
    stamp(1)
    A("s_waitcnt vmcnt(19)")
    A("v_readfirstlane_b32 s42, v5")
    for i in range(16):
        A("v_lshlrev_b32 v%d, 16, v%d\nv_and_b32 v%d, 0xffff0000, v%d" % (32 + 2 * i, 16 + i, 33 + 2 * i, 16 + i))
    A("s_not_b32 s43, s42\ns_add_u32 s42, s42, 1")
    A("v_add_f32 v12, v32, v33\nv_add_f32 v13, v34, v35\nv_add_f32 v14, v36, v37\nv_add_f32 v15, v38, v39")
    for i in range(8, 32, 4):
        A("v_add_f32 v12, v12, v%d\nv_add_f32 v13, v13, v%d\nv_add_f32 v14, v14, v%d\nv_add_f32 v15, v15, v%d" % (32 + i, 33 + i, 34 + i, 35 + i))
    A("v_add_f32 v12, v12, v13\nv_add_f32 v14, v14, v15\nv_add_f32 v12, v12, v14")
    red16(12)
    A("v_mul_f32 v12, 0x3b000000, v12")
    A("v_mov_b32 v13, 0\nv_mov_b32 v14, 0")
    for i in range(0, 32, 2):
        A("v_sub_f32 v64, v%d, v12\nv_sub_f32 v65, v%d, v12\nv_fma_f32 v13, v64, v64, v13\nv_fma_f32 v14, v65, v65, v14" % (32 + i, 33 + i))
    A("v_add_f32 v13, v13, v14")
    red16(13)
    A("v_mul_f32 v13, 0x3b000000, v13")
    bf16r(12, 12); bf16r(13, 13)
    A("v_add_f32 v13, 0x3727c5ac, v13"); bf16r(13, 13)
    A("v_sqrt_f32 v13, v13\ns_nop 0"); bf16r(13, 13)
    A("v_rcp_f32 v13, v13")
    for i in range(16):
        a, b = 32 + 2 * i, 33 + 2 * i
        A("v_sub_f32 v%d, v%d, v12\nv_sub_f32 v%d, v%d, v12" % (a, a, b, b))
        A("v_cvt_pk_bf16_f32 v64, v%d, v%d" % (a, b))
        A("v_lshlrev_b32 v%d, 16, v64\nv_and_b32 v%d, 0xffff0000, v64" % (a, b))
        A("v_mul_f32 v%d, v%d, v13\nv_mul_f32 v%d, v%d, v13" % (a, a, b, b))
        A("v_cvt_pk_bf16_f32 v%d, v%d, v%d" % (16 + i, a, b))
    A("v_add_u32 v6, %d, v6" % L_XH)
    for i in range(4):
        A("ds_write_b128 v6, v[%d:%d] offset:%d" % (16 + 4 * i, 19 + 4 * i, i * 16))
    A("v_lshrrev_b32 v8, 2, v3\nv_lshl_add_u32 v8, v2, 3, v8\nv_and_b32 v9, 3, v3\nv_lshlrev_b32 v12, 3, v9")
    A("v_lshl_add_u32 v12, v8, 5, v12\nv_add_u32 v12, %d, v12" % L_ST)
    A("v_lshlrev_b32 v13, 10, v9\nv_lshl_add_u32 v13, v2, 4, v13\nv_add_u32 v13, %d, v13" % L_XH)
    A("s_waitcnt vmcnt(3) lgkmcnt(0)")
    stamp(2)
    for grp in range(4):
        for k in range(4):
            ks = grp * 4 + k
            A("ds_read_b64_tr_b16 v[%d:%d], v12 offset:%d" % (32 + 8 * k, 33 + 8 * k, ks * 1024))
            A("ds_read_b64_tr_b16 v[%d:%d], v12 offset:%d" % (34 + 8 * k, 35 + 8 * k, ks * 1024 + 128))
            A("ds_read_b128 v[%d:%d], v13 offset:%d" % (36 + 8 * k, 39 + 8 * k, ks * 64))
        for k in range(4):
            ks = grp * 4 + k
            A("s_waitcnt lgkmcnt(%d)" % (9 - 3 * k))
            c = "0" if ks == 0 else "v[64:67]"
            A("v_mfma_f32_16x16x32_bf16 v[64:67], v[%d:%d], v[%d:%d], %s" % (32 + 8 * k, 35 + 8 * k, 36 + 8 * k, 39 + 8 * k, c))
    A("v_lshlrev_b32 v8, 11, v9\nv_lshl_add_u32 v8, v2, 4, v8")
    A("s_lshl_b32 s44, s34, 13\ns_lshl_b32 s45, s35, 6\ns_add_u32 s44, s44, s45\ns_add_u32 s44, s44, %d" % W_QG)
    A("v_add_u32 v8, s44, v8")
    A("v_mov_b32 v70, s42\nv_mov_b32 v71, s43")
    A("s_nop 4")
    A("v_cvt_pk_bf16_f32 v68, v64, v65\nv_cvt_pk_bf16_f32 v69, v66, v67")
    A("s_mov_b32 exec_lo, 0x000f000f\ns_mov_b32 exec_hi, 0x000f000f")
    A("global_store_dwordx4 v8, v[68:71], s[32:33]%s" % SC)
    A("s_mov_b64 exec, -1")
    stamp(3)
    A("s_branch L_c_join1")
    A("L_c1:")
    A("s_barrier")
    A("s_lshl_b32 s44, s34, 13\ns_lshl_b32 s45, s36, 11\ns_add_u32 s44, s44, s45\ns_add_u32 s44, s44, %d" % W_QG)
    A("v_lshlrev_b32 v6, 4, v0\nv_add_u32 v6, s44, v6")
    A("s_waitcnt vmcnt(0)")
    A("v_readfirstlane_b32 s42, v5")
    A("s_nop 3")
    A("s_not_b32 s43, s42\ns_add_u32 s42, s42, 1")
    A("s_sleep %d" % 16)
    p = poll_begin()
    A("global_load_dwordx4 v[16:19], v6, s[32:33]%s" % SC)
    A("global_load_dwordx4 v[20:23], v6, s[32:33] offset:1024%s" % SC)
    A("s_waitcnt vmcnt(0)")
    A("v_xor_b32 v24, s42, v18\nv_xor_b32 v25, s43, v19\nv_xor_b32 v26, s42, v22\nv_xor_b32 v27, s43, v23")
    A("v_or3_b32 v24, v24, v25, v26\nv_or_b32 v24, v24, v27")
    A("v_cmp_ne_u32 vcc, 0, v24")
    poll_end(p, sleep_q)
    A("v_lshlrev_b32 v7, 3, v0\nv_add_u32 v7, %d, v7" % L_Q)
    A("ds_write_b64 v7, v[16:17]")
    A("ds_write_b64 v7, v[20:21] offset:512")
    A("s_waitcnt lgkmcnt(0)")
    stamp(3)
    A("s_branch L_c_join1")
    A("L_c2:")
    A("v_mov_b32 v8, 0\nv_mov_b32 v9, 0\nv_mov_b32 v10, 0\nv_mov_b32 v11, 0")
    A("v_lshlrev_b32 v6, 4, v0\nv_add_u32 v7, %d, v6" % L_OACC)
    for i in range(3): A("ds_write_b128 v7, v[8:11] offset:%d" % (i * 1024))
    A("v_mov_b32 v12, -1\nv_mov_b32 v13, -1\nv_mov_b32 v14, -1\nv_mov_b32 v15, -1")
    A("v_lshrrev_b32 v16, 5, v0\nv_lshlrev_b32 v16, 14, v16\nv_and_b32 v17, 31, v0\nv_lshl_add_u32 v16, v17, 4, v16")
    A("s_lshl_b32 s44, s34, 16\ns_lshl_b32 s45, s36, 12\ns_add_u32 s44, s44, s45\ns_lshl_b32 s45, s37, 9\ns_add_u32 s44, s44, s45\ns_add_u32 s44, s44, %d" % W_OP)
    A("v_add_u32 v16, s44, v16")
    A("global_store_dwordx4 v16, v[12:15], s[32:33]%s" % SC)
    A("v_add_u32 v17, 0x8000, v16")
    A("global_store_dwordx4 v17, v[12:15], s[32:33]%s" % SC)
    A("v_lshlrev_b32 v18, 13, v2\nv_lshl_add_u32 v18, v3, 4, v18")
    A("s_lshl_b32 s44, s37, 15\ns_lshl_b32 s45, s38, 8\ns_add_u32 s44, s44, s45\ns_add_u32 s44, s44, %d" % W_HP)
    A("v_add_u32 v18, s44, v18")
    A("global_store_dwordx4 v18, v[12:15], s[32:33]%s" % SC)
    A("s_cmp_eq_u32 s39, 0\ns_cbranch_scc1 L_c2a")
    A("s_lshl_b32 s44, s36, 11\ns_lshl_b32 s45, s37, 8\ns_add_u32 s44, s44, s45\ns_add_u32 s44, s44, %d" % W_H)
    A("v_lshlrev_b32 v19, 4, v3\nv_add_u32 v19, s44, v19")
    A("global_store_dwordx4 v19, v[12:15], s[32:33]%s" % SC)
    A("L_c2a:")
    A("s_cmp_eq_u32 s40, 0\ns_cbranch_scc1 L_c2b")
    A("v_mul_u32_u24 v19, %d, v2\nv_lshl_add_u32 v19, v3, 4, v19" % (NJ * 256))
    A("s_lshl_b32 s44, s41, 8\ns_add_u32 s44, s44, %d" % W_OUT)
    A("v_add_u32 v19, s44, v19")
    for i in range(8):
        A("global_store_dwordx4 v19, v[12:15], s[32:33]%s" % SC)
        A("v_add_u32 v19, %d, v19" % (4 * NJ * 256))
    A("L_c2b:")
    A("s_waitcnt lgkmcnt(0)")
    A("s_barrier")
    A("s_waitcnt vmcnt(0)")
    A("v_readfirstlane_b32 s42, v5")
    A("s_nop 3")
    A("s_not_b32 s43, s42\ns_add_u32 s42, s42, 1")
    A("v_mov_b32 v20, s42\nv_mov_b32 v21, s43")
    A("s_lshl_b32 s44, s2, 3\ns_add_u32 s44, s44, %d\nv_mov_b32 v22, s44" % W_FLAG)
    A("s_mov_b64 exec, 1")
    A("global_store_dwordx2 v22, v[20:21], s[32:33]%s" % SC)
    A("s_mov_b64 exec, -1")
    stamp(3)
    A("s_branch L_c_join1")
    A("L_c3:")
    A("s_barrier")
    A("s_cmp_eq_u32 s40, 0\ns_cbranch_scc1 L_c3a")
    A("s_lshl_b32 s44, s41, 6")
    A("v_and_b32 v6, 31, v0\nv_lshlrev_b32 v7, 1, v6\nv_add_u32 v7, s44, v7")
    A("global_load_ushort v8, v7, s[22:23]")
    A("v_lshlrev_b32 v6, 2, v6\nv_add_u32 v6, %d, v6" % L_B1)
    A("s_waitcnt vmcnt(0)")
    A("v_lshlrev_b32 v8, 16, v8")
    A("ds_write_b32 v6, v8")
    A("L_c3a:")
    A("s_waitcnt vmcnt(0) lgkmcnt(0)")
    A("v_readfirstlane_b32 s42, v5")
    A("s_nop 3")
    A("s_not_b32 s43, s42\ns_add_u32 s42, s42, 1")
    A("L_c_join1:")
    A("s_barrier")
    stamp(4)
    A("s_lshl_b32 s44, s38, 17\ns_lshl_b32 s45, s37, 7\ns_add_u32 s44, s44, s45\ns_lshl_b32 s45, s3, 5\ns_add_u32 s44, s44, s45")
    A("s_add_u32 s46, s16, s44\ns_addc_u32 s47, s17, 0")
    A("v_lshrrev_b32 v6, 1, v0")
    A("v_and_b32 v7, 3, v6\nv_lshlrev_b32 v7, 3, v7")
    A("v_lshrrev_b32 v8, 4, v6\nv_lshl_add_u32 v7, v8, 2, v7")
    A("v_bfe_u32 v8, v6, 2, 2\nv_add_u32 v7, v7, v8")
    A("v_lshlrev_b32 v7, 10, v7\nv_and_b32 v8, 1, v0\nv_lshl_add_u32 v7, v8, 4, v7")
    A("s_lshl_b32 s48, s3, 12\ns_add_u32 s48, s48, %d" % L_ST)
    for i in range(4):
        A("s_mov_b32 m0, s48\ns_add_u32 s48, s48, 1024")
        A("global_load_lds_dwordx4 v7, s[46:47]")
        A("s_add_u32 s46, s46, 0x8000\ns_addc_u32 s47, s47, 0")
    A("s_barrier")
    A("s_cmp_lg_u32 s3, 1\ns_cbranch_scc1 L_c_ml")
    A("v_mov_b32 v6, %d" % L_CNTL)
    lds_spin(6, 8, 7)
    A("v_and_b32 v8, 3, v0\nv_lshlrev_b32 v9, 5, v8\nv_add_u32 v9, %d, v9\nv_lshlrev_b32 v10, 2, v8\nv_add_u32 v10, %d, v10" % (L_MB, L_LACC))
    A("ds_read_b128 v[16:19], v9\nds_read_b128 v[20:23], v9 offset:16\nds_read_b32 v25, v10")
    A("s_waitcnt lgkmcnt(0)")
    A("v_max3_f32 v24, v16, v17, v18\nv_max3_f32 v24, v24, v19, v20\nv_max3_f32 v24, v24, v21, v22\nv_max_f32 v24, v24, v23")
    A("v_mov_b32 v26, s42\nv_mov_b32 v27, s43")
    A("s_lshl_b32 s44, s34, 11\ns_lshl_b32 s45, s36, 7\ns_add_u32 s44, s44, s45\ns_lshl_b32 s45, s37, 4\ns_add_u32 s44, s44, s45\ns_add_u32 s44, s44, %d" % W_ML)
    A("v_lshlrev_b32 v11, 9, v8\nv_add_u32 v11, s44, v11")
    A("s_mov_b64 exec, 15")
    A("global_store_dwordx4 v11, v[24:27], s[32:33]%s" % SC)
    A("s_mov_b64 exec, -1")
    A("L_c_ml:")
    stamp(5)
    A("s_lshl_b32 s44, s38, 9\ns_lshl_b32 s45, s3, 7\ns_add_u32 s44, s44, s45\ns_add_u32 s44, s44, %d" % W_ML)
    A("v_and_b32 v8, 7, v0\nv_lshlrev_b32 v8, 4, v8\nv_add_u32 v8, s44, v8")
    p = poll_begin()
    A("global_load_dwordx4 v[16:19], v8, s[32:33]%s" % SC)
    A("s_waitcnt vmcnt(0)")
    A("v_xor_b32 v24, s42, v18\nv_xor_b32 v25, s43, v19\nv_or_b32 v24, v24, v25")
    A("v_cmp_ne_u32 vcc, 0, v24")
    poll_end(p, 4)
    A("v_mov_b32 v20, v16\ns_nop 1")
    for d in ("quad_perm:[1,0,3,2]", "quad_perm:[2,3,0,1]", "row_half_mirror"):
        A("v_max_f32_dpp v20, v20, v20 %s row_mask:0xf bank_mask:0xf\ns_nop 1" % d)
    A("v_sub_f32 v21, v16, v20\nv_mul_f32 v21, 0x3fb8aa3b, v21\nv_exp_f32 v21, v21\ns_nop 0")
    A("v_mul_f32 v22, v21, v17\ns_nop 1")
    for d in ("quad_perm:[1,0,3,2]", "quad_perm:[2,3,0,1]", "row_half_mirror"):
        A("v_add_f32_dpp v22, v22, v22 %s row_mask:0xf bank_mask:0xf\ns_nop 1" % d)
    A("v_rcp_f32 v22, v22\ns_nop 0")
    A("v_mul_f32 v21, v21, v22\ns_nop 1")
    for s_ in range(8): A("v_readlane_b32 s%d, v21, %d" % (88 + s_, s_))
    A("v_cmp_lt_u32 vcc, 31, v0\ns_nop 1")
    for i in range(4):
        A("v_mov_b32 v%d, s%d\nv_mov_b32 v30, s%d\nv_cndmask_b32 v%d, v%d, v30, vcc" % (100 + i, 88 + 2 * i, 89 + 2 * i, 100 + i, 100 + i))
    A("v_lshrrev_b32 v8, 2, v3\nv_lshl_add_u32 v8, v2, 3, v8\nv_and_b32 v9, 3, v3\nv_lshlrev_b32 v12, 3, v9")
    A("v_lshl_add_u32 v12, v8, 5, v12\ns_lshl_b32 s44, s3, 12\ns_add_u32 s44, s44, %d\nv_add_u32 v12, s44, v12" % L_ST)
    for ks in range(4):
        A("ds_read_b64_tr_b16 v[%d:%d], v12 offset:%d" % (104 + 4 * ks, 105 + 4 * ks, ks * 1024))
        A("ds_read_b64_tr_b16 v[%d:%d], v12 offset:%d" % (106 + 4 * ks, 107 + 4 * ks, ks * 1024 + 128))
    stamp(6)
    A("s_cmp_lg_u32 s3, 1\ns_cbranch_scc1 L_c_noflags")
    A("s_or_b32 s44, s39, s40\ns_cmp_eq_u32 s44, 0\ns_cbranch_scc1 L_c_noflags")
    A("v_lshlrev_b32 v8, 4, v0\nv_add_u32 v8, %d, v8" % W_FLAG)
    p = poll_begin()
    A("global_load_dwordx4 v[16:19], v8, s[32:33]%s" % SC)
    A("global_load_dwordx4 v[20:23], v8, s[32:33] offset:1024%s" % SC)
    A("s_waitcnt vmcnt(0)")
    for a in (16, 18, 20, 22):
        A("v_xor_b32 v%d, s42, v%d\nv_xor_b32 v%d, s43, v%d" % (a, a, a + 1, a + 1))
    A("v_or3_b32 v16, v16, v17, v18\nv_or3_b32 v16, v16, v19, v20\nv_or3_b32 v16, v16, v21, v22\nv_or_b32 v16, v16, v23")
    A("v_cmp_ne_u32 vcc, 0, v16")
    poll_end(p, 4)
    A("L_c_noflags:")
    A("s_cmp_eq_u32 s40, 0\ns_cbranch_scc1 L_c_now")
    A("s_cmp_lt_u32 s3, 2\ns_cbranch_scc1 L_c_now")
    A("v_mov_b32 v6, %d" % L_CNTV)
    lds_spin(6, 8, 7)
    A("s_cmp_eq_u32 s3, 3\ns_cbranch_scc1 L_c_w2")
    A("s_lshl_b32 s44, s41, 6\ns_add_u32 s46, s20, s44\ns_addc_u32 s47, s21, 0")
    A("v_lshrrev_b32 v6, 2, v0\nv_mul_u32_u24 v6, 3584, v6\nv_and_b32 v7, 3, v0\nv_lshl_add_u32 v6, v7, 4, v6")
    A("s_mov_b32 s48, %d\ns_mov_b32 s49, 32" % L_W1)
    A("L_c_w1l:")
    A("s_mov_b32 m0, s48\ns_add_u32 s48, s48, 1024")
    A("global_load_lds_dwordx4 v6, s[46:47]")
    A("s_add_u32 s46, s46, %d\ns_addc_u32 s47, s47, 0" % (16 * 3584))
    A("s_sub_u32 s49, s49, 1\ns_cmp_lg_u32 s49, 0\ns_cbranch_scc1 L_c_w1l")
    A("s_branch L_c_now")
    A("L_c_w2:")
    A("s_lshl_b32 s44, s41, 15\ns_add_u32 s46, s24, s44\ns_addc_u32 s47, s25, 0")
    A("v_lshlrev_b32 v6, 4, v0")
    A("s_mov_b32 s48, %d\ns_mov_b32 s49, 32" % L_W2)
    A("L_c_w2l:")
    A("s_mov_b32 m0, s48\ns_add_u32 s48, s48, 1024")
    A("global_load_lds_dwordx4 v6, s[46:47]")
    A("s_add_u32 s46, s46, 1024\ns_addc_u32 s47, s47, 0")
    A("s_sub_u32 s49, s49, 1\ns_cmp_lg_u32 s49, 0\ns_cbranch_scc1 L_c_w2l")
    A("L_c_now:")
    A("s_lshl_b32 s44, s38, 14\ns_lshl_b32 s45, s3, 12\ns_add_u32 s44, s44, s45\ns_add_u32 s44, s44, %d" % W_OP)
    A("v_lshlrev_b32 v6, 4, v0\nv_add_u32 v6, s44, v6")
    A("v_and_b32 v7, 7, v0\nv_lshlrev_b32 v7, 9, v7\nv_add_u32 v7, s44, v7")
    A("v_and_b32 v8, 31, v0\nv_lshlrev_b32 v8, 3, v8\ns_lshl_b32 s45, s3, 8\ns_add_u32 s45, s45, %d\nv_add_u32 v8, s45, v8" % L_OB)
    A("v_and_b32 v9, 3, v3\nv_lshlrev_b32 v9, 8, v9\nv_lshl_add_u32 v9, v2, 4, v9\nv_add_u32 v9, %d, v9" % L_OB)
    A("v_and_b32 v10, 3, v3\nv_lshlrev_b32 v10, 13, v10\nv_lshl_add_u32 v10, v2, 4, v10")
    A("s_lshl_b32 s44, s37, 15\ns_lshl_b32 s45, s38, 8\ns_add_u32 s44, s44, s45\ns_lshl_b32 s45, s3, 6\ns_add_u32 s44, s44, s45\ns_add_u32 s44, s44, %d" % W_HP)
    A("v_add_u32 v10, s44, v10")
    A("v_lshrrev_b32 v11, 2, v3\nv_lshlrev_b32 v11, 14, v11\nv_lshl_add_u32 v11, v2, 7, v11\nv_and_b32 v13, 3, v3\nv_lshl_add_u32 v11, v13, 4, v11")
    A("s_lshl_b32 s44, s34, 16\ns_lshl_b32 s45, s36, 12\ns_add_u32 s44, s44, s45\ns_lshl_b32 s45, s37, 9\ns_add_u32 s44, s44, s45")
    A("s_lshl_b32 s45, s3, 6\ns_add_u32 s44, s44, s45\ns_add_u32 s44, s44, %d" % W_OP)
    A("v_add_u32 v11, s44, v11")
    A("v_lshlrev_b32 v13, 2, v0\ns_lshl_b32 s45, s3, 10\ns_add_u32 s45, s45, %d\nv_add_u32 v13, s45, v13" % L_OACC)
    A("s_waitcnt vmcnt(0) lgkmcnt(0)")
    stamp(7)
    A("s_barrier")
    A("s_cmp_ge_u32 s3, 2\ns_cbranch_scc1 L_c_b")
    for r_ in range(4): A("ds_read_b32 v%d, v13 offset:%d" % (16 + r_, r_ * 256))
    A("s_waitcnt lgkmcnt(0)")
    A("global_store_dwordx4 v11, v[16:19], s[32:33]%s" % SC)
    A("L_c_b:")
    stamp(8)
    p = poll_begin()
    A("global_load_dword v20, v7, s[32:33]%s" % SC)
    A("global_load_dword v21, v7, s[32:33] offset:64%s" % SC)
    A("s_waitcnt vmcnt(0)")
    A("v_max_u32 v20, v20, v21")
    A("v_cmp_eq_u32 vcc, -1, v20")
    poll_end(p, 2)
    p = poll_begin()
    for i in range(4):
        A("global_load_dwordx4 v[%d:%d], v6, s[32:33] offset:%d%s" % (32 + 4 * i, 35 + 4 * i, i * 1024, SC))
    A("s_waitcnt vmcnt(0)")
    sentinel_check(range(32, 48), 20)
    poll_end(p, 0)
    stamp(9)
    for e in range(4):
        A("v_mul_f32 v%d, v100, v%d" % (20 + e, 32 + e))
    for i in range(1, 4):
        for e in range(4):
            A("v_fma_f32 v%d, v%d, v%d, v%d" % (20 + e, 100 + i, 32 + 4 * i + e, 20 + e))
    red_multi([20, 21, 22, 23], [24, 25, 26, 27], 32)
    A("v_cvt_pk_bf16_f32 v20, v20, v21\nv_cvt_pk_bf16_f32 v21, v22, v23")
    A("s_mov_b32 exec_hi, 0")
    A("ds_write_b64 v8, v[20:21]")
    A("s_mov_b64 exec, -1")
    A("s_waitcnt lgkmcnt(0)")
    A("s_barrier")
    for ks in range(4):
        A("ds_read_b128 v[%d:%d], v9 offset:%d" % (32 + 4 * ks, 35 + 4 * ks, ks * 64))
    for ks in range(4):
        A("s_waitcnt lgkmcnt(%d)" % (3 - ks))
        c = "0" if ks == 0 else "v[20:23]"
        A("v_mfma_f32_16x16x32_bf16 v[20:23], v[%d:%d], v[%d:%d], %s" % (104 + 4 * ks, 107 + 4 * ks, 32 + 4 * ks, 35 + 4 * ks, c))
    A("s_mov_b32 exec_lo, 0x000f000f\ns_mov_b32 exec_hi, 0x000f000f")
    A("s_nop 5")
    A("global_store_dwordx4 v10, v[20:23], s[32:33]%s" % SC)
    A("s_mov_b64 exec, -1")
    stamp(10)
    A("s_cmp_lg_u32 s3, 0\ns_cbranch_scc1 L_chain_end")
    A("s_cmp_eq_u32 s39, 0\ns_cbranch_scc1 L_chain_end")
    A("s_lshl_b32 s44, s37, 15\ns_lshl_b32 s45, s36, 13\ns_add_u32 s44, s44, s45\ns_add_u32 s44, s44, %d" % W_HP)
    A("v_lshlrev_b32 v6, 4, v0\nv_add_u32 v6, s44, v6\nv_add_u32 v7, 4096, v6")
    A("s_lshl_b32 s44, s36, 11\ns_lshl_b32 s45, s37, 8\ns_add_u32 s44, s44, s45\ns_add_u32 s44, s44, %d" % W_H)
    A("v_lshlrev_b32 v8, 4, v3\nv_add_u32 v8, s44, v8")
    A("s_lshl_b32 s44, s37, 2\ns_add_u32 s44, s44, s36\ns_mul_i32 s44, s44, %d\ns_add_u32 s44, s44, %d" % (NJ * 256, W_OUT))
    A("v_lshlrev_b32 v9, 4, v0\nv_add_u32 v9, s44, v9")
    A("v_lshlrev_b32 v110, 16, v120\nv_and_b32 v111, 0xffff0000, v120\nv_lshlrev_b32 v112, 16, v121\nv_and_b32 v113, 0xffff0000, v121")
    A("v_lshlrev_b32 v114, 16, v122\nv_and_b32 v115, 0xffff0000, v122\nv_lshlrev_b32 v116, 16, v123\nv_and_b32 v117, 0xffff0000, v123")
    p = poll_begin()
    for i in range(8):
        A("global_load_dwordx4 v[%d:%d], v%d, s[32:33] offset:%d%s" % (32 + 4 * i, 35 + 4 * i, 6 if i < 4 else 7, (i & 3) * 1024, SC))
    A("s_waitcnt vmcnt(0)")
    sentinel_check(range(32, 64), 20)
    poll_end(p, 2)
    for st in (16, 8, 4):
        for i in range(0, st, 2):
            A("v_pk_add_f32 v[%d:%d], v[%d:%d], v[%d:%d]" % (32 + i, 33 + i, 32 + i, 33 + i, 32 + st + i, 33 + st + i))
    red_multi([32, 33, 34, 35], [24, 25, 26, 27], 16)
    red_multi([32, 33, 34, 35], [24, 25, 26, 27], 32)
    A("v_cvt_pk_bf16_f32 v24, v32, v33\nv_cvt_pk_bf16_f32 v25, v34, v35")
    A("v_lshlrev_b32 v32, 16, v24\nv_and_b32 v33, 0xffff0000, v24\nv_lshlrev_b32 v34, 16, v25\nv_and_b32 v35, 0xffff0000, v25")
    for e in range(4): A("v_add_f32 v%d, v%d, v%d" % (32 + e, 32 + e, 110 + e))
    A("v_cvt_pk_bf16_f32 v24, v32, v33\nv_cvt_pk_bf16_f32 v25, v34, v35")
    A("v_lshlrev_b32 v104, 16, v24\nv_and_b32 v105, 0xffff0000, v24\nv_lshlrev_b32 v106, 16, v25\nv_and_b32 v107, 0xffff0000, v25")
    A("s_mov_b64 exec, 0xffff")
    A("global_store_dwordx4 v8, v[104:107], s[32:33]%s" % SC)
    A("s_mov_b64 exec, -1")
    stamp(1)
    for q in range(1, 4): A("v_add_u32 v%d, %d, v9" % (9 + q + 0 if False else 12 + q, 4096 * q))
    p = poll_begin()
    for i in range(14):
        base = 9 if i < 4 else 12 + (i >> 2)
        A("global_load_dwordx4 v[%d:%d], v%d, s[32:33] offset:%d%s" % (32 + 4 * i, 35 + 4 * i, base, (i & 3) * 1024, SC))
    A("s_waitcnt vmcnt(0)")
    sentinel_check(range(32, 88), 20)
    poll_end(p, 2)
    stamp(2)
    for i in range(0, 28, 2):
        A("v_pk_add_f32 v[%d:%d], v[%d:%d], v[%d:%d]" % (32 + i, 33 + i, 32 + i, 33 + i, 60 + i, 61 + i))
    for i in range(0, 12, 2):
        A("v_pk_add_f32 v[%d:%d], v[%d:%d], v[%d:%d]" % (32 + i, 33 + i, 32 + i, 33 + i, 48 + i, 49 + i))
    for i in range(0, 8, 2):
        A("v_pk_add_f32 v[%d:%d], v[%d:%d], v[%d:%d]" % (32 + i, 33 + i, 32 + i, 33 + i, 40 + i, 41 + i))
    for i in range(0, 4, 2):
        A("v_pk_add_f32 v[%d:%d], v[%d:%d], v[%d:%d]" % (32 + i, 33 + i, 32 + i, 33 + i, 36 + i, 37 + i))
    red_multi([32, 33, 34, 35], [24, 25, 26, 27], 16)
    red_multi([32, 33, 34, 35], [24, 25, 26, 27], 32)
    A("v_cvt_pk_bf16_f32 v24, v32, v33\nv_cvt_pk_bf16_f32 v25, v34, v35")
    A("v_lshlrev_b32 v32, 16, v24\nv_and_b32 v33, 0xffff0000, v24\nv_lshlrev_b32 v34, 16, v25\nv_and_b32 v35, 0xffff0000, v25")
    for e in range(4): A("v_add_f32 v%d, v%d, v%d" % (32 + e, 32 + e, 114 + e))
    A("v_cvt_pk_bf16_f32 v24, v32, v33\nv_cvt_pk_bf16_f32 v25, v34, v35")
    A("v_lshlrev_b32 v32, 16, v24\nv_and_b32 v33, 0xffff0000, v24\nv_lshlrev_b32 v34, 16, v25\nv_and_b32 v35, 0xffff0000, v25")
    for e in range(4): A("v_add_f32 v%d, v%d, v%d" % (32 + e, 32 + e, 104 + e))
    A("v_cvt_pk_bf16_f32 v24, v32, v33\nv_cvt_pk_bf16_f32 v25, v34, v35")
    A("s_lshl_b32 s44, s36, 10\ns_lshl_b32 s45, s37, 7\ns_add_u32 s44, s44, s45")
    A("v_lshlrev_b32 v8, 3, v3\nv_add_u32 v8, s44, v8")
    A("s_mov_b64 exec, 0xffff")
    A("global_store_dwordx2 v8, v[24:25], s[28:29]")
    A("s_cmp_lg_u32 s2, 0\ns_cbranch_scc1 L_c_noe")
    A("s_mov_b64 exec, 1")
    A("v_mov_b32 v8, 0\nv_mov_b32 v9, s42")
    A("global_store_dword v8, v9, s[32:33]%s" % SC)
    A("L_c_noe:")
    A("s_mov_b64 exec, -1")
    stamp(3)
    A("L_chain_end:")
    stamp(11)
    stamp_flush()
    A("L_exit:")
    A("s_endpgm")

    hdr = open("cdna_kernels/%s.s.ref" % NAME).read().split("; Override launch")[0]
    out = hdr
    out += "; @launch grid=(256,1,1) block=(768,1,1) lds=%d\n" % LDS_TOTAL
    out += '.amdgcn_target "amdgcn-amd-amdhsa--gfx950"\n.text\n.globl %s\n.p2align 8\n.type %s,@function\n' % (K, K)
    out += A.text()
    out += '.section .rodata,"a"\n.p2align 6\n.amdhsa_kernel %s\n' % K
    out += "  .amdhsa_next_free_vgpr 168\n  .amdhsa_next_free_sgpr 100\n  .amdhsa_accum_offset 168\n"
    out += "  .amdhsa_group_segment_fixed_size 0\n  .amdhsa_kernarg_size 104\n  .amdhsa_user_sgpr_count 2\n  .amdhsa_user_sgpr_kernarg_segment_ptr 1\n  .amdhsa_system_sgpr_workgroup_id_x 1\n.end_amdhsa_kernel\n"
    return out

if __name__ == "__main__":
    import argparse
    ap = argparse.ArgumentParser()
    ap.add_argument("-o", default="cdna_kernels/%s.s" % NAME)
    ap.add_argument("--stamps", action="store_true")
    ap.add_argument("--W", type=int, default=2)
    ap.add_argument("--no-nt", action="store_true")
    a = ap.parse_args()
    open(a.o, "w").write(gen(W=a.W, nt=not a.no_nt, stamps=a.stamps))
    print("wrote", a.o)
```

```python
import sys

NAME = "sequential_preLN__gqa_block_cached__mixer_channel_mlp__decode"

L_OP   = 8192
L_ST   = 131072
L_M    = 147456
L_ZP   = L_M
L_LB   = L_M + 4096
L_FL   = L_M + 4224
L_XH   = L_M + 4288
L_Q    = L_M + 8384
L_MB   = L_M + 9408
L_OB   = L_M + 9536
L_H1   = L_M + 10560
L_B1   = L_M + 10816
LDS_TOTAL = L_M + 10944

W_E     = 0x0
W_FLAG  = 0x1000
W_ML    = 0x2000
W_H     = 0x4000
W_QP    = 0x10000
W_OP    = 0x90000
W_HP    = 0x110000
W_OUT   = 0x150000
W_DBG   = 0x200000

NJ = 56
STREAM_STAMPS = ["start", "Kissued", "Vissued", "q ready", "max done", "exp done", "PVdone", "bar3", "Dprep", "h got", "Dstore", "end"]
CHAIN_STAMPS = ["start", "s1", "s2", "s3", "prespin", "prebar3", "Opub", "gathered", "hpstore", "hstore", "outgath", "end"]
POLL_LIMIT = 20000

class Asm:
    def __init__(self): self.l = []
    def __call__(self, s):
        for x in s.split("\n"):
            x = x.strip()
            if x: self.l.append(("" if x.endswith(":") else "  ") + x)
    def text(self): return "\n".join(self.l) + "\n"

def gen(W=2, nt=True, stamps=False, sleep_q=8, scope=" sc1", exp="", qk_at=8):
    A = Asm()
    NT = " nt" if nt else ""
    SC = scope
    uid = [0]
    def lab(p):
        uid[0] += 1; return "L_%s_%d" % (p, uid[0])
    def stamp(i):
        if stamps: A("s_memrealtime s[%d:%d]" % (64 + 2 * i, 65 + 2 * i))
    def stamp_flush():
        if stamps:
            A("s_waitcnt lgkmcnt(0)")
            A("s_lshl_b32 s44, s2, 4\ns_add_u32 s44, s44, s3\ns_lshl_b32 s44, s44, 7\ns_add_u32 s44, s44, %d" % W_DBG)
            A("s_add_u32 s46, s32, s44\ns_addc_u32 s47, s33, 0")
            A("s_mov_b64 exec, 1\nv_mov_b32 v2, 0")
            for i in range(0, 12, 2):
                A("v_mov_b32 v4, s%d\nv_mov_b32 v5, s%d\nv_mov_b32 v6, s%d\nv_mov_b32 v7, s%d" % (64 + 2 * i, 65 + 2 * i, 66 + 2 * i, 67 + 2 * i))
                A("global_store_dwordx4 v2, v[4:7], s[46:47] offset:%d" % (i * 8))
                A("s_nop 1")
            A("s_mov_b64 exec, -1")
    def bf16r(dst, src):
        A("v_cvt_pk_bf16_f32 v%d, v%d, v%d" % (dst, src, src))
        A("v_and_b32 v%d, 0xffff0000, v%d" % (dst, dst))
    def dpp_red(regs, rors, op="add"):
        for k in rors:
            n = max(0, 2 - (len(regs) - 1))
            if n: A("s_nop %d" % (n - 1))
            for r in regs:
                A("v_%s_f32_dpp v%d, v%d, v%d row_ror:%d row_mask:0xf bank_mask:0xf" % (op, r, r, r, k))
    def red16(regs, op="add"): dpp_red(regs, (8, 4, 2, 1), op)
    def swap_red(regs, tmps, which, op="add"):
        ins = "v_permlane16_swap_b32" if which == 16 else "v_permlane32_swap_b32"
        for r, t in zip(regs, tmps): A("v_mov_b32 v%d, v%d" % (t, r))
        n = max(0, 2 - (len(regs) - 1))
        if n: A("s_nop %d" % (n - 1))
        for r, t in zip(regs, tmps): A("%s v%d, v%d" % (ins, r, t))
        if len(regs) < 2: A("s_nop 0")
        for r, t in zip(regs, tmps): A("v_%s_f32 v%d, v%d, v%d" % (op, r, r, t))
    def poll_begin(cnt="s60"):
        l = lab("poll"); A("s_mov_b32 %s, %d" % (cnt, POLL_LIMIT)); A(l + ":"); return l
    def poll_end(l, sleep, cnt="s60"):
        d = lab("pdone")
        A("s_cbranch_vccz %s" % d)
        A("s_sub_u32 %s, %s, 1" % (cnt, cnt))
        A("s_cbranch_scc1 %s" % d)
        if sleep: A("s_sleep %d" % sleep)
        A("s_branch %s" % l)
        A(d + ":")
    def lds_spin(addr_v, off, val, tmp, sleep=1):
        p = poll_begin("s61")
        A("ds_read_b32 v%d, v%d offset:%d" % (tmp, addr_v, off))
        A("s_waitcnt lgkmcnt(0)")
        A("v_cmp_ne_u32 vcc, %d, v%d" % (val, tmp))
        poll_end(p, sleep, "s61")
    def lds_spin2(addr_v, off1, val1, off2, val2, t1, t2, sleep=1):
        p = poll_begin("s61")
        A("ds_read_b32 v%d, v%d offset:%d\nds_read_b32 v%d, v%d offset:%d" % (t1, addr_v, off1, t2, addr_v, off2))
        A("s_waitcnt lgkmcnt(0)")
        A("v_xor_b32 v%d, %d, v%d\nv_xor_b32 v%d, %d, v%d\nv_or_b32 v%d, v%d, v%d" % (t1, val1, t1, t2, val2, t2, t1, t1, t2))
        A("v_cmp_ne_u32 vcc, 0, v%d" % t1)
        poll_end(p, sleep, "s61")
    def lds_inc(addr_v, one_v, off):
        A("s_mov_b64 exec, 1")
        A("ds_add_u32 v%d, v%d offset:%d" % (addr_v, one_v, off))
        A("s_mov_b64 exec, -1")
    def lds_set(addr_v, one_v, off):
        A("s_mov_b64 exec, 1")
        A("ds_write_b32 v%d, v%d offset:%d" % (addr_v, one_v, off))
        A("s_mov_b64 exec, -1")
    def roles():
        A("s_sub_u32 s56, s37, s34\ns_sub_u32 s56, s56, 1\ns_and_b32 s56, s56, 7")
        A("s_lshl_b32 s57, s36, 3\ns_add_u32 s57, s57, s34")
        A("s_lshl_b32 s41, s57, 1\ns_add_u32 s41, s41, s56")
        A("s_cmp_lt_u32 s56, 2\ns_cselect_b32 s40, 1, 0")
        A("s_lshr_b32 s63, s56, 1\ns_cmp_eq_u32 s63, 1\ns_cselect_b32 s63, 1, 0")
        A("s_cmp_lt_u32 s57, 28\ns_cselect_b32 s40, s40, 0\ns_cselect_b32 s63, s63, 0")
    def tags():
        A("s_waitcnt lgkmcnt(0)")
        A("s_not_b32 s43, s62\ns_add_u32 s42, s62, 1")
    def hop(loads, tmp, mbase=88):
        top = lab("hop"); done = lab("hopdone")
        for i in range(len(loads)): A("s_mov_b64 s[%d:%d], -1" % (mbase + 2 * i, mbase + 2 * i + 1))
        A("s_mov_b32 s60, %d" % POLL_LIMIT)
        A(top + ":")
        for i, (ins, _) in enumerate(loads):
            sk = lab("sk")
            A("s_mov_b64 exec, s[%d:%d]" % (mbase + 2 * i, mbase + 2 * i + 1))
            A("s_cbranch_execz %s" % sk)
            A(ins)
            A(sk + ":")
        A("s_waitcnt vmcnt(0)")
        for i, (_, regs) in enumerate(loads):
            A("s_mov_b64 exec, s[%d:%d]" % (mbase + 2 * i, mbase + 2 * i + 1))
            if len(regs) == 1:
                A("v_cmp_eq_u32 s[%d:%d], -1, v%d" % (mbase + 2 * i, mbase + 2 * i + 1, regs[0]))
            else:
                A("v_max_u32 v%d, v%d, v%d" % (tmp, regs[0], regs[1]))
                A("v_cmp_eq_u32 s[%d:%d], -1, v%d" % (mbase + 2 * i, mbase + 2 * i + 1, tmp))
        A("s_or_b64 vcc, s[%d:%d], s[%d:%d]" % (mbase, mbase + 1, mbase + 2, mbase + 3))
        for i in range(2, len(loads)): A("s_or_b64 vcc, vcc, s[%d:%d]" % (mbase + 2 * i, mbase + 2 * i + 1))
        A("s_cbranch_scc0 %s" % done)
        A("s_sub_u32 s60, s60, 1")
        A("s_cbranch_scc0 %s" % top)
        A(done + ":")
        A("s_mov_b64 exec, -1")

    K = NAME + "_kernel"
    A("%s:" % K)
    stamp(0)
    A("s_cmp_ge_u32 s2, 256")
    A("s_cbranch_scc1 L_exit")
    A("s_load_dwordx16 s[8:23], s[0:1], 0")
    A("s_load_dwordx8 s[24:31], s[0:1], 64")
    A("s_load_dwordx2 s[32:33], s[0:1], 96")
    A("v_lshrrev_b32 v1, 6, v0")
    A("v_and_b32 v0, 63, v0")
    A("v_readfirstlane_b32 s3, v1")
    A("s_and_b32 s34, s2, 7")
    A("s_lshr_b32 s35, s2, 3")
    A("s_lshr_b32 s36, s35, 3")
    A("s_and_b32 s37, s35, 7")
    A("v_lshrrev_b32 v2, 4, v0")
    A("v_and_b32 v3, 15, v0")
    A("s_cmp_lt_u32 s3, 4")
    A("s_cbranch_scc1 L_chain")

    A("s_sub_u32 s44, s3, 4")
    A("s_lshl_b32 s45, s36, 3\ns_add_u32 s45, s45, s34\ns_lshl_b32 s45, s45, 20")
    A("s_lshl_b32 s46, s37, 17\ns_add_u32 s45, s45, s46")
    A("s_lshl_b32 s47, s44, 14\ns_add_u32 s45, s45, s47")
    for u in range(4):
        A("v_add_u32 v8, %d, v2" % (4 * u))
        A("v_xor_b32 v8, v8, v3")
        A("v_lshlrev_b32 v8, 4, v8")
        A("v_lshl_add_u32 v%d, v2, 8, v8" % (4 + u))
    A("v_lshlrev_b32 v8, 4, v3")
    A("v_lshl_add_u32 v9, v2, 10, v8")
    A("s_mov_b32 m0, s47")
    A("s_mov_b32 s52, s47")
    A("v_mov_b32 v93, %d\nv_mov_b32 v94, 1" % L_FL)
    A("s_waitcnt lgkmcnt(0)")
    A("s_add_u32 s48, s10, s45\ns_addc_u32 s49, s11, 0")
    A("s_add_u32 s50, s12, s45\ns_addc_u32 s51, s13, 0")
    A("s_barrier")
    for i in range(16):
        T, u = i >> 2, i & 3
        if u == 0 and T > 0:
            A("s_add_u32 s48, s48, 4096\ns_addc_u32 s49, s49, 0\ns_add_u32 s52, s52, 4096\ns_mov_b32 m0, s52\ns_nop 0")
        A("global_load_lds_dwordx4 v%d, s[48:49] offset:%d%s" % (4 + u, u * 1024, NT))
        if W and i >= W:
            A("s_waitcnt vmcnt(%d)" % W)
    lds_inc(93, 94, 4)
    stamp(1)
    lds_spin2(93, 4, 8, 16, 1, 8, 10)
    VB = 96
    def vload(idx):
        T, r = idx >> 2, idx & 3
        if r == 0 and T > 0:
            A("s_add_u32 s50, s50, 4096\ns_addc_u32 s51, s51, 0")
        A("global_load_dwordx4 v[%d:%d], v9, s[50:51] offset:%d%s" % (VB + 4 * idx, VB + 4 * idx + 3, r * 256, NT))
    for idx in range(16): vload(idx)
    lds_inc(93, 94, 8)
    stamp(2)
    roles()
    for t in range(4):
        A("v_add_u32 v8, %d, v2" % (4 * t))
        A("v_xor_b32 v8, v8, v3")
        A("v_lshlrev_b32 v8, 4, v8")
        A("v_lshl_add_u32 v8, v3, 8, v8")
        A("v_add_u32 v%d, s47, v8" % (10 + t))
    A("v_lshrrev_b32 v8, 2, v3")
    A("v_lshlrev_b32 v14, 8, v8")
    A("v_lshl_add_u32 v14, v2, 4, v14")
    A("v_add_u32 v14, %d, v14" % L_Q)
    A("v_lshlrev_b32 v15, 5, v8")
    A("v_add_u32 v15, %d, v15" % L_MB)
    A("v_lshlrev_b32 v88, 5, v8")
    A("s_lshl_b32 s55, s44, 2\ns_add_u32 s55, s55, %d" % L_LB)
    A("v_add_u32 v88, s55, v88")
    A("v_and_b32 v8, 1, v3\nv_lshlrev_b32 v8, 4, v8\nv_mov_b32 v91, 0xffff\nv_lshlrev_b32 v91, v8, v91")
    A("v_and_b32 v8, 3, v3")
    A("v_cmp_gt_u32 vcc, 2, v8")
    A("v_lshlrev_b32 v92, 4, v0\ns_add_u32 s55, s47, %d\nv_add_u32 v92, s55, v92" % L_OP)
    A("v_cndmask_b32 v89, 0, v91, vcc")
    A("v_cndmask_b32 v90, v91, 0, vcc")
    A("s_mov_b32 s53, 0x3db504f3")
    A("s_mov_b32 s54, 0x3fb8aa3b")
    lds_spin(93, 0, 1, 94)
    stamp(3)
    for t in range(4):
        A("ds_read_b128 v[%d:%d], v14 offset:%d" % (16 + 4 * t, 19 + 4 * t, t * 64))
    A("s_waitcnt vmcnt(16)")
    def kfr(T, buf):
        for t in range(4):
            A("ds_read_b128 v[%d:%d], v%d offset:%d" % (buf + 4 * t, buf + 4 * t + 3, 10 + t, T * 4096))
    def qk(T, buf):
        for t in range(4):
            c = "0" if t == 0 else "v[%d:%d]" % (64 + 4 * T, 67 + 4 * T)
            A("v_mfma_f32_16x16x32_bf16 v[%d:%d], v[%d:%d], v[%d:%d], %s" % (64 + 4 * T, 67 + 4 * T, buf + 4 * t, buf + 4 * t + 3, 16 + 4 * t, 19 + 4 * t, c))
    kfr(0, 32); kfr(1, 48)
    A("s_waitcnt lgkmcnt(4)"); qk(0, 32)
    kfr(2, 32)
    A("s_waitcnt lgkmcnt(4)"); qk(1, 48)
    kfr(3, 48)
    A("s_waitcnt lgkmcnt(4)"); qk(2, 32)
    A("s_waitcnt lgkmcnt(0)"); qk(3, 48)
    def round_pair(a, b):
        A("v_cvt_pk_bf16_f32 v8, v%d, v%d" % (a, b))
        A("v_lshlrev_b32 v%d, 16, v8" % a)
        A("v_and_b32 v%d, 0xffff0000, v8" % b)
        A("v_mul_f32 v%d, s53, v%d" % (a, a))
        A("v_mul_f32 v%d, s53, v%d" % (b, b))
        A("v_cvt_pk_bf16_f32 v8, v%d, v%d" % (a, b))
        A("v_lshlrev_b32 v%d, 16, v8" % a)
        A("v_and_b32 v%d, 0xffff0000, v8" % b)
    for T in range(4):
        round_pair(64 + 4 * T, 65 + 4 * T); round_pair(66 + 4 * T, 67 + 4 * T)
    A("v_max3_f32 v8, v64, v65, v66")
    for i in range(67, 79, 2):
        A("v_max3_f32 v8, v8, v%d, v%d" % (i, i + 1))
    A("v_max_f32 v8, v8, v79")
    swap_red([8], [93], 16, "max"); swap_red([8], [93], 32, "max")
    A("s_lshl_b32 s55, s44, 2")
    A("v_add_u32 v93, s55, v15")
    A("s_mov_b32 exec_lo, 0x1111\ns_mov_b32 exec_hi, 0")
    A("ds_write_b32 v93, v8")
    A("s_mov_b64 exec, -1")
    A("s_waitcnt lgkmcnt(0)")
    stamp(4)
    A("s_barrier")
    A("ds_read_b128 v[32:35], v15")
    A("ds_read_b128 v[36:39], v15 offset:16")
    A("s_waitcnt lgkmcnt(0)")
    A("v_max3_f32 v8, v32, v33, v34\nv_max3_f32 v8, v8, v35, v36\nv_max3_f32 v8, v8, v37, v38\nv_max_f32 v8, v8, v39")
    A("v_mul_f32 v8, s54, v8")
    for i in range(16):
        A("v_fma_f32 v%d, v%d, s54, -v8" % (64 + i, 64 + i))
    for i in range(16):
        A("v_exp_f32 v%d, v%d" % (64 + i, 64 + i))
    A("s_nop 0")
    A("v_add_f32 v8, v64, v65\nv_add_f32 v94, v66, v67")
    for i in range(4, 16, 2): A("v_add_f32 v8, v8, v%d\nv_add_f32 v94, v94, v%d" % (64 + i, 65 + i))
    A("v_add_f32 v8, v8, v94")
    for i in range(16):
        A("v_cvt_pk_bf16_f32 v%d, v%d, v%d" % (64 + i, 64 + i, 64 + i))
    swap_red([8], [93], 16, "add"); swap_red([8], [93], 32, "add")
    A("s_mov_b32 exec_lo, 0x1111\ns_mov_b32 exec_hi, 0")
    A("ds_write_b32 v88, v8")
    A("s_mov_b64 exec, -1")
    stamp(5)
    for idx in range(16):
        ta = 32 + 2 * (idx & 3)
        A("v_and_b32 v%d, v%d, v89" % (ta, 64 + idx))
        A("v_and_b32 v%d, v%d, v90" % (ta + 1, 64 + idx))
        A("s_waitcnt vmcnt(%d)" % (15 - idx))
        c0 = "0" if idx == 0 else "v[80:83]"
        c1 = "0" if idx == 0 else "v[84:87]"
        A("s_nop 0")
        A("v_mfma_f32_16x16x16_bf16 v[80:83], v[%d:%d], v[%d:%d], %s" % (VB + 4 * idx, VB + 4 * idx + 1, ta, ta + 1, c0))
        A("v_mfma_f32_16x16x16_bf16 v[84:87], v[%d:%d], v[%d:%d], %s" % (VB + 4 * idx + 2, VB + 4 * idx + 3, ta, ta + 1, c1))
    stamp(6)
    A("s_nop 7")
    A("ds_write_b128 v92, v[80:83]")
    A("ds_write_b128 v92, v[84:87] offset:1024")
    A("v_mov_b32 v93, %d\nv_mov_b32 v94, 1" % L_FL)
    lds_inc(93, 94, 24)
    stamp(7)
    A("s_cmp_eq_u32 s40, 0")
    A("s_cbranch_scc1 L_stream_end")
    A("v_mov_b32 v90, %d" % L_FL)
    A("v_lshrrev_b32 v8, 2, v3\nv_lshl_add_u32 v8, v2, 3, v8")
    A("v_and_b32 v93, 3, v3\nv_lshlrev_b32 v93, 3, v93")
    A("v_lshl_add_u32 v4, v8, 6, v93\nv_add_u32 v4, s47, v4")
    A("v_lshl_add_u32 v5, v8, 7, v93\nv_add_u32 v5, s47, v5")
    A("v_and_b32 v6, 3, v3\nv_lshlrev_b32 v6, 10, v6\nv_lshl_add_u32 v6, v2, 4, v6")
    A("s_lshl_b32 s58, s44, 7\ns_add_u32 s58, s58, %d" % L_XH)
    A("v_add_u32 v6, s58, v6")
    A("v_lshlrev_b32 v7, 2, v0\ns_lshl_b32 s58, s44, 8\ns_add_u32 s58, s58, %d\nv_add_u32 v7, s58, v7" % L_ZP)
    A("v_lshlrev_b32 v11, 2, v0\ns_lshl_b32 s58, s44, 11\ns_add_u32 s58, s58, %d\nv_add_u32 v11, s58, v11" % L_ZP)
    A("v_and_b32 v10, 3, v3\nv_lshlrev_b32 v10, 6, v10\nv_lshl_add_u32 v10, v2, 4, v10\nv_add_u32 v10, %d, v10" % L_H1)
    A("v_lshrrev_b32 v15, 2, v3")
    A("v_cmp_eq_u32 s[56:57], 1, v15\nv_cmp_eq_u32 s[58:59], 2, v15\nv_cmp_eq_u32 s[48:49], 3, v15")
    A("v_and_b32 v12, 3, v3\nv_mul_u32_u24 v12, %d, v12\nv_lshl_add_u32 v12, v2, 4, v12" % (NJ * 256))
    A("s_mul_i32 s45, s44, %d\ns_lshl_b32 s46, s41, 8\ns_add_u32 s45, s45, s46\ns_add_u32 s45, s45, %d" % (4 * NJ * 256, W_OUT))
    A("v_add_u32 v12, s45, v12")
    A("v_lshlrev_b32 v13, 4, v0\ns_lshl_b32 s45, s44, 11\ns_add_u32 s45, s45, %d\nv_add_u32 v13, s45, v13" % W_H)
    A("v_lshlrev_b32 v14, 3, v0\ns_lshl_b32 s45, s44, 10\ns_add_u32 s45, s45, %d\nv_add_u32 v14, s45, v14" % L_XH)
    A("v_lshl_add_u32 v15, v2, 2, v15")
    A("s_and_b32 s45, s44, 1\ns_lshl_b32 s45, s45, 4\nv_add_u32 v15, s45, v15")
    A("v_lshlrev_b32 v9, 2, v15\nv_add_u32 v9, %d, v9" % L_B1)
    A("ds_read_b32 v88, v9")
    A("v_and_b32 v9, 3, v3\nv_lshlrev_b32 v9, 6, v9\nv_lshl_add_u32 v9, v15, 1, v9\nv_add_u32 v9, %d, v9" % L_H1)
    A("v_mov_b32 v89, 0x3d372713")
    lds_spin(90, 28, 1, 91, 1)
    for ft in range(2):
        for ks in range(2):
            fr = 32 + 8 * ft + 4 * ks
            A("ds_read_b64_tr_b16 v[%d:%d], v4 offset:%d" % (fr, fr + 1, ks * 2048 + ft * 32))
            A("ds_read_b64_tr_b16 v[%d:%d], v4 offset:%d" % (fr + 2, fr + 3, ks * 2048 + ft * 32 + 256))
    A("s_waitcnt lgkmcnt(0)")
    for t in range(4):
        A("ds_read_b64_tr_b16 v[%d:%d], v5 offset:%d" % (48 + 4 * t, 49 + 4 * t, 4096 + t * 32))
        A("ds_read_b64_tr_b16 v[%d:%d], v5 offset:%d" % (50 + 4 * t, 51 + 4 * t, 4096 + t * 32 + 512))
    A("s_waitcnt lgkmcnt(0)")
    stamp(8)
    A("s_cmp_ge_u32 s44, 4")
    A("s_cbranch_scc1 L_d1")
    hop([("global_load_dwordx4 v[16:19], v13, s[32:33]%s" % SC, [19]), ("global_load_dwordx4 v[20:23], v13, s[32:33] offset:1024%s" % SC, [23])], 24)
    stamp(9)
    A("v_add_f32 v24, v16, v17\nv_add_f32 v25, v18, v19\nv_add_f32 v26, v20, v21\nv_add_f32 v27, v22, v23")
    A("v_add_f32 v24, v24, v25\nv_add_f32 v26, v26, v27\nv_add_f32 v24, v24, v26")
    red16([24]); swap_red([24], [25], 16); swap_red([24], [25], 32)
    A("v_mul_f32 v24, 0x3b000000, v24")
    for i in range(8): A("v_sub_f32 v%d, v%d, v24" % (16 + i, 16 + i))
    A("v_mul_f32 v25, v16, v16\nv_mul_f32 v26, v17, v17")
    for i in range(2, 8, 2): A("v_fma_f32 v25, v%d, v%d, v25\nv_fma_f32 v26, v%d, v%d, v26" % (16 + i, 16 + i, 17 + i, 17 + i))
    A("v_add_f32 v25, v25, v26")
    red16([25]); swap_red([25], [26], 16); swap_red([25], [26], 32)
    A("v_mul_f32 v25, 0x3b000000, v25")
    A("v_add_f32 v26, 0x3727c5ac, v25")
    A("v_rcp_f32 v27, v26\nv_rsq_f32 v26, v26\ns_nop 0")
    A("v_mul_f32 v27, v25, v27")
    A("v_add_f32 v27, 0x3727c5ac, v27")
    A("v_rsq_f32 v27, v27\ns_nop 0")
    A("v_mul_f32 v26, v26, v27")
    for i in range(8): A("v_mul_f32 v%d, v%d, v26" % (16 + i, 16 + i))
    for i in range(4): A("v_cvt_pk_bf16_f32 v%d, v%d, v%d" % (72 + i, 16 + 2 * i, 17 + 2 * i))
    if "dst" in exp: stamp(1)
    A("ds_write_b64 v14, v[72:73]")
    A("ds_write_b64 v14, v[74:75] offset:512")
    A("s_waitcnt lgkmcnt(0)")
    A("L_d1:")
    A("s_barrier")
    if "dst" in exp: stamp(2)
    for ks in range(2):
        A("ds_read_b128 v[%d:%d], v6 offset:%d" % (16 + 4 * ks, 19 + 4 * ks, ks * 64))
    for ks in range(2):
        A("s_waitcnt lgkmcnt(%d)" % (1 - ks))
        for ft in range(2):
            c = "0" if ks == 0 else "v[%d:%d]" % (80 + 4 * ft, 83 + 4 * ft)
            A("v_mfma_f32_16x16x32_bf16 v[%d:%d], v[%d:%d], v[%d:%d], %s" % (80 + 4 * ft, 83 + 4 * ft, 32 + 8 * ft + 4 * ks, 35 + 8 * ft + 4 * ks, 16 + 4 * ks, 19 + 4 * ks, c))
    A("s_nop 6")
    A("v_cndmask_b32 v80, v80, v81, s[56:57]\nv_cndmask_b32 v80, v80, v82, s[58:59]\nv_cndmask_b32 v80, v80, v83, s[48:49]")
    A("v_cndmask_b32 v84, v84, v85, s[56:57]\nv_cndmask_b32 v84, v84, v86, s[58:59]\nv_cndmask_b32 v84, v84, v87, s[48:49]")
    if "dst" in exp: stamp(3)
    A("ds_write_b32 v7, v80")
    A("ds_write_b32 v7, v84 offset:2048")
    A("s_waitcnt lgkmcnt(0)")
    A("s_barrier")
    if "dst" in exp: stamp(4)
    A("s_cmp_ge_u32 s44, 2")
    A("s_cbranch_scc1 L_d3")
    for w_ in range(8): A("ds_read_b32 v%d, v11 offset:%d" % (16 + w_, w_ * 256))
    A("s_waitcnt lgkmcnt(0)")
    A("v_add_f32 v16, v16, v17\nv_add_f32 v18, v18, v19\nv_add_f32 v20, v20, v21\nv_add_f32 v22, v22, v23")
    A("v_add_f32 v16, v16, v18\nv_add_f32 v20, v20, v22\nv_add_f32 v18, v16, v20")
    bf16r(18, 18)
    A("v_add_f32 v18, v18, v88")
    bf16r(18, 18)
    A("v_mul_f32 v19, v18, v18")
    A("v_fma_f32 v19, v19, v89, 1.0")
    A("v_mul_f32 v19, v19, v18")
    A("v_mul_f32 v19, 0xc0135761, v19")
    A("v_exp_f32 v19, v19\ns_nop 0")
    A("v_add_f32 v19, 1.0, v19")
    A("v_rcp_f32 v19, v19\ns_nop 0")
    A("v_mul_f32 v18, v18, v19")
    A("v_cvt_pk_bf16_f32 v18, v18, v18")
    if "dst" in exp: stamp(5)
    A("ds_write_b16 v9, v18")
    A("s_waitcnt lgkmcnt(0)")
    A("L_d3:")
    A("s_barrier")
    if "dst" in exp: stamp(6)
    A("ds_read_b128 v[16:19], v10")
    A("s_waitcnt lgkmcnt(0)")
    for t in range(4):
        A("v_mfma_f32_16x16x32_bf16 v[%d:%d], v[%d:%d], v[16:19], 0" % (64 + 4 * t, 67 + 4 * t, 48 + 4 * t, 51 + 4 * t))
    A("s_mov_b32 exec_lo, 0x000f000f\ns_mov_b32 exec_hi, 0x000f000f")
    A("s_nop 3")
    for t in range(4):
        if t: A("s_nop 1")
        A("global_store_dwordx4 v12, v[%d:%d], s[32:33] offset:%d%s" % (64 + 4 * t, 67 + 4 * t, t * 64, SC))
    A("s_mov_b64 exec, -1")
    stamp(10)
    A("L_stream_end:")
    stamp(11)
    stamp_flush()
    A("s_endpgm")

    A("L_chain:")
    A("s_cmp_lg_u32 s3, 2\ns_cbranch_scc1 L_c_nz")
    A("v_mov_b32 v8, 0\nv_mov_b32 v9, 0\nv_mov_b32 v10, 0\nv_mov_b32 v11, 0")
    A("v_mov_b32 v7, %d" % L_FL)
    for i in range(4): A("ds_write_b128 v7, v[8:11] offset:%d" % (16 * i))
    A("L_c_nz:")
    A("s_lshl_b32 s38, s34, 2\ns_add_u32 s38, s38, s36")
    A("s_cmp_eq_u32 s37, s34\ns_cselect_b32 s39, 1, 0")
    roles()
    A("s_lshl_b32 s44, s34, 10\ns_lshl_b32 s45, s36, 6\ns_add_u32 s44, s44, s45\ns_and_b32 s45, s37, 1\ns_lshl_b32 s45, s45, 5\ns_add_u32 s44, s44, s45")
    A("s_lshr_b32 s45, s37, 1\ns_lshl_b32 s45, s45, 3\ns_add_u32 s44, s44, s45\ns_add_u32 s44, s44, %d" % W_ML)
    A("v_and_b32 v102, 3, v0\nv_lshlrev_b32 v102, 8, v102\nv_add_u32 v102, s44, v102")
    A("s_lshr_b32 s45, s35, 1\ns_and_b32 s45, s45, 3")
    A("s_lshl_b32 s44, s34, 16\ns_lshl_b32 s46, s45, 12\ns_add_u32 s44, s44, s46\ns_lshl_b32 s46, s36, 10\ns_add_u32 s44, s44, s46")
    A("s_and_b32 s46, s35, 1\ns_lshl_b32 s46, s46, 9\ns_add_u32 s44, s44, s46\ns_add_u32 s44, s44, %d" % W_QP)
    A("v_and_b32 v103, 3, v3\nv_lshlrev_b32 v103, 14, v103\nv_lshl_add_u32 v103, v2, 5, v103\nv_add_u32 v103, s44, v103")
    A("v_mov_b32 v100, %d\nv_mov_b32 v101, 1\nv_mov_b32 v126, 0" % L_FL)
    A("s_waitcnt lgkmcnt(0)")
    A("s_load_dword s62, s[32:33], 0")
    A("s_cmp_eq_u32 s3, 0\ns_cbranch_scc1 L_c0")
    A("s_barrier")
    A("s_cmp_eq_u32 s3, 1\ns_cbranch_scc1 L_c1")
    A("s_cmp_eq_u32 s3, 2\ns_cbranch_scc1 L_c2")
    A("s_branch L_c3")
    A("L_c0:")
    A("v_lshlrev_b32 v6, 10, v2\nv_lshl_add_u32 v7, v3, 6, v6")
    for i in range(4):
        A("global_load_dwordx4 v[%d:%d], v7, s[8:9] offset:%d" % (16 + 4 * i, 19 + 4 * i, i * 16))
    A("s_lshl_b32 s46, s45, 8")
    A("v_lshl_add_u32 v7, v3, 4, v6\nv_add_u32 v7, s46, v7")
    A("global_load_dwordx4 v[12:15], v7, s[8:9]")
    A("s_lshl_b32 s44, s45, 20\ns_lshl_b32 s46, s34, 10\ns_add_u32 s44, s44, s46\ns_lshl_b32 s46, s36, 8\ns_add_u32 s44, s44, s46")
    A("s_and_b32 s46, s35, 1\ns_lshl_b32 s46, s46, 7\ns_add_u32 s44, s44, s46")
    A("s_add_u32 s46, s14, s44\ns_addc_u32 s47, s15, 0")
    A("v_lshrrev_b32 v7, 3, v0\nv_lshlrev_b32 v7, 13, v7\nv_and_b32 v8, 7, v0\nv_lshl_add_u32 v7, v8, 4, v7")
    A("s_mov_b32 s48, %d" % L_ST)
    for i in range(16):
        A("s_mov_b32 m0, s48\ns_add_u32 s48, s48, 1024")
        A("global_load_lds_dwordx4 v7, s[46:47]")
        A("s_add_u32 s46, s46, 0x10000\ns_addc_u32 s47, s47, 0")
    A("s_barrier")
    stamp(1)
    A("s_waitcnt vmcnt(16)")
    tags()
    for i in range(16):
        A("v_lshlrev_b32 v%d, 16, v%d\nv_and_b32 v%d, 0xffff0000, v%d" % (32 + 2 * i, 16 + i, 33 + 2 * i, 16 + i))
    A("v_add_f32 v64, v32, v33\nv_add_f32 v65, v34, v35\nv_add_f32 v66, v36, v37\nv_add_f32 v67, v38, v39")
    for i in range(8, 32, 4):
        A("v_add_f32 v64, v64, v%d\nv_add_f32 v65, v65, v%d\nv_add_f32 v66, v66, v%d\nv_add_f32 v67, v67, v%d" % (32 + i, 33 + i, 34 + i, 35 + i))
    A("v_add_f32 v64, v64, v65\nv_add_f32 v66, v66, v67\nv_add_f32 v64, v64, v66")
    red16([64])
    A("v_mul_f32 v64, 0x3b000000, v64")
    A("v_mov_b32 v65, 0\nv_mov_b32 v66, 0")
    for i in range(0, 32, 2):
        A("v_sub_f32 v67, v%d, v64\nv_sub_f32 v68, v%d, v64\nv_fma_f32 v65, v67, v67, v65\nv_fma_f32 v66, v68, v68, v66" % (32 + i, 33 + i))
    A("v_add_f32 v65, v65, v66")
    red16([65])
    A("v_mul_f32 v65, 0x3b000000, v65")
    bf16r(64, 64); bf16r(65, 65)
    A("v_add_f32 v65, 0x3727c5ac, v65"); bf16r(65, 65)
    A("v_sqrt_f32 v65, v65\ns_nop 0"); bf16r(65, 65)
    A("v_rcp_f32 v65, v65")
    for i in range(4):
        a, b = 32 + 2 * i, 33 + 2 * i
        A("v_lshlrev_b32 v%d, 16, v%d\nv_and_b32 v%d, 0xffff0000, v%d" % (a, 12 + i, b, 12 + i))
        A("v_sub_f32 v%d, v%d, v64\nv_sub_f32 v%d, v%d, v64" % (a, a, b, b))
        A("v_cvt_pk_bf16_f32 v66, v%d, v%d" % (a, b))
        A("v_lshlrev_b32 v%d, 16, v66\nv_and_b32 v%d, 0xffff0000, v66" % (a, b))
        A("v_mul_f32 v%d, v%d, v65\nv_mul_f32 v%d, v%d, v65" % (a, a, b, b))
        A("v_cvt_pk_bf16_f32 v%d, v%d, v%d" % (16 + i, a, b))
    A("v_lshlrev_b32 v6, 8, v2\nv_lshl_add_u32 v6, v3, 4, v6\nv_add_u32 v6, %d, v6" % L_XH)
    A("ds_write_b128 v6, v[16:19]")
    A("v_lshrrev_b32 v8, 2, v3\nv_lshl_add_u32 v8, v2, 3, v8\nv_and_b32 v9, 3, v3\nv_lshlrev_b32 v12, 3, v9")
    A("v_lshl_add_u32 v12, v8, 7, v12\nv_add_u32 v12, %d, v12" % L_ST)
    A("v_lshlrev_b32 v13, 8, v9\nv_lshl_add_u32 v13, v2, 4, v13\nv_add_u32 v13, %d, v13" % L_XH)
    A("s_waitcnt vmcnt(0) lgkmcnt(0)")
    stamp(2)
    for ks in range(4):
        A("ds_read_b128 v[%d:%d], v13 offset:%d" % (16 + 4 * ks, 19 + 4 * ks, ks * 64))
    for ks in range(4):
        for t in range(4):
            A("ds_read_b64_tr_b16 v[%d:%d], v12 offset:%d" % (32 + 4 * t, 33 + 4 * t, ks * 4096 + t * 32))
            A("ds_read_b64_tr_b16 v[%d:%d], v12 offset:%d" % (34 + 4 * t, 35 + 4 * t, ks * 4096 + t * 32 + 512))
        for t in range(4):
            A("s_waitcnt lgkmcnt(%d)" % (6 - 2 * t))
            c = "0" if ks == 0 else "v[%d:%d]" % (64 + 4 * t, 67 + 4 * t)
            A("v_mfma_f32_16x16x32_bf16 v[%d:%d], v[%d:%d], v[%d:%d], %s" % (64 + 4 * t, 67 + 4 * t, 32 + 4 * t, 35 + 4 * t, 16 + 4 * ks, 19 + 4 * ks, c))
    A("v_mov_b32 v34, s42\nv_mov_b32 v35, s43\nv_mov_b32 v38, s42\nv_mov_b32 v39, s43")
    A("s_mov_b32 exec_lo, 0x000f000f\ns_mov_b32 exec_hi, 0x000f000f")
    A("s_nop 4")
    for t in range(4):
        A("v_mov_b32 v32, v%d\nv_mov_b32 v33, v%d\nv_mov_b32 v36, v%d\nv_mov_b32 v37, v%d" % (64 + 4 * t, 65 + 4 * t, 66 + 4 * t, 67 + 4 * t))
        A("global_store_dwordx4 v103, v[32:35], s[32:33] offset:%d%s" % (t * 128, SC))
        A("global_store_dwordx4 v103, v[36:39], s[32:33] offset:%d%s" % (t * 128 + 16, SC))
        A("s_nop 1")
    A("s_mov_b64 exec, -1")
    lds_set(100, 101, 12)
    stamp(3)
    A("s_branch L_c_pre")
    A("L_c1:")
    A("s_lshl_b32 s44, s34, 16\ns_lshl_b32 s45, s36, 14\ns_add_u32 s44, s44, s45\ns_add_u32 s44, s44, %d" % W_QP)
    A("v_lshlrev_b32 v6, 4, v0\nv_add_u32 v6, s44, v6\nv_add_u32 v7, 4096, v6\nv_add_u32 v8, 4096, v7\nv_add_u32 v9, 4096, v8")
    tags()
    p = poll_begin("s61")
    A("ds_read_b32 v20, v100 offset:4")
    A("s_waitcnt lgkmcnt(0)")
    A("v_cmp_gt_u32 vcc, %d, v20" % qk_at)
    poll_end(p, 4, "s61")
    stamp(2)
    p = poll_begin()
    for i in range(16):
        A("global_load_dwordx4 v[%d:%d], v%d, s[32:33] offset:%d%s" % (32 + 4 * i, 35 + 4 * i, 6 + (i >> 2), (i & 3) * 1024, SC))
    lds_set(100, 101, 16)
    A("s_waitcnt vmcnt(0)")
    for i in range(16):
        A("v_xor_b32 v%d, s42, v%d\nv_xor_b32 v%d, s43, v%d" % (34 + 4 * i, 34 + 4 * i, 35 + 4 * i, 35 + 4 * i))
    A("v_or3_b32 v20, v34, v35, v38")
    A("v_or_b32 v20, v20, v39")
    for i in range(2, 16):
        A("v_or3_b32 v20, v20, v%d, v%d" % (34 + 4 * i, 35 + 4 * i))
    A("v_cmp_ne_u32 vcc, 0, v20")
    poll_end(p, sleep_q)
    for j in range(4):
        a = 32 + 4 * j
        A("v_pk_add_f32 v[%d:%d], v[%d:%d], v[%d:%d]" % (a, a + 1, a, a + 1, a + 16, a + 17))
        A("v_pk_add_f32 v[%d:%d], v[%d:%d], v[%d:%d]" % (a + 32, a + 33, a + 32, a + 33, a + 48, a + 49))
        A("v_pk_add_f32 v[%d:%d], v[%d:%d], v[%d:%d]" % (a, a + 1, a, a + 1, a + 32, a + 33))
    for j in range(4): A("v_cvt_pk_bf16_f32 v%d, v%d, v%d" % (16 + j, 32 + 4 * j, 33 + 4 * j))
    A("v_lshlrev_b32 v7, 2, v0\nv_add_u32 v7, %d, v7" % L_Q)
    for j in range(4): A("ds_write_b32 v7, v%d offset:%d" % (16 + j, j * 256))
    lds_set(100, 101, 0)
    stamp(3)
    A("s_branch L_c_pre")
    A("L_c2:")
    A("v_mov_b32 v12, -1\nv_mov_b32 v13, -1\nv_mov_b32 v14, -1\nv_mov_b32 v15, -1")
    A("v_lshrrev_b32 v16, 5, v0\nv_lshlrev_b32 v16, 14, v16\nv_and_b32 v17, 31, v0\nv_lshl_add_u32 v16, v17, 4, v16")
    A("s_lshl_b32 s44, s34, 16\ns_lshl_b32 s45, s36, 12\ns_add_u32 s44, s44, s45\ns_lshl_b32 s45, s37, 9\ns_add_u32 s44, s44, s45\ns_add_u32 s44, s44, %d" % W_OP)
    A("v_add_u32 v16, s44, v16")
    A("global_store_dwordx4 v16, v[12:15], s[32:33]%s" % SC)
    A("v_add_u32 v17, 0x8000, v16")
    A("global_store_dwordx4 v17, v[12:15], s[32:33]%s" % SC)
    A("global_store_dwordx2 v102, v[12:13], s[32:33]%s" % SC)
    A("v_lshlrev_b32 v18, 13, v2\nv_lshl_add_u32 v18, v3, 4, v18")
    A("s_lshl_b32 s45, s38, 8\ns_add_u32 s45, s45, %d" % W_HP)
    A("s_cmp_lg_u32 s40, 0\ns_cbranch_scc1 L_c2h")
    A("s_lshl_b32 s44, s37, 15\ns_add_u32 s44, s44, s45")
    A("v_add_u32 v19, s44, v18")
    A("global_store_dwordx4 v19, v[12:15], s[32:33]%s" % SC)
    A("s_cmp_eq_u32 s63, 0\ns_cbranch_scc1 L_c2h")
    A("s_sub_u32 s44, s37, 2\ns_and_b32 s44, s44, 7\ns_lshl_b32 s44, s44, 15\ns_add_u32 s44, s44, s45")
    A("v_add_u32 v19, s44, v18")
    A("global_store_dwordx4 v19, v[12:15], s[32:33]%s" % SC)
    A("L_c2h:")
    A("s_cmp_eq_u32 s39, 0\ns_cbranch_scc1 L_c2a")
    A("s_lshl_b32 s44, s36, 11\ns_lshl_b32 s45, s37, 8\ns_add_u32 s44, s44, s45\ns_add_u32 s44, s44, %d" % W_H)
    A("v_lshlrev_b32 v19, 4, v3\nv_add_u32 v19, s44, v19")
    A("global_store_dwordx4 v19, v[12:15], s[32:33]%s" % SC)
    A("L_c2a:")
    A("s_cmp_eq_u32 s40, 0\ns_cbranch_scc1 L_c2b")
    A("v_mul_u32_u24 v19, %d, v2\nv_lshl_add_u32 v19, v3, 4, v19" % (NJ * 256))
    A("s_lshl_b32 s44, s41, 8\ns_add_u32 s44, s44, %d" % W_OUT)
    A("v_add_u32 v19, s44, v19")
    for i in range(8):
        A("global_store_dwordx4 v19, v[12:15], s[32:33]%s" % SC)
        A("v_add_u32 v19, %d, v19" % (4 * NJ * 256))
    A("L_c2b:")
    A("s_waitcnt vmcnt(0)")
    tags()
    A("s_getreg_b32 s44, hwreg(HW_REG_XCC_ID)\ns_and_b32 s44, s44, 7\ns_xor_b32 s44, s44, s43")
    A("v_mov_b32 v20, s42\nv_mov_b32 v21, s44")
    A("s_lshl_b32 s44, s34, 5\ns_add_u32 s44, s44, s35\ns_lshl_b32 s44, s44, 3\ns_add_u32 s44, s44, %d\nv_mov_b32 v22, s44" % W_FLAG)
    A("s_mov_b64 exec, 1")
    A("global_store_dwordx2 v22, v[20:21], s[32:33]%s" % SC)
    A("s_mov_b64 exec, -1")
    stamp(3)
    A("s_branch L_c_join")
    A("L_c3:")
    A("s_cmp_eq_u32 s40, 0\ns_cbranch_scc1 L_c3a")
    A("s_lshl_b32 s44, s41, 6")
    A("v_and_b32 v6, 31, v0\nv_lshlrev_b32 v7, 1, v6\nv_add_u32 v7, s44, v7")
    A("global_load_ushort v8, v7, s[22:23]")
    A("v_lshlrev_b32 v6, 2, v6\nv_add_u32 v6, %d, v6" % L_B1)
    A("s_waitcnt vmcnt(0)")
    A("v_lshlrev_b32 v8, 16, v8")
    A("ds_write_b32 v6, v8")
    A("L_c3a:")
    tags()
    lds_spin(100, 16, 1, 20, 4)
    A("v_lshlrev_b32 v8, 4, v0\nv_add_u32 v8, %d, v8" % W_FLAG)
    p = poll_begin()
    A("global_load_dwordx4 v[16:19], v8, s[32:33]%s" % SC)
    A("global_load_dwordx4 v[20:23], v8, s[32:33] offset:1024%s" % SC)
    A("s_waitcnt vmcnt(0)")
    for a in (16, 18, 20, 22):
        A("v_xor_b32 v%d, s42, v%d\nv_xor_b32 v%d, s43, v%d" % (a, a, a + 1, a + 1))
    A("v_or3_b32 v24, v16, v18, v20\nv_or_b32 v24, v24, v22")
    A("v_or3_b32 v25, v17, v19, v21\nv_or_b32 v25, v25, v23\nv_lshrrev_b32 v25, 3, v25")
    A("v_or_b32 v24, v24, v25")
    A("v_cmp_ne_u32 vcc, 0, v24")
    poll_end(p, 8)
    A("s_getreg_b32 s44, hwreg(HW_REG_XCC_ID)\ns_and_b32 s44, s44, 7")
    A("s_cmp_lt_u32 s34, 4\ns_cbranch_scc1 L_c3lo")
    A("v_mov_b32 v17, v21\nv_mov_b32 v19, v23")
    A("L_c3lo:")
    A("v_xor_b32 v17, s44, v17\nv_xor_b32 v19, s44, v19\nv_or_b32 v17, v17, v19")
    A("v_xor_b32 v24, s34, v2\nv_and_b32 v24, 3, v24")
    A("v_cmp_eq_u32 vcc, 0, v24\ns_nop 1\nv_cndmask_b32 v17, 0, v17, vcc")
    A("v_cmp_ne_u32 vcc, 0, v17")
    A("s_cmp_eq_u64 vcc, 0\ns_cbranch_scc0 L_c3nf")
    if "nofast" not in exp: lds_set(100, 101, 32)
    A("L_c3nf:")
    stamp(3)
    A("s_branch L_c_join")
    A("L_c_pre:")
    A("v_and_b32 v9, 7, v0\nv_lshlrev_b32 v9, 3, v9")
    A("s_lshl_b32 s44, s36, 10\ns_lshl_b32 s45, s37, 7\ns_lshl_b32 s46, s3, 6\ns_add_u32 s45, s45, s46\ns_add_u32 s44, s44, s45")
    A("v_add_u32 v126, s44, v9")
    A("v_add_u32 v11, s45, v9")
    A("global_load_dwordx2 v[120:121], v126, s[8:9]")
    A("global_load_dwordx2 v[122:123], v11, s[26:27]")
    A("global_load_dwordx2 v[124:125], v126, s[28:29]")
    A("L_c_join:")
    A("s_lshl_b32 s44, s38, 14\ns_lshl_b32 s45, s3, 12\ns_add_u32 s44, s44, s45\ns_add_u32 s44, s44, %d" % W_OP)
    A("v_lshlrev_b32 v6, 4, v0\nv_add_u32 v6, s44, v6")
    A("s_lshl_b32 s44, s38, 8\ns_lshl_b32 s45, s3, 6\ns_add_u32 s44, s44, s45\ns_add_u32 s44, s44, %d" % W_ML)
    A("v_lshrrev_b32 v7, 5, v0\nv_lshlrev_b32 v7, 5, v7\nv_add_u32 v7, s44, v7")
    A("v_and_b32 v8, 31, v0\nv_lshlrev_b32 v8, 3, v8\ns_lshl_b32 s45, s3, 8\ns_add_u32 s45, s45, %d\nv_add_u32 v8, s45, v8" % L_OB)
    A("v_and_b32 v9, 3, v3\nv_lshlrev_b32 v9, 8, v9\nv_lshl_add_u32 v9, v2, 4, v9\nv_add_u32 v9, %d, v9" % L_OB)
    A("v_and_b32 v10, 3, v3\nv_lshlrev_b32 v10, 13, v10\nv_lshl_add_u32 v10, v2, 4, v10")
    A("s_lshl_b32 s45, s38, 8\ns_lshl_b32 s46, s3, 6\ns_add_u32 s45, s45, s46\ns_add_u32 s45, s45, %d" % W_HP)
    A("s_sub_u32 s55, s37, 2\ns_and_b32 s55, s55, 7")
    A("s_lshl_b32 s44, s55, 15\ns_add_u32 s44, s44, s45\nv_add_u32 v99, s44, v10")
    A("s_lshl_b32 s44, s37, 15\ns_add_u32 s44, s44, s45\nv_add_u32 v10, s44, v10")
    A("v_lshrrev_b32 v11, 2, v3\nv_lshlrev_b32 v11, 14, v11\nv_lshl_add_u32 v11, v2, 7, v11\nv_and_b32 v13, 3, v3\nv_lshl_add_u32 v11, v13, 4, v11")
    A("s_lshl_b32 s44, s34, 16\ns_lshl_b32 s45, s36, 12\ns_add_u32 s44, s44, s45\ns_lshl_b32 s45, s37, 9\ns_add_u32 s44, s44, s45")
    A("s_lshl_b32 s45, s3, 6\ns_add_u32 s44, s44, s45\ns_add_u32 s44, s44, %d" % W_OP)
    A("v_add_u32 v11, s44, v11")
    A("v_lshlrev_b32 v13, 4, v0\ns_lshl_b32 s45, s3, 10\ns_add_u32 s45, s45, %d\nv_add_u32 v13, s45, v13" % L_OP)
    A("v_lshrrev_b32 v14, 2, v3\nv_lshl_add_u32 v14, v2, 3, v14\nv_and_b32 v15, 3, v3\nv_lshlrev_b32 v12, 3, v15")
    A("v_lshl_add_u32 v12, v14, 7, v12\ns_lshl_b32 s44, s3, 5\nv_add_u32 v98, s44, v12\nv_add_u32 v12, %d, v98" % L_ST)
    A("s_mov_b32 s54, 0x3fb8aa3b")
    A("v_bfe_u32 v16, v0, 3, 2\nv_lshlrev_b32 v16, 3, v16\nv_lshrrev_b32 v17, 5, v0\nv_add_u32 v16, v16, v17\nv_lshlrev_b32 v16, 10, v16")
    A("v_and_b32 v17, 7, v0\nv_lshl_add_u32 v97, v17, 4, v16")
    A("s_lshl_b32 s44, s38, 17\ns_lshl_b32 s45, s3, 15\ns_add_u32 s44, s44, s45")
    A("s_lshl_b32 s45, s37, 7\ns_add_u32 s45, s45, s44\ns_add_u32 s46, s16, s45\ns_addc_u32 s47, s17, 0")
    A("s_lshl_b32 s45, s55, 7\ns_add_u32 s45, s45, s44\ns_add_u32 s50, s16, s45\ns_addc_u32 s51, s17, 0")
    A("s_lshl_b32 s48, s3, 12\ns_add_u32 s48, s48, %d" % L_ST)
    stamp(4)
    A("s_cmp_lg_u32 s40, 0\ns_cbranch_scc1 L_c_nowo")
    lds_spin2(100, 8, 8, 12, 1, 20, 21, 2)
    for i in range(4):
        A("s_mov_b32 m0, s48\ns_add_u32 s48, s48, 1024")
        A("global_load_lds_dwordx4 v97, s[46:47]")
        A("s_add_u32 s46, s46, 2048\ns_addc_u32 s47, s47, 0")
    A("L_c_nowo:")
    A("s_barrier")
    A("s_cmp_eq_u32 s63, 0\ns_cbranch_scc1 L_c_nowo2")
    A("s_lshr_b32 s48, s3, 1\ns_lshl_b32 s48, s48, 14\ns_and_b32 s45, s3, 1\ns_lshl_b32 s45, s45, 12\ns_add_u32 s48, s48, s45")
    for i in range(4):
        A("s_mov_b32 m0, s48\ns_add_u32 s48, s48, 1024")
        A("global_load_lds_dwordx4 v97, s[50:51]")
        A("s_add_u32 s50, s50, 2048\ns_addc_u32 s51, s51, 0")
    A("L_c_nowo2:")
    A("s_cmp_eq_u32 s40, 0\ns_cbranch_scc1 L_c_nodw")
    A("s_cmp_lg_u32 s3, 3\ns_cbranch_scc1 L_c_nodw")
    A("s_lshl_b32 s44, s41, 6\ns_add_u32 s46, s20, s44\ns_addc_u32 s47, s21, 0")
    A("s_lshl_b32 s44, s41, 15\ns_add_u32 s50, s24, s44\ns_addc_u32 s51, s25, 0")
    A("v_lshrrev_b32 v4, 2, v0\nv_mul_u32_u24 v4, 3584, v4\nv_and_b32 v5, 3, v0\nv_lshl_add_u32 v4, v5, 4, v4")
    A("v_lshrrev_b32 v5, 3, v0\nv_lshlrev_b32 v5, 10, v5\nv_and_b32 v6, 7, v0\nv_lshl_add_u32 v5, v6, 4, v5")
    A("s_mov_b32 s48, 0\ns_mov_b32 s49, 8")
    A("L_c_dwl:")
    A("s_waitcnt vmcnt(40)")
    for n in range(4):
        A("s_mov_b32 m0, s48\ns_add_u32 s48, s48, 1024")
        A("global_load_lds_dwordx4 v4, s[46:47]")
        A("s_add_u32 s46, s46, %d\ns_addc_u32 s47, s47, 0" % (16 * 3584))
    for n in range(4):
        A("s_mov_b32 m0, s48\ns_add_u32 s48, s48, 1024")
        A("global_load_lds_dwordx4 v5, s[50:51] offset:0")
        A("s_add_u32 s50, s50, 8192\ns_addc_u32 s51, s51, 0")
    A("s_add_u32 s48, s48, 8192")
    A("s_sub_u32 s50, s50, %d\ns_subb_u32 s51, s51, 0" % (4 * 8192 - 128))
    A("s_sub_u32 s49, s49, 1\ns_cmp_lg_u32 s49, 0\ns_cbranch_scc1 L_c_dwl")
    A("s_waitcnt vmcnt(0)")
    lds_set(100, 101, 28)
    stamp(6)
    A("s_branch L_chain_end")
    A("L_c_nodw:")
    A("v_and_b32 v14, 3, v0\nv_lshlrev_b32 v15, 5, v14\nv_add_u32 v15, %d, v15\nv_add_u32 v14, %d, v15" % (L_MB, L_LB - L_MB))
    A("ds_read_b128 v[16:19], v15\nds_read_b128 v[20:23], v15 offset:16\nds_read_b32 v26, v100 offset:32")
    A("s_waitcnt lgkmcnt(0)")
    A("v_max3_f32 v24, v16, v17, v18\nv_max3_f32 v24, v24, v19, v20\nv_max3_f32 v24, v24, v21, v22\nv_max_f32 v24, v24, v23")
    A("v_readfirstlane_b32 s55, v26")
    A("v_add_u32 v15, 0x10000, v13")
    stamp(5)
    A("s_cmp_eq_u32 s3, 3\ns_cbranch_scc1 L_c_b3")
    lds_spin(100, 24, 8, 26, 0)
    A("s_cmp_eq_u32 s3, 2\ns_cbranch_scc1 L_c_pml")
    for w_ in range(8):
        A("ds_read_b128 v[%d:%d], v%d offset:%d" % (56 + 4 * w_, 59 + 4 * w_, 13 if w_ < 4 else 15, (w_ & 3) * 16384))
    A("s_waitcnt lgkmcnt(4)")
    A("v_pk_add_f32 v[56:57], v[56:57], v[60:61]\nv_pk_add_f32 v[58:59], v[58:59], v[62:63]")
    A("v_pk_add_f32 v[64:65], v[64:65], v[68:69]\nv_pk_add_f32 v[66:67], v[66:67], v[70:71]")
    A("v_pk_add_f32 v[56:57], v[56:57], v[64:65]\nv_pk_add_f32 v[58:59], v[58:59], v[66:67]")
    A("s_waitcnt lgkmcnt(0)")
    A("v_pk_add_f32 v[72:73], v[72:73], v[76:77]\nv_pk_add_f32 v[74:75], v[74:75], v[78:79]")
    A("v_pk_add_f32 v[80:81], v[80:81], v[84:85]\nv_pk_add_f32 v[82:83], v[82:83], v[86:87]")
    A("v_pk_add_f32 v[56:57], v[56:57], v[72:73]\nv_pk_add_f32 v[58:59], v[58:59], v[74:75]")
    A("v_pk_add_f32 v[56:57], v[56:57], v[80:81]\nv_pk_add_f32 v[58:59], v[58:59], v[82:83]")
    A("s_cmp_eq_u32 s55, 0\ns_cbranch_scc1 L_c_oslow")
    A("global_store_dwordx4 v11, v[56:59], s[32:33]")
    A("s_branch L_c_b")
    A("L_c_oslow:")
    A("global_store_dwordx4 v11, v[56:59], s[32:33]%s" % SC)
    A("s_branch L_c_b")
    A("L_c_pml:")
    A("ds_read_b128 v[16:19], v14\nds_read_b128 v[20:23], v14 offset:16")
    A("s_waitcnt lgkmcnt(0)")
    A("v_add_f32 v16, v16, v17\nv_add_f32 v18, v18, v19\nv_add_f32 v20, v20, v21\nv_add_f32 v22, v22, v23")
    A("v_add_f32 v16, v16, v18\nv_add_f32 v20, v20, v22\nv_add_f32 v25, v16, v20")
    A("s_mov_b64 exec, 15")
    A("s_cmp_eq_u32 s55, 0\ns_cbranch_scc1 L_c_mslow")
    A("global_store_dwordx2 v102, v[24:25], s[32:33]")
    A("s_branch L_c_mdone")
    A("L_c_mslow:")
    A("global_store_dwordx2 v102, v[24:25], s[32:33]%s" % SC)
    A("L_c_mdone:")
    A("s_mov_b64 exec, -1")
    A("L_c_b:")
    A("s_cmp_lg_u32 s40, 0\ns_cbranch_scc1 L_c_dexit")
    A("s_waitcnt vmcnt(1)")
    A("s_branch L_c_b2")
    A("L_c_dexit:")
    stamp(6)
    A("s_branch L_chain_end")
    A("L_c_b3:")
    A("s_waitcnt vmcnt(0)")
    A("L_c_b2:")
    lds_inc(100, 101, 20)
    stamp(6)
    lds_spin(100, 20, 4, 20, 0)
    for ks in range(4):
        A("ds_read_b64_tr_b16 v[%d:%d], v12 offset:%d" % (104 + 4 * ks, 105 + 4 * ks, ks * 4096))
        A("ds_read_b64_tr_b16 v[%d:%d], v12 offset:%d" % (106 + 4 * ks, 107 + 4 * ks, ks * 4096 + 512))
    A("s_cmp_eq_u32 s63, 0\ns_cbranch_scc1 L_c_nof2")
    A("s_waitcnt lgkmcnt(0)")
    for ks in range(4):
        o_ = (ks >> 1) * 16384 + (ks & 1) * 4096
        A("ds_read_b64_tr_b16 v[%d:%d], v98 offset:%d" % (72 + 4 * ks, 73 + 4 * ks, o_))
        A("ds_read_b64_tr_b16 v[%d:%d], v98 offset:%d" % (74 + 4 * ks, 75 + 4 * ks, o_ + 512))
    A("L_c_nof2:")
    hop([("global_load_dwordx4 v[%d:%d], v6, s[32:33] offset:%d%s" % (32 + 4 * i, 35 + 4 * i, i * 1024, SC), [35 + 4 * i]) for i in range(4)] +
        [("global_load_dwordx4 v[48:51], v7, s[32:33]%s" % SC, [49, 51]), ("global_load_dwordx4 v[52:55], v7, s[32:33] offset:16%s" % SC, [53, 55])], 20)
    stamp(7)
    A("v_max3_f32 v20, v48, v50, v52\nv_max_f32 v20, v20, v54")
    swap_red([20], [21], 32, "max")
    A("v_mul_f32 v20, s54, v20")
    for i in range(4): A("v_fma_f32 v%d, v%d, s54, -v20" % (48 + 2 * i, 48 + 2 * i))
    for i in range(4): A("v_exp_f32 v%d, v%d" % (48 + 2 * i, 48 + 2 * i))
    A("s_nop 0")
    for e in range(4):
        A("v_mul_f32 v%d, v48, v%d" % (20 + e, 32 + e))
    A("v_mul_f32 v24, v48, v49")
    for i in range(1, 4):
        for e in range(4):
            A("v_fma_f32 v%d, v%d, v%d, v%d" % (20 + e, 48 + 2 * i, 32 + 4 * i + e, 20 + e))
        A("v_fma_f32 v24, v%d, v%d, v24" % (48 + 2 * i, 49 + 2 * i))
    swap_red([20, 21, 22, 23, 24], [25, 26, 27, 28, 29], 32)
    A("v_rcp_f32 v24, v24\ns_nop 0")
    for e in range(4): A("v_mul_f32 v%d, v%d, v24" % (20 + e, 20 + e))
    A("v_cvt_pk_bf16_f32 v20, v20, v21\nv_cvt_pk_bf16_f32 v21, v22, v23")
    A("s_mov_b32 exec_hi, 0")
    A("ds_write_b64 v8, v[20:21]")
    A("s_mov_b64 exec, -1")
    A("s_waitcnt lgkmcnt(0)")
    A("s_barrier")
    for ks in range(4):
        A("ds_read_b128 v[%d:%d], v9 offset:%d" % (32 + 4 * ks, 35 + 4 * ks, ks * 64))
    for ks in range(4):
        A("s_waitcnt lgkmcnt(%d)" % (3 - ks))
        c = "0" if ks == 0 else "v[20:23]"
        A("v_mfma_f32_16x16x32_bf16 v[20:23], v[%d:%d], v[%d:%d], %s" % (104 + 4 * ks, 107 + 4 * ks, 32 + 4 * ks, 35 + 4 * ks, c))
    A("s_cmp_eq_u32 s63, 0\ns_cbranch_scc1 L_c_one")
    for ks in range(4):
        c = "0" if ks == 0 else "v[24:27]"
        A("v_mfma_f32_16x16x32_bf16 v[24:27], v[%d:%d], v[%d:%d], %s" % (72 + 4 * ks, 75 + 4 * ks, 32 + 4 * ks, 35 + 4 * ks, c))
    A("s_mov_b32 exec_lo, 0x000f000f\ns_mov_b32 exec_hi, 0x000f000f")
    A("global_store_dwordx4 v10, v[20:23], s[32:33]%s" % SC)
    A("s_nop 5")
    A("global_store_dwordx4 v99, v[24:27], s[32:33]%s" % SC)
    A("s_branch L_c_bdone")
    A("L_c_one:")
    A("s_mov_b32 exec_lo, 0x000f000f\ns_mov_b32 exec_hi, 0x000f000f")
    A("s_nop 3")
    A("global_store_dwordx4 v10, v[20:23], s[32:33]%s" % SC)
    A("L_c_bdone:")
    A("s_mov_b64 exec, -1")
    stamp(8)
    A("s_cmp_ge_u32 s3, 2\ns_cbranch_scc1 L_chain_end")
    A("s_cmp_eq_u32 s39, 0\ns_cbranch_scc1 L_chain_end")
    A("s_lshl_b32 s44, s37, 15\ns_lshl_b32 s45, s36, 13\ns_add_u32 s44, s44, s45\ns_lshl_b32 s45, s3, 7\ns_add_u32 s44, s44, s45\ns_add_u32 s44, s44, %d" % W_HP)
    A("v_lshrrev_b32 v6, 3, v0\nv_lshlrev_b32 v6, 8, v6\nv_and_b32 v7, 7, v0\nv_lshl_add_u32 v6, v7, 4, v6")
    A("v_add_u32 v9, s44, v6\nv_add_u32 v10, 4096, v9")
    A("s_lshl_b32 s44, s36, 11\ns_lshl_b32 s45, s37, 8\ns_add_u32 s44, s44, s45\ns_lshl_b32 s45, s3, 7\ns_add_u32 s44, s44, s45\ns_add_u32 s44, s44, %d" % W_H)
    A("v_lshl_add_u32 v8, v7, 4, s44")
    A("s_lshl_b32 s44, s37, 2\ns_add_u32 s44, s44, s36\ns_mul_i32 s44, s44, %d\ns_lshl_b32 s45, s3, 7\ns_add_u32 s44, s44, s45\ns_add_u32 s44, s44, %d" % (NJ * 256, W_OUT))
    A("v_add_u32 v11, s44, v6\nv_add_u32 v12, 4096, v11\nv_add_u32 v13, 4096, v12\nv_add_u32 v14, 4096, v13")
    A("v_lshlrev_b32 v110, 16, v120\nv_and_b32 v111, 0xffff0000, v120\nv_lshlrev_b32 v112, 16, v121\nv_and_b32 v113, 0xffff0000, v121")
    A("v_lshlrev_b32 v114, 16, v122\nv_and_b32 v115, 0xffff0000, v122\nv_lshlrev_b32 v116, 16, v123\nv_and_b32 v117, 0xffff0000, v123")
    hop([("global_load_dwordx4 v[%d:%d], v%d, s[32:33] offset:%d%s" % (32 + 4 * i, 35 + 4 * i, 9 if i < 2 else 10, (i & 1) * 2048, SC), [35 + 4 * i]) for i in range(4)], 20)
    stamp(2)
    for i in range(0, 8, 2):
        A("v_pk_add_f32 v[%d:%d], v[%d:%d], v[%d:%d]" % (32 + i, 33 + i, 32 + i, 33 + i, 40 + i, 41 + i))
    for i in range(0, 4, 2):
        A("v_pk_add_f32 v[%d:%d], v[%d:%d], v[%d:%d]" % (32 + i, 33 + i, 32 + i, 33 + i, 36 + i, 37 + i))
    A("s_nop 0")
    dpp_red([32, 33, 34, 35], (8,))
    swap_red([32, 33, 34, 35], [24, 25, 26, 27], 16)
    swap_red([32, 33, 34, 35], [24, 25, 26, 27], 32)
    A("v_cvt_pk_bf16_f32 v24, v32, v33\nv_cvt_pk_bf16_f32 v25, v34, v35")
    A("v_lshlrev_b32 v32, 16, v24\nv_and_b32 v33, 0xffff0000, v24\nv_lshlrev_b32 v34, 16, v25\nv_and_b32 v35, 0xffff0000, v25")
    for e in range(4): A("v_add_f32 v%d, v%d, v%d" % (32 + e, 32 + e, 110 + e))
    A("v_cvt_pk_bf16_f32 v24, v32, v33\nv_cvt_pk_bf16_f32 v25, v34, v35")
    A("v_lshlrev_b32 v104, 16, v24\nv_and_b32 v105, 0xffff0000, v24\nv_lshlrev_b32 v106, 16, v25\nv_and_b32 v107, 0xffff0000, v25")
    A("s_mov_b64 exec, 0xff")
    A("global_store_dwordx4 v8, v[104:107], s[32:33]%s" % SC)
    A("s_mov_b64 exec, -1")
    stamp(9)
    hop([("global_load_dwordx4 v[%d:%d], v%d, s[32:33] offset:%d%s" % (32 + 4 * i, 35 + 4 * i, 11 + (i >> 1), (i & 1) * 2048, SC), [35 + 4 * i]) for i in range(7)], 20)
    stamp(10)
    for i in range(0, 12, 2):
        A("v_pk_add_f32 v[%d:%d], v[%d:%d], v[%d:%d]" % (32 + i, 33 + i, 32 + i, 33 + i, 48 + i, 49 + i))
    for i in range(0, 8, 2):
        A("v_pk_add_f32 v[%d:%d], v[%d:%d], v[%d:%d]" % (32 + i, 33 + i, 32 + i, 33 + i, 40 + i, 41 + i))
    for i in range(0, 4, 2):
        A("v_pk_add_f32 v[%d:%d], v[%d:%d], v[%d:%d]" % (32 + i, 33 + i, 32 + i, 33 + i, 36 + i, 37 + i))
    A("s_nop 0")
    dpp_red([32, 33, 34, 35], (8,))
    swap_red([32, 33, 34, 35], [24, 25, 26, 27], 16)
    swap_red([32, 33, 34, 35], [24, 25, 26, 27], 32)
    A("v_cvt_pk_bf16_f32 v24, v32, v33\nv_cvt_pk_bf16_f32 v25, v34, v35")
    A("v_lshlrev_b32 v32, 16, v24\nv_and_b32 v33, 0xffff0000, v24\nv_lshlrev_b32 v34, 16, v25\nv_and_b32 v35, 0xffff0000, v25")
    for e in range(4): A("v_add_f32 v%d, v%d, v%d" % (32 + e, 32 + e, 114 + e))
    A("v_cvt_pk_bf16_f32 v24, v32, v33\nv_cvt_pk_bf16_f32 v25, v34, v35")
    A("v_lshlrev_b32 v32, 16, v24\nv_and_b32 v33, 0xffff0000, v24\nv_lshlrev_b32 v34, 16, v25\nv_and_b32 v35, 0xffff0000, v25")
    for e in range(4): A("v_add_f32 v%d, v%d, v%d" % (32 + e, 32 + e, 104 + e))
    A("v_cvt_pk_bf16_f32 v24, v32, v33\nv_cvt_pk_bf16_f32 v25, v34, v35")
    A("s_mov_b64 exec, 0xff")
    A("global_store_dwordx2 v126, v[24:25], s[28:29]")
    A("s_or_b32 s44, s2, s3\ns_cmp_lg_u32 s44, 0\ns_cbranch_scc1 L_c_noe")
    A("s_mov_b64 exec, 1")
    A("v_mov_b32 v8, 0\nv_mov_b32 v9, s42")
    A("global_store_dword v8, v9, s[32:33]%s" % SC)
    A("L_c_noe:")
    A("s_mov_b64 exec, -1")
    A("L_chain_end:")
    stamp(11)
    stamp_flush()
    A("L_exit:")
    A("s_endpgm")

    hdr = open("cdna_kernels/%s.s.ref" % NAME).read().split("; Override launch")[0]
    out = hdr
    out += "; @launch grid=(256,1,1) block=(768,1,1) lds=%d\n" % LDS_TOTAL
    out += '.amdgcn_target "amdgcn-amd-amdhsa--gfx950"\n.text\n.globl %s\n.p2align 8\n.type %s,@function\n' % (K, K)
    out += A.text()
    out += '.section .rodata,"a"\n.p2align 6\n.amdhsa_kernel %s\n' % K
    out += "  .amdhsa_next_free_vgpr 168\n  .amdhsa_next_free_sgpr 102\n  .amdhsa_accum_offset 168\n"
    out += "  .amdhsa_group_segment_fixed_size 0\n  .amdhsa_kernarg_size 104\n  .amdhsa_user_sgpr_count 2\n  .amdhsa_user_sgpr_kernarg_segment_ptr 1\n  .amdhsa_system_sgpr_workgroup_id_x 1\n.end_amdhsa_kernel\n"
    return out

if __name__ == "__main__":
    import argparse
    ap = argparse.ArgumentParser()
    ap.add_argument("-o", default="cdna_kernels/%s.s" % NAME)
    ap.add_argument("--stamps", action="store_true")
    ap.add_argument("--W", type=int, default=2)
    ap.add_argument("--no-nt", action="store_true")
    ap.add_argument("--exp", default="")
    ap.add_argument("--qk_at", type=int, default=8)
    a = ap.parse_args()
    open(a.o, "w").write(gen(W=a.W, nt=not a.no_nt, stamps=a.stamps, exp=a.exp, qk_at=a.qk_at))
    print("wrote", a.o)
```

```python
import sys

NAME = "sequential_preLN__gqa_block_cached__mixer_channel_mlp__decode"

L_OP   = 8192
L_ST   = 131072
L_M    = 147456
L_ZP   = L_M
L_LB   = L_M + 4096
L_FL   = L_M + 4224
L_XH   = L_M + 4288
L_Q    = L_M + 8384
L_MB   = L_M + 9408
L_OB   = L_M + 9536
L_H1   = L_M + 10560
L_B1   = L_M + 10816
L_Z    = L_M + 10944
LDS_TOTAL = L_M + 11008

W_E     = 0x0
W_FLAG  = 0x1000
W_ML    = 0x2000
W_H     = 0x1C0000
W_QP    = 0x10000
W_OP    = 0x90000
W_HP    = 0x110000
W_OUT   = 0x150000
W_DBG   = 0x200000

NJ = 56
STREAM_STAMPS = ["start", "Kissued", "V1issued", "q ready", "max done", "V2issued", "PVdone", "bar3", "Dprep", "h got", "Dstore", "end"]
CHAIN_STAMPS = ["start", "s1", "s2", "s3", "prespin", "prebar3", "Opub", "gathered", "hpstore", "hstore", "outgath", "end"]
POLL_LIMIT = 20000

class Asm:
    def __init__(self): self.l = []
    def __call__(self, s):
        for x in s.split("\n"):
            x = x.strip()
            if x: self.l.append(("" if x.endswith(":") else "  ") + x)
    def text(self): return "\n".join(self.l) + "\n"

def gen(W=2, nt=True, stamps=False, sleep_q=8, scope=" sc1", exp="", qk_at=8, vpre=0, ends=False, sE=0, sD=0, nv1=10, dw_late=8):
    A = Asm()
    PIPE = "pipe" in exp
    NT = " nt" if nt else ""
    SC = scope
    uid = [0]
    def lab(p):
        uid[0] += 1; return "L_%s_%d" % (p, uid[0])
    def stamp(i):
        if stamps and (not ends or i in (0, 11)): A("s_memrealtime s[%d:%d]" % (64 + 2 * i, 65 + 2 * i))
    def stamp_flush():
        if stamps:
            A("s_waitcnt lgkmcnt(0)")
            A("s_lshl_b32 s44, s2, 4\ns_add_u32 s44, s44, s3\ns_lshl_b32 s44, s44, 7\ns_add_u32 s44, s44, %d" % W_DBG)
            A("s_add_u32 s46, s32, s44\ns_addc_u32 s47, s33, 0")
            A("s_mov_b64 exec, 1\nv_mov_b32 v2, 0")
            for i in range(0, 12, 2):
                A("v_mov_b32 v4, s%d\nv_mov_b32 v5, s%d\nv_mov_b32 v6, s%d\nv_mov_b32 v7, s%d" % (64 + 2 * i, 65 + 2 * i, 66 + 2 * i, 67 + 2 * i))
                A("global_store_dwordx4 v2, v[4:7], s[46:47] offset:%d" % (i * 8))
                A("s_nop 1")
            A("s_mov_b64 exec, -1")
    def bf16r(dst, src):
        A("v_cvt_pk_bf16_f32 v%d, v%d, v%d" % (dst, src, src))
        A("v_and_b32 v%d, 0xffff0000, v%d" % (dst, dst))
    def dpp_red(regs, rors, op="add"):
        for k in rors:
            n = max(0, 2 - (len(regs) - 1))
            if n: A("s_nop %d" % (n - 1))
            for r in regs:
                A("v_%s_f32_dpp v%d, v%d, v%d row_ror:%d row_mask:0xf bank_mask:0xf" % (op, r, r, r, k))
    def red16(regs, op="add"): dpp_red(regs, (8, 4, 2, 1), op)
    def swap_red(regs, tmps, which, op="add"):
        ins = "v_permlane16_swap_b32" if which == 16 else "v_permlane32_swap_b32"
        for r, t in zip(regs, tmps): A("v_mov_b32 v%d, v%d" % (t, r))
        n = max(0, 2 - (len(regs) - 1))
        if n: A("s_nop %d" % (n - 1))
        for r, t in zip(regs, tmps): A("%s v%d, v%d" % (ins, r, t))
        if len(regs) < 2: A("s_nop 0")
        for r, t in zip(regs, tmps): A("v_%s_f32 v%d, v%d, v%d" % (op, r, r, t))
    def poll_begin(cnt="s60"):
        l = lab("poll"); A("s_mov_b32 %s, %d" % (cnt, POLL_LIMIT)); A(l + ":"); return l
    def poll_end(l, sleep, cnt="s60"):
        d = lab("pdone")
        A("s_cbranch_vccz %s" % d)
        A("s_sub_u32 %s, %s, 1" % (cnt, cnt))
        A("s_cbranch_scc1 %s" % d)
        if sleep: A("s_sleep %d" % sleep)
        A("s_branch %s" % l)
        A(d + ":")
    def lds_spin(addr_v, off, val, tmp, sleep=1):
        p = poll_begin("s61")
        A("ds_read_b32 v%d, v%d offset:%d" % (tmp, addr_v, off))
        A("s_waitcnt lgkmcnt(0)")
        A("v_cmp_ne_u32 vcc, %d, v%d" % (val, tmp))
        poll_end(p, sleep, "s61")
    def lds_spin2(addr_v, off1, val1, off2, val2, t1, t2, sleep=1):
        p = poll_begin("s61")
        A("ds_read_b32 v%d, v%d offset:%d\nds_read_b32 v%d, v%d offset:%d" % (t1, addr_v, off1, t2, addr_v, off2))
        A("s_waitcnt lgkmcnt(0)")
        A("v_xor_b32 v%d, %d, v%d\nv_xor_b32 v%d, %d, v%d\nv_or_b32 v%d, v%d, v%d" % (t1, val1, t1, t2, val2, t2, t1, t1, t2))
        A("v_cmp_ne_u32 vcc, 0, v%d" % t1)
        poll_end(p, sleep, "s61")
    def lds_inc(addr_v, one_v, off):
        A("s_mov_b64 exec, 1")
        A("ds_add_u32 v%d, v%d offset:%d" % (addr_v, one_v, off))
        A("s_mov_b64 exec, -1")
    def lds_set(addr_v, one_v, off):
        A("s_mov_b64 exec, 1")
        A("ds_write_b32 v%d, v%d offset:%d" % (addr_v, one_v, off))
        A("s_mov_b64 exec, -1")
    def roles():
        A("s_sub_u32 s56, s37, s34\ns_sub_u32 s56, s56, 1\ns_and_b32 s56, s56, 7")
        A("s_lshl_b32 s57, s36, 3\ns_add_u32 s57, s57, s34")
        A("s_lshl_b32 s41, s57, 1\ns_add_u32 s41, s41, s56")
        A("s_cmp_lt_u32 s56, 2\ns_cselect_b32 s40, 1, 0")
        A("s_lshr_b32 s63, s56, 1\ns_cmp_eq_u32 s63, 1\ns_cselect_b32 s63, 1, 0")
        A("s_cmp_ge_u32 s56, 6\ns_cselect_b32 s39, 1, 0")
        A("s_lshl_b32 s6, s34, 1\ns_and_b32 s7, s56, 1\ns_add_u32 s6, s6, s7")
        A("s_cmp_lt_u32 s57, 28\ns_cselect_b32 s40, s40, 0\ns_cselect_b32 s63, s63, 0")
    def tags():
        A("s_waitcnt lgkmcnt(0)")
        A("s_not_b32 s43, s62\ns_add_u32 s42, s62, 1")
    def hop(loads, tmp, mbase=88, rslot=None, tslot=None, init=None, pipe=True):
        top = lab("hop"); done = lab("hopdone")
        n = len(loads)
        for i in range(n):
            if init and init[i] is not None:
                A("s_mov_b32 s%d, 0x%x\ns_mov_b32 s%d, 0x%x" % (mbase + 2 * i, init[i][0] & 0xffffffff, mbase + 2 * i + 1, init[i][1] & 0xffffffff))
            else:
                A("s_mov_b64 s[%d:%d], -1" % (mbase + 2 * i, mbase + 2 * i + 1))
        A("s_mov_b32 s60, %d" % POLL_LIMIT)
        if tslot is not None and "rounds" in exp: stamp(tslot)
        def issue():
            for i, (ins, _) in enumerate(loads):
                A("s_mov_b64 exec, s[%d:%d]" % (mbase + 2 * i, mbase + 2 * i + 1))
                if pipe:
                    A("s_cbranch_execnz .+8" if False else "s_cmp_eq_u64 s[%d:%d], 0\ns_cselect_b64 exec, 1, exec" % (mbase + 2 * i, mbase + 2 * i + 1))
                    A(ins)
                else:
                    sk = lab("sk")
                    A("s_cbranch_execz %s" % sk)
                    A(ins)
                    A(sk + ":")
        if pipe:
            issue()
            A("s_mov_b64 exec, -1")
            A("s_sleep 1")
        A(top + ":")
        issue()
        A("s_waitcnt vmcnt(%d)" % (n if pipe else 0))
        for i, (_, regs) in enumerate(loads):
            A("s_mov_b64 exec, s[%d:%d]" % (mbase + 2 * i, mbase + 2 * i + 1))
            if len(regs) == 1:
                A("v_cmp_eq_u32 s[%d:%d], -1, v%d" % (mbase + 2 * i, mbase + 2 * i + 1, regs[0]))
            else:
                A("v_max_u32 v%d, v%d, v%d" % (tmp, regs[0], regs[1]))
                A("v_cmp_eq_u32 s[%d:%d], -1, v%d" % (mbase + 2 * i, mbase + 2 * i + 1, tmp))
        if n == 1: A("s_or_b64 vcc, s[%d:%d], s[%d:%d]" % (mbase, mbase + 1, mbase, mbase + 1))
        else: A("s_or_b64 vcc, s[%d:%d], s[%d:%d]" % (mbase, mbase + 1, mbase + 2, mbase + 3))
        for i in range(2, n): A("s_or_b64 vcc, vcc, s[%d:%d]" % (mbase + 2 * i, mbase + 2 * i + 1))
        A("s_cbranch_scc0 %s" % done)
        A("s_sub_u32 s60, s60, 1")
        A("s_cbranch_scc0 %s" % top)
        A(done + ":")
        A("s_mov_b64 exec, -1")
        if rslot is not None and stamps and "rounds" in exp:
            A("s_waitcnt lgkmcnt(0)")
            A("s_sub_u32 s%d, %d, s60\ns_mov_b32 s%d, 0" % (64 + 2 * rslot, POLL_LIMIT, 65 + 2 * rslot))

    def poll1(ins, reg):
        top = lab("p1"); done = lab("p1d")
        A("s_mov_b32 s60, %d" % POLL_LIMIT)
        A(top + ":")
        A(ins)
        A("s_waitcnt vmcnt(0)")
        A("v_cmp_eq_u32 vcc, -1, v%d" % reg)
        A("s_cbranch_vccz %s" % done)
        A("s_mov_b64 exec, vcc")
        A("s_sub_u32 s60, s60, 1")
        A("s_cbranch_scc0 %s" % top)
        A(done + ":")
        A("s_mov_b64 exec, -1")
    def red8rows(regs, tmps):
        dpp_red(regs, (8,))
        swap_red(regs, tmps, 16)
        swap_red(regs, tmps, 32)
    L_CP = L_ZP; L_EP = L_ZP + 1024
    K = NAME + "_kernel"
    A("%s:" % K)
    stamp(0)
    A("s_cmp_ge_u32 s2, 256")
    A("s_cbranch_scc1 L_exit")
    A("s_load_dwordx16 s[8:23], s[0:1], 0")
    A("s_load_dwordx8 s[24:31], s[0:1], 64")
    A("s_load_dwordx2 s[32:33], s[0:1], 96")
    A("v_lshrrev_b32 v1, 6, v0")
    A("v_and_b32 v0, 63, v0")
    A("v_readfirstlane_b32 s3, v1")
    A("s_and_b32 s34, s2, 7")
    A("s_lshr_b32 s35, s2, 3")
    A("s_lshr_b32 s36, s35, 3")
    A("s_and_b32 s37, s35, 7")
    A("v_lshrrev_b32 v2, 4, v0")
    A("v_and_b32 v3, 15, v0")
    A("s_cmp_lt_u32 s3, 4")
    A("s_cbranch_scc1 L_chain")

    A("s_sub_u32 s44, s3, 4")
    A("s_lshl_b32 s45, s36, 3\ns_add_u32 s45, s45, s34\ns_lshl_b32 s45, s45, 20")
    A("s_lshl_b32 s46, s37, 17\ns_add_u32 s45, s45, s46")
    A("s_lshl_b32 s47, s44, 14\ns_add_u32 s45, s45, s47")
    for u in range(4):
        A("v_add_u32 v8, %d, v2" % (4 * u))
        A("v_xor_b32 v8, v8, v3")
        A("v_lshlrev_b32 v8, 4, v8")
        A("v_lshl_add_u32 v%d, v2, 8, v8" % (4 + u))
    A("v_lshlrev_b32 v8, 4, v3")
    A("v_lshl_add_u32 v9, v2, 10, v8")
    A("s_mov_b32 m0, s47")
    A("s_mov_b32 s52, s47")
    A("v_mov_b32 v93, %d\nv_mov_b32 v94, 1" % L_FL)
    A("s_waitcnt lgkmcnt(0)")
    A("s_add_u32 s56, s10, s45\ns_addc_u32 s57, s11, 0")
    A("s_add_u32 s58, s12, s45\ns_addc_u32 s59, s13, 0")
    def tile_base(T, dst, src):
        A("s_add_u32 s55, s44, %d\ns_and_b32 s55, s55, 3\ns_lshl_b32 s55, s55, 12" % T)
        A("s_add_u32 s%d, s%d, s55\ns_addc_u32 s%d, s%d, 0" % (dst, src, dst + 1, src + 1))
    tile_base(0, 48, 56)
    A("s_barrier")
    for i in range(16):
        T, u = i >> 2, i & 3
        if u == 0 and T > 0:
            tile_base(T, 48, 56)
            A("s_add_u32 s52, s52, 4096\ns_mov_b32 m0, s52\ns_nop 0")
        A("global_load_lds_dwordx4 v%d, s[48:49] offset:%d%s" % (4 + u, u * 1024, NT))
        if W and i >= W:
            A("s_waitcnt vmcnt(%d)" % W)
    VB = 96
    def vload(idx):
        T, r = idx >> 2, idx & 3
        if r == 0: tile_base(T, 50, 58)
        A("global_load_dwordx4 v[%d:%d], v9, s[50:51] offset:%d%s" % (VB + 4 * idx, VB + 4 * idx + 3, r * 256, NT))
    for idx in range(vpre): vload(idx)
    lds_inc(93, 94, 4)
    stamp(1)
    lds_spin2(93, 4, 8, 16, 1, 8, 10)
    for idx in range(vpre, nv1): vload(idx)
    stamp(2)
    roles()
    for t in range(4):
        A("v_add_u32 v8, %d, v2" % (4 * t))
        A("v_xor_b32 v8, v8, v3")
        A("v_lshlrev_b32 v8, 4, v8")
        A("v_lshl_add_u32 v8, v3, 8, v8")
        A("v_add_u32 v%d, s47, v8" % (10 + t))
    A("v_lshrrev_b32 v8, 2, v3")
    A("v_lshlrev_b32 v14, 8, v8")
    A("v_lshl_add_u32 v14, v2, 4, v14")
    A("v_add_u32 v14, %d, v14" % L_Q)
    A("v_lshlrev_b32 v15, 5, v8")
    A("v_add_u32 v15, %d, v15" % L_MB)
    A("v_lshlrev_b32 v88, 5, v8")
    A("s_lshl_b32 s55, s44, 2\ns_add_u32 s55, s55, %d" % L_LB)
    A("v_add_u32 v88, s55, v88")
    A("v_and_b32 v8, 1, v3\nv_lshlrev_b32 v8, 4, v8\nv_mov_b32 v91, 0xffff\nv_lshlrev_b32 v91, v8, v91")
    A("v_and_b32 v8, 3, v3")
    A("v_cmp_gt_u32 vcc, 2, v8")
    A("v_lshlrev_b32 v92, 4, v0\ns_add_u32 s55, s47, %d\nv_add_u32 v92, s55, v92" % L_OP)
    A("v_cndmask_b32 v89, 0, v91, vcc")
    A("v_cndmask_b32 v90, v91, 0, vcc")
    A("s_mov_b32 s53, 0x3db504f3")
    A("s_mov_b32 s54, 0x3fb8aa3b")
    lds_spin(93, 0, 1, 8)
    stamp(3)
    for t in range(4):
        A("ds_read_b128 v[%d:%d], v14 offset:%d" % (16 + 4 * t, 19 + 4 * t, t * 64))
    A("s_waitcnt vmcnt(%d)" % nv1)
    def kfr(T, buf):
        for t in range(4):
            A("ds_read_b128 v[%d:%d], v%d offset:%d" % (buf + 4 * t, buf + 4 * t + 3, 10 + t, T * 4096))
    def qk(T, buf):
        for t in range(4):
            c = "0" if t == 0 else "v[%d:%d]" % (64 + 4 * T, 67 + 4 * T)
            A("v_mfma_f32_16x16x32_bf16 v[%d:%d], v[%d:%d], v[%d:%d], %s" % (64 + 4 * T, 67 + 4 * T, buf + 4 * t, buf + 4 * t + 3, 16 + 4 * t, 19 + 4 * t, c))
    kfr(0, 32); kfr(1, 48)
    A("s_waitcnt lgkmcnt(4)"); qk(0, 32)
    kfr(2, 32)
    A("s_waitcnt lgkmcnt(4)"); qk(1, 48)
    kfr(3, 48)
    A("s_waitcnt lgkmcnt(4)"); qk(2, 32)
    A("s_waitcnt lgkmcnt(0)"); qk(3, 48)
    def round_pair(a, b):
        A("v_cvt_pk_bf16_f32 v8, v%d, v%d" % (a, b))
        A("v_lshlrev_b32 v%d, 16, v8" % a)
        A("v_and_b32 v%d, 0xffff0000, v8" % b)
        A("v_mul_f32 v%d, s53, v%d" % (a, a))
        A("v_mul_f32 v%d, s53, v%d" % (b, b))
        A("v_cvt_pk_bf16_f32 v8, v%d, v%d" % (a, b))
        A("v_lshlrev_b32 v%d, 16, v8" % a)
        A("v_and_b32 v%d, 0xffff0000, v8" % b)
    for T in range(4):
        round_pair(64 + 4 * T, 65 + 4 * T); round_pair(66 + 4 * T, 67 + 4 * T)
    A("v_max3_f32 v8, v64, v65, v66")
    for i in range(67, 79, 2):
        A("v_max3_f32 v8, v8, v%d, v%d" % (i, i + 1))
    A("v_max_f32 v8, v8, v79")
    swap_red([8], [95], 16, "max"); swap_red([8], [95], 32, "max")
    A("s_lshl_b32 s55, s44, 2")
    A("v_add_u32 v95, s55, v15")
    A("s_mov_b32 exec_lo, 0x1111\ns_mov_b32 exec_hi, 0")
    A("ds_write_b32 v95, v8")
    A("s_mov_b64 exec, 1")
    A("ds_add_u32 v93, v94 offset:36")
    A("s_mov_b64 exec, -1")
    stamp(4)
    A("v_mul_f32 v95, s54, v8")
    for i in range(16):
        A("v_fma_f32 v%d, v%d, s54, -v95" % (64 + i, 64 + i))
    for i in range(16):
        A("v_exp_f32 v%d, v%d" % (64 + i, 64 + i))
    A("s_nop 0")
    A("v_add_f32 v8, v64, v65\nv_add_f32 v87, v66, v67")
    for i in range(4, 16, 2): A("v_add_f32 v8, v8, v%d\nv_add_f32 v87, v87, v%d" % (64 + i, 65 + i))
    A("v_add_f32 v8, v8, v87")
    for i in range(16):
        A("v_cvt_pk_bf16_f32 v%d, v%d, v%d" % (64 + i, 64 + i, 64 + i))
    swap_red([8], [87], 16, "add"); swap_red([8], [87], 32, "add")
    A("v_mov_b32 v16, v8")
    for idx in range(nv1, 16): vload(idx)
    lds_inc(93, 94, 8)
    stamp(5)
    lds_spin(93, 36, 8, 8, 1)
    A("ds_read_b128 v[32:35], v15")
    A("ds_read_b128 v[36:39], v15 offset:16")
    A("s_waitcnt lgkmcnt(0)")
    A("v_max3_f32 v8, v32, v33, v34\nv_max3_f32 v8, v8, v35, v36\nv_max3_f32 v8, v8, v37, v38\nv_max_f32 v8, v8, v39")
    A("v_fma_f32 v17, -v8, s54, v95")
    A("v_exp_f32 v17, v17\ns_nop 0")
    A("v_mul_f32 v16, v16, v17")
    A("s_mov_b32 exec_lo, 0x1111\ns_mov_b32 exec_hi, 0")
    A("ds_write_b32 v88, v16")
    A("s_mov_b64 exec, -1")
    for idx in range(16):
        ta = 32 + 2 * (idx & 3)
        A("v_and_b32 v%d, v%d, v89" % (ta, 64 + idx))
        A("v_and_b32 v%d, v%d, v90" % (ta + 1, 64 + idx))
        A("s_waitcnt vmcnt(%d)" % (15 - idx))
        c0 = "0" if idx == 0 else "v[80:83]"
        c1 = "0" if idx == 0 else "v[84:87]"
        A("s_nop 0")
        A("v_mfma_f32_16x16x16_bf16 v[80:83], v[%d:%d], v[%d:%d], %s" % (VB + 4 * idx, VB + 4 * idx + 1, ta, ta + 1, c0))
        A("v_mfma_f32_16x16x16_bf16 v[84:87], v[%d:%d], v[%d:%d], %s" % (VB + 4 * idx + 2, VB + 4 * idx + 3, ta, ta + 1, c1))
    stamp(6)
    A("s_nop 6")
    for i in range(8): A("v_mul_f32 v%d, v%d, v17" % (80 + i, 80 + i))
    A("ds_write_b128 v92, v[80:83]")
    A("ds_write_b128 v92, v[84:87] offset:1024")
    lds_inc(93, 94, 24)
    stamp(7)
    A("s_cmp_lg_u32 s40, 0")
    A("s_cbranch_scc1 L_s_D")
    A("s_cmp_eq_u32 s39, 0")
    A("s_cbranch_scc1 L_stream_end")
    A("s_lshl_b32 s45, s36, 4\ns_add_u32 s45, s45, s6\ns_mul_i32 s45, s45, %d\ns_lshl_b32 s46, s44, 10\ns_add_u32 s45, s45, s46\ns_add_u32 s45, s45, %d" % (NJ * 128, W_OUT))
    A("v_lshlrev_b32 v6, 4, v0\nv_add_u32 v6, s45, v6")
    A("v_and_b32 v7, 7, v0\nv_lshlrev_b32 v7, 4, v7\ns_lshl_b32 s45, s44, 7\ns_add_u32 s45, s45, %d\nv_add_u32 v7, s45, v7" % L_EP)
    A("s_barrier")
    A("s_barrier")
    A("s_cmp_eq_u32 s44, 7\ns_cbranch_scc1 L_s_e1")
    poll1("global_load_dwordx4 v[16:19], v6, s[32:33]%s" % SC, 19)
    stamp(9)
    red8rows([16, 17, 18, 19], [24, 25, 26, 27])
    A("s_mov_b64 exec, 0xff")
    A("ds_write_b128 v7, v[16:19]")
    A("s_mov_b64 exec, -1")
    A("s_waitcnt lgkmcnt(0)")
    A("L_s_e1:")
    A("s_barrier")
    A("s_branch L_stream_end")
    A("L_s_D:")
    A("v_mov_b32 v90, %d" % L_FL)
    A("v_lshrrev_b32 v8, 2, v3\nv_lshl_add_u32 v8, v2, 3, v8")
    A("v_and_b32 v93, 3, v3\nv_lshlrev_b32 v93, 3, v93")
    A("v_lshl_add_u32 v4, v8, 6, v93\nv_add_u32 v4, s47, v4")
    A("v_lshlrev_b32 v5, 2, v93\nv_lshl_add_u32 v5, v8, 7, v5\nv_add_u32 v5, s47, v5")
    A("v_and_b32 v6, 3, v3\nv_lshlrev_b32 v6, 10, v6\nv_lshl_add_u32 v6, v2, 4, v6")
    A("s_lshl_b32 s58, s44, 7\ns_add_u32 s58, s58, %d" % L_XH)
    A("v_add_u32 v6, s58, v6")
    A("v_lshlrev_b32 v7, 2, v0\ns_lshl_b32 s58, s44, 8\ns_add_u32 s58, s58, %d\nv_add_u32 v7, s58, v7" % L_ZP)
    A("v_lshlrev_b32 v11, 2, v0\ns_lshl_b32 s58, s44, 11\ns_add_u32 s58, s58, %d\nv_add_u32 v11, s58, v11" % L_ZP)
    A("v_lshrrev_b32 v10, 2, v3\nv_lshlrev_b32 v10, 6, v10\nv_lshl_add_u32 v10, v2, 4, v10\nv_add_u32 v10, %d, v10" % L_H1)
    A("v_mov_b32 v92, %d\nv_and_b32 v91, 3, v3" % L_Z)
    for t in range(4):
        A("v_cmp_eq_u32 vcc, %d, v91\ns_nop 1\nv_cndmask_b32 v%d, v92, v10, vcc" % (t, 94 + t))
    A("v_mov_b32 v24, 0\nv_mov_b32 v25, 0\nv_mov_b32 v26, 0\nv_mov_b32 v27, 0\nds_write_b128 v92, v[24:27]")
    A("v_lshrrev_b32 v15, 2, v3")
    A("v_cmp_eq_u32 s[56:57], 1, v15\nv_cmp_eq_u32 s[58:59], 2, v15\nv_cmp_eq_u32 s[48:49], 3, v15")
    A("v_lshrrev_b32 v12, 2, v3\nv_lshlrev_b32 v12, 4, v12\nv_lshrrev_b32 v24, 1, v2\nv_add_u32 v12, v12, v24\nv_mul_u32_u24 v12, %d, v12" % (NJ * 128))
    A("v_and_b32 v24, 1, v2\nv_lshl_add_u32 v12, v24, 6, v12\nv_lshl_add_u32 v12, v91, 4, v12")
    A("s_mul_i32 s45, s44, %d\ns_lshl_b32 s46, s41, 7\ns_add_u32 s45, s45, s46\ns_add_u32 s45, s45, %d" % (2 * NJ * 128, W_OUT))
    A("v_add_u32 v12, s45, v12")
    A("v_lshlrev_b32 v13, 4, v0\ns_lshl_b32 s45, s44, 11\ns_lshl_b32 s46, s34, 13\ns_add_u32 s45, s45, s46\ns_add_u32 s45, s45, %d\nv_add_u32 v13, s45, v13" % W_H)
    A("v_lshlrev_b32 v14, 3, v0\ns_lshl_b32 s45, s44, 10\ns_add_u32 s45, s45, %d\nv_add_u32 v14, s45, v14" % L_XH)
    A("v_lshl_add_u32 v15, v2, 2, v15")
    A("s_and_b32 s45, s44, 1\ns_lshl_b32 s45, s45, 4\nv_add_u32 v15, s45, v15")
    A("v_lshlrev_b32 v9, 2, v15\nv_add_u32 v9, %d, v9" % L_B1)
    A("ds_read_b32 v88, v9")
    A("v_and_b32 v9, 3, v3\nv_lshlrev_b32 v9, 6, v9\nv_lshl_add_u32 v9, v15, 1, v9\nv_add_u32 v9, %d, v9" % L_H1)
    A("v_mov_b32 v89, 0x3d372713")
    lds_spin(90, 28, 1, 91, 1)
    for ft in range(2):
        for ks in range(2):
            fr = 32 + 8 * ft + 4 * ks
            A("ds_read_b64_tr_b16 v[%d:%d], v4 offset:%d" % (fr, fr + 1, ks * 2048 + ft * 32))
            A("ds_read_b64_tr_b16 v[%d:%d], v4 offset:%d" % (fr + 2, fr + 3, ks * 2048 + ft * 32 + 256))
    A("s_waitcnt lgkmcnt(0)")
    for t in range(4):
        A("ds_read_b64_tr_b16 v[%d:%d], v5 offset:%d" % (48 + 4 * t, 49 + 4 * t, 4096 + t * 8))
        A("ds_read_b64_tr_b16 v[%d:%d], v5 offset:%d" % (50 + 4 * t, 51 + 4 * t, 4096 + t * 8 + 512))
    A("s_waitcnt lgkmcnt(0)")
    stamp(8)
    A("s_cmp_ge_u32 s44, 4")
    A("s_cbranch_scc1 L_d1")
    if sD: A("s_sleep %d" % sD)
    hop([("global_load_dwordx4 v[100:103], v13, s[32:33]%s" % SC, [103]), ("global_load_dwordx4 v[104:107], v13, s[32:33] offset:1024%s" % SC, [107])], 24, pipe=PIPE)
    stamp(9)
    A("v_add_f32 v24, v100, v101\nv_add_f32 v25, v102, v103\nv_add_f32 v26, v104, v105\nv_add_f32 v27, v106, v107")
    A("v_add_f32 v24, v24, v25\nv_add_f32 v26, v26, v27\nv_add_f32 v24, v24, v26")
    red16([24]); swap_red([24], [25], 16); swap_red([24], [25], 32)
    A("v_mul_f32 v24, 0x3b000000, v24")
    for i in range(8): A("v_sub_f32 v%d, v%d, v24" % (16 + i, 100 + i))
    A("v_mul_f32 v25, v16, v16\nv_mul_f32 v26, v17, v17")
    for i in range(2, 8, 2): A("v_fma_f32 v25, v%d, v%d, v25\nv_fma_f32 v26, v%d, v%d, v26" % (16 + i, 16 + i, 17 + i, 17 + i))
    A("v_add_f32 v25, v25, v26")
    red16([25]); swap_red([25], [26], 16); swap_red([25], [26], 32)
    A("v_mul_f32 v25, 0x3b000000, v25")
    A("v_add_f32 v26, 0x3727c5ac, v25")
    A("v_rcp_f32 v27, v26\nv_rsq_f32 v26, v26\ns_nop 0")
    A("v_mul_f32 v27, v25, v27")
    A("v_add_f32 v27, 0x3727c5ac, v27")
    A("v_rsq_f32 v27, v27\ns_nop 0")
    A("v_mul_f32 v26, v26, v27")
    for i in range(8): A("v_mul_f32 v%d, v%d, v26" % (16 + i, 16 + i))
    for i in range(4): A("v_cvt_pk_bf16_f32 v%d, v%d, v%d" % (72 + i, 16 + 2 * i, 17 + 2 * i))
    if "dst" in exp: stamp(1)
    A("ds_write_b64 v14, v[72:73]")
    A("ds_write_b64 v14, v[74:75] offset:512")
    A("s_waitcnt lgkmcnt(0)")
    A("L_d1:")
    A("s_barrier")
    if "dst" in exp: stamp(2)
    for ks in range(2):
        A("ds_read_b128 v[%d:%d], v6 offset:%d" % (16 + 4 * ks, 19 + 4 * ks, ks * 64))
    for ks in range(2):
        A("s_waitcnt lgkmcnt(%d)" % (1 - ks))
        for ft in range(2):
            c = "0" if ks == 0 else "v[%d:%d]" % (80 + 4 * ft, 83 + 4 * ft)
            A("v_mfma_f32_16x16x32_bf16 v[%d:%d], v[%d:%d], v[%d:%d], %s" % (80 + 4 * ft, 83 + 4 * ft, 32 + 8 * ft + 4 * ks, 35 + 8 * ft + 4 * ks, 16 + 4 * ks, 19 + 4 * ks, c))
    A("s_nop 6")
    A("v_cndmask_b32 v80, v80, v81, s[56:57]\nv_cndmask_b32 v80, v80, v82, s[58:59]\nv_cndmask_b32 v80, v80, v83, s[48:49]")
    A("v_cndmask_b32 v84, v84, v85, s[56:57]\nv_cndmask_b32 v84, v84, v86, s[58:59]\nv_cndmask_b32 v84, v84, v87, s[48:49]")
    if "dst" in exp: stamp(3)
    A("ds_write_b32 v7, v80")
    A("ds_write_b32 v7, v84 offset:2048")
    A("s_waitcnt lgkmcnt(0)")
    A("s_barrier")
    if "dst" in exp: stamp(4)
    A("s_cmp_ge_u32 s44, 2")
    A("s_cbranch_scc1 L_d3")
    for w_ in range(8): A("ds_read_b32 v%d, v11 offset:%d" % (16 + w_, w_ * 256))
    A("s_waitcnt lgkmcnt(0)")
    A("v_add_f32 v16, v16, v17\nv_add_f32 v18, v18, v19\nv_add_f32 v20, v20, v21\nv_add_f32 v22, v22, v23")
    A("v_add_f32 v16, v16, v18\nv_add_f32 v20, v20, v22\nv_add_f32 v18, v16, v20")
    bf16r(18, 18)
    A("v_add_f32 v18, v18, v88")
    bf16r(18, 18)
    A("v_mul_f32 v19, v18, v18")
    A("v_fma_f32 v19, v19, v89, 1.0")
    A("v_mul_f32 v19, v19, v18")
    A("v_mul_f32 v19, 0xc0135761, v19")
    A("v_exp_f32 v19, v19\ns_nop 0")
    A("v_add_f32 v19, 1.0, v19")
    A("v_rcp_f32 v19, v19\ns_nop 0")
    A("v_mul_f32 v18, v18, v19")
    A("v_cvt_pk_bf16_f32 v18, v18, v18")
    if "dst" in exp: stamp(5)
    A("ds_write_b16 v9, v18")
    A("s_waitcnt lgkmcnt(0)")
    A("L_d3:")
    A("s_barrier")
    if "dst" in exp: stamp(6)
    for t in range(4): A("ds_read_b128 v[%d:%d], v%d" % (16 + 4 * t, 19 + 4 * t, 94 + t))
    for t in range(4):
        A("s_waitcnt lgkmcnt(%d)" % (3 - t))
        c = "0" if t == 0 else "v[64:67]"
        A("v_mfma_f32_16x16x32_bf16 v[64:67], v[%d:%d], v[%d:%d], %s" % (48 + 4 * t, 51 + 4 * t, 16 + 4 * t, 19 + 4 * t, c))
    A("s_nop 7")
    A("global_store_dwordx4 v12, v[64:67], s[32:33]%s" % SC)
    stamp(10)
    A("L_stream_end:")
    stamp(11)
    stamp_flush()
    A("s_endpgm")

    A("L_chain:")
    A("s_cmp_lg_u32 s3, 2\ns_cbranch_scc1 L_c_nz")
    A("v_mov_b32 v8, 0\nv_mov_b32 v9, 0\nv_mov_b32 v10, 0\nv_mov_b32 v11, 0")
    A("v_mov_b32 v7, %d" % L_FL)
    for i in range(4): A("ds_write_b128 v7, v[8:11] offset:%d" % (16 * i))
    A("L_c_nz:")
    A("s_lshl_b32 s38, s34, 2\ns_add_u32 s38, s38, s36")
    roles()
    A("s_lshl_b32 s44, s34, 10\ns_lshl_b32 s45, s36, 6\ns_add_u32 s44, s44, s45\ns_and_b32 s45, s37, 1\ns_lshl_b32 s45, s45, 5\ns_add_u32 s44, s44, s45")
    A("s_lshr_b32 s45, s37, 1\ns_lshl_b32 s45, s45, 3\ns_add_u32 s44, s44, s45\ns_add_u32 s44, s44, %d" % W_ML)
    A("v_and_b32 v102, 3, v0\nv_lshlrev_b32 v102, 8, v102\nv_add_u32 v102, s44, v102")
    A("s_lshr_b32 s45, s35, 1\ns_and_b32 s45, s45, 3")
    A("s_lshl_b32 s44, s34, 16\ns_lshl_b32 s46, s45, 12\ns_add_u32 s44, s44, s46\ns_lshl_b32 s46, s36, 10\ns_add_u32 s44, s44, s46")
    A("s_and_b32 s46, s35, 1\ns_lshl_b32 s46, s46, 9\ns_add_u32 s44, s44, s46\ns_add_u32 s44, s44, %d" % W_QP)
    A("v_and_b32 v103, 3, v3\nv_lshlrev_b32 v103, 14, v103\nv_lshl_add_u32 v103, v2, 5, v103\nv_add_u32 v103, s44, v103")
    A("v_mov_b32 v100, %d\nv_mov_b32 v101, 1\nv_mov_b32 v126, 0" % L_FL)
    A("s_waitcnt lgkmcnt(0)")
    A("s_load_dword s62, s[32:33], 0")
    A("s_cmp_eq_u32 s3, 0\ns_cbranch_scc1 L_c0")
    A("s_barrier")
    A("s_cmp_eq_u32 s3, 1\ns_cbranch_scc1 L_c1")
    A("s_cmp_eq_u32 s3, 2\ns_cbranch_scc1 L_c2")
    A("s_branch L_c3")
    A("L_c0:")
    A("v_lshlrev_b32 v6, 10, v2\nv_lshl_add_u32 v7, v3, 6, v6")
    for i in range(4):
        A("global_load_dwordx4 v[%d:%d], v7, s[8:9] offset:%d" % (16 + 4 * i, 19 + 4 * i, i * 16))
    A("s_lshl_b32 s46, s45, 8")
    A("v_lshl_add_u32 v7, v3, 4, v6\nv_add_u32 v7, s46, v7")
    A("global_load_dwordx4 v[12:15], v7, s[8:9]")
    A("s_lshl_b32 s44, s45, 20\ns_lshl_b32 s46, s34, 10\ns_add_u32 s44, s44, s46\ns_lshl_b32 s46, s36, 8\ns_add_u32 s44, s44, s46")
    A("s_and_b32 s46, s35, 1\ns_lshl_b32 s46, s46, 7\ns_add_u32 s44, s44, s46")
    A("s_add_u32 s46, s14, s44\ns_addc_u32 s47, s15, 0")
    A("v_lshrrev_b32 v7, 3, v0\nv_lshlrev_b32 v7, 13, v7\nv_and_b32 v8, 7, v0\nv_lshl_add_u32 v7, v8, 4, v7")
    A("s_mov_b32 s48, %d" % L_ST)
    for i in range(16):
        A("s_mov_b32 m0, s48\ns_add_u32 s48, s48, 1024")
        A("global_load_lds_dwordx4 v7, s[46:47]")
        A("s_add_u32 s46, s46, 0x10000\ns_addc_u32 s47, s47, 0")
    A("s_barrier")
    stamp(1)
    A("s_waitcnt vmcnt(16)")
    tags()
    for i in range(16):
        A("v_lshlrev_b32 v%d, 16, v%d\nv_and_b32 v%d, 0xffff0000, v%d" % (32 + 2 * i, 16 + i, 33 + 2 * i, 16 + i))
    A("v_add_f32 v64, v32, v33\nv_add_f32 v65, v34, v35\nv_add_f32 v66, v36, v37\nv_add_f32 v67, v38, v39")
    for i in range(8, 32, 4):
        A("v_add_f32 v64, v64, v%d\nv_add_f32 v65, v65, v%d\nv_add_f32 v66, v66, v%d\nv_add_f32 v67, v67, v%d" % (32 + i, 33 + i, 34 + i, 35 + i))
    A("v_add_f32 v64, v64, v65\nv_add_f32 v66, v66, v67\nv_add_f32 v64, v64, v66")
    red16([64])
    A("v_mul_f32 v64, 0x3b000000, v64")
    A("v_mov_b32 v65, 0\nv_mov_b32 v66, 0")
    for i in range(0, 32, 2):
        A("v_sub_f32 v67, v%d, v64\nv_sub_f32 v68, v%d, v64\nv_fma_f32 v65, v67, v67, v65\nv_fma_f32 v66, v68, v68, v66" % (32 + i, 33 + i))
    A("v_add_f32 v65, v65, v66")
    red16([65])
    A("v_mul_f32 v65, 0x3b000000, v65")
    bf16r(64, 64); bf16r(65, 65)
    A("v_add_f32 v65, 0x3727c5ac, v65"); bf16r(65, 65)
    A("v_sqrt_f32 v65, v65\ns_nop 0"); bf16r(65, 65)
    A("v_rcp_f32 v65, v65")
    for i in range(4):
        a, b = 32 + 2 * i, 33 + 2 * i
        A("v_lshlrev_b32 v%d, 16, v%d\nv_and_b32 v%d, 0xffff0000, v%d" % (a, 12 + i, b, 12 + i))
        A("v_sub_f32 v%d, v%d, v64\nv_sub_f32 v%d, v%d, v64" % (a, a, b, b))
        A("v_cvt_pk_bf16_f32 v66, v%d, v%d" % (a, b))
        A("v_lshlrev_b32 v%d, 16, v66\nv_and_b32 v%d, 0xffff0000, v66" % (a, b))
        A("v_mul_f32 v%d, v%d, v65\nv_mul_f32 v%d, v%d, v65" % (a, a, b, b))
        A("v_cvt_pk_bf16_f32 v%d, v%d, v%d" % (16 + i, a, b))
    A("v_lshlrev_b32 v6, 8, v2\nv_lshl_add_u32 v6, v3, 4, v6\nv_add_u32 v6, %d, v6" % L_XH)
    A("ds_write_b128 v6, v[16:19]")
    A("v_lshrrev_b32 v8, 2, v3\nv_lshl_add_u32 v8, v2, 3, v8\nv_and_b32 v9, 3, v3\nv_lshlrev_b32 v12, 3, v9")
    A("v_lshl_add_u32 v12, v8, 7, v12\nv_add_u32 v12, %d, v12" % L_ST)
    A("v_lshlrev_b32 v13, 8, v9\nv_lshl_add_u32 v13, v2, 4, v13\nv_add_u32 v13, %d, v13" % L_XH)
    A("s_waitcnt vmcnt(0) lgkmcnt(0)")
    stamp(2)
    for ks in range(4):
        A("ds_read_b128 v[%d:%d], v13 offset:%d" % (16 + 4 * ks, 19 + 4 * ks, ks * 64))
    for ks in range(4):
        for t in range(4):
            A("ds_read_b64_tr_b16 v[%d:%d], v12 offset:%d" % (32 + 4 * t, 33 + 4 * t, ks * 4096 + t * 32))
            A("ds_read_b64_tr_b16 v[%d:%d], v12 offset:%d" % (34 + 4 * t, 35 + 4 * t, ks * 4096 + t * 32 + 512))
        for t in range(4):
            A("s_waitcnt lgkmcnt(%d)" % (6 - 2 * t))
            c = "0" if ks == 0 else "v[%d:%d]" % (64 + 4 * t, 67 + 4 * t)
            A("v_mfma_f32_16x16x32_bf16 v[%d:%d], v[%d:%d], v[%d:%d], %s" % (64 + 4 * t, 67 + 4 * t, 32 + 4 * t, 35 + 4 * t, 16 + 4 * ks, 19 + 4 * ks, c))
    A("v_mov_b32 v34, s42\nv_mov_b32 v35, s43\nv_mov_b32 v38, s42\nv_mov_b32 v39, s43")
    A("s_mov_b32 exec_lo, 0x000f000f\ns_mov_b32 exec_hi, 0x000f000f")
    A("s_nop 4")
    for t in range(4):
        A("v_mov_b32 v32, v%d\nv_mov_b32 v33, v%d\nv_mov_b32 v36, v%d\nv_mov_b32 v37, v%d" % (64 + 4 * t, 65 + 4 * t, 66 + 4 * t, 67 + 4 * t))
        A("global_store_dwordx4 v103, v[32:35], s[32:33] offset:%d%s" % (t * 128, SC))
        A("global_store_dwordx4 v103, v[36:39], s[32:33] offset:%d%s" % (t * 128 + 16, SC))
        A("s_nop 1")
    A("s_mov_b64 exec, -1")
    lds_set(100, 101, 12)
    stamp(3)
    A("s_branch L_c_pre")
    A("L_c1:")
    A("s_lshl_b32 s44, s34, 16\ns_lshl_b32 s45, s36, 14\ns_add_u32 s44, s44, s45\ns_add_u32 s44, s44, %d" % W_QP)
    A("v_lshlrev_b32 v6, 4, v0\nv_add_u32 v6, s44, v6\nv_add_u32 v7, 4096, v6\nv_add_u32 v8, 4096, v7\nv_add_u32 v9, 4096, v8")
    tags()
    p = poll_begin("s61")
    A("ds_read_b32 v20, v100 offset:4")
    A("s_waitcnt lgkmcnt(0)")
    A("v_cmp_gt_u32 vcc, %d, v20" % qk_at)
    poll_end(p, 4, "s61")
    stamp(2)
    p = poll_begin()
    for i in range(16):
        A("global_load_dwordx4 v[%d:%d], v%d, s[32:33] offset:%d%s" % (32 + 4 * i, 35 + 4 * i, 6 + (i >> 2), (i & 3) * 1024, SC))
    lds_set(100, 101, 16)
    A("s_waitcnt vmcnt(0)")
    for i in range(16):
        A("v_xor_b32 v%d, s42, v%d\nv_xor_b32 v%d, s43, v%d" % (34 + 4 * i, 34 + 4 * i, 35 + 4 * i, 35 + 4 * i))
    A("v_or3_b32 v20, v34, v35, v38")
    A("v_or_b32 v20, v20, v39")
    for i in range(2, 16):
        A("v_or3_b32 v20, v20, v%d, v%d" % (34 + 4 * i, 35 + 4 * i))
    A("v_cmp_ne_u32 vcc, 0, v20")
    poll_end(p, sleep_q)
    for j in range(4):
        a = 32 + 4 * j
        A("v_pk_add_f32 v[%d:%d], v[%d:%d], v[%d:%d]" % (a, a + 1, a, a + 1, a + 16, a + 17))
        A("v_pk_add_f32 v[%d:%d], v[%d:%d], v[%d:%d]" % (a + 32, a + 33, a + 32, a + 33, a + 48, a + 49))
        A("v_pk_add_f32 v[%d:%d], v[%d:%d], v[%d:%d]" % (a, a + 1, a, a + 1, a + 32, a + 33))
    for j in range(4): A("v_cvt_pk_bf16_f32 v%d, v%d, v%d" % (16 + j, 32 + 4 * j, 33 + 4 * j))
    A("v_lshlrev_b32 v7, 2, v0\nv_add_u32 v7, %d, v7" % L_Q)
    for j in range(4): A("ds_write_b32 v7, v%d offset:%d" % (16 + j, j * 256))
    lds_set(100, 101, 0)
    stamp(3)
    A("s_branch L_c_pre")
    A("L_c2:")
    A("v_mov_b32 v12, -1\nv_mov_b32 v13, -1\nv_mov_b32 v14, -1\nv_mov_b32 v15, -1")
    A("v_lshrrev_b32 v16, 5, v0\nv_lshlrev_b32 v16, 14, v16\nv_and_b32 v17, 31, v0\nv_lshl_add_u32 v16, v17, 4, v16")
    A("s_lshl_b32 s44, s34, 16\ns_lshl_b32 s45, s36, 12\ns_add_u32 s44, s44, s45\ns_lshl_b32 s45, s37, 9\ns_add_u32 s44, s44, s45\ns_add_u32 s44, s44, %d" % W_OP)
    A("v_add_u32 v16, s44, v16")
    A("global_store_dwordx4 v16, v[12:15], s[32:33]%s" % SC)
    A("v_add_u32 v17, 0x8000, v16")
    A("global_store_dwordx4 v17, v[12:15], s[32:33]%s" % SC)
    A("global_store_dwordx2 v102, v[12:13], s[32:33]%s" % SC)
    A("v_lshlrev_b32 v18, 4, v2\nv_bfe_u32 v19, v0, 3, 1\nv_add_u32 v18, v18, v19\nv_lshlrev_b32 v18, 12, v18\nv_and_b32 v19, 7, v0\nv_lshl_add_u32 v18, v19, 4, v18")
    A("s_lshl_b32 s45, s38, 7\ns_add_u32 s45, s45, %d" % W_HP)
    A("s_cmp_lg_u32 s40, 0\ns_cbranch_scc1 L_c2h")
    A("s_lshl_b32 s44, s37, 13\ns_add_u32 s44, s44, s45")
    A("v_add_u32 v19, s44, v18")
    A("global_store_dwordx4 v19, v[12:15], s[32:33]%s" % SC)
    A("s_cmp_eq_u32 s63, 0\ns_cbranch_scc1 L_c2h")
    A("s_sub_u32 s44, s37, 2\ns_and_b32 s44, s44, 7\ns_lshl_b32 s44, s44, 13\ns_add_u32 s44, s44, s45")
    A("v_add_u32 v19, s44, v18")
    A("global_store_dwordx4 v19, v[12:15], s[32:33]%s" % SC)
    A("L_c2h:")
    A("s_cmp_eq_u32 s39, 0\ns_cbranch_scc1 L_c2a")
    A("s_lshl_b32 s44, s36, 11\ns_lshl_b32 s45, s6, 7\ns_add_u32 s44, s44, s45\ns_add_u32 s44, s44, %d" % W_H)
    A("v_lshrrev_b32 v19, 3, v0\nv_lshlrev_b32 v19, 13, v19\nv_and_b32 v20, 7, v0\nv_lshl_add_u32 v19, v20, 4, v19\nv_add_u32 v19, s44, v19")
    A("global_store_dwordx4 v19, v[12:15], s[32:33]%s" % SC)
    A("L_c2a:")
    A("s_cmp_eq_u32 s40, 0\ns_cbranch_scc1 L_c2b")
    A("v_lshrrev_b32 v19, 3, v0\nv_mul_u32_u24 v19, %d, v19\nv_and_b32 v20, 7, v0\nv_lshl_add_u32 v19, v20, 4, v19" % (NJ * 128))
    A("s_lshl_b32 s44, s41, 7\ns_add_u32 s44, s44, %d" % W_OUT)
    A("v_add_u32 v19, s44, v19")
    for i in range(8):
        A("global_store_dwordx4 v19, v[12:15], s[32:33]%s" % SC)
        A("v_add_u32 v19, %d, v19" % (8 * NJ * 128))
    A("L_c2b:")
    A("s_waitcnt vmcnt(0)")
    tags()
    A("s_getreg_b32 s44, hwreg(HW_REG_XCC_ID)\ns_and_b32 s44, s44, 7\ns_xor_b32 s44, s44, s43")
    A("v_mov_b32 v20, s42\nv_mov_b32 v21, s44")
    A("s_lshl_b32 s44, s34, 5\ns_add_u32 s44, s44, s35\ns_lshl_b32 s44, s44, 3\ns_add_u32 s44, s44, %d\nv_mov_b32 v22, s44" % W_FLAG)
    A("s_mov_b64 exec, 1")
    A("global_store_dwordx2 v22, v[20:21], s[32:33]%s" % SC)
    A("s_mov_b64 exec, -1")
    stamp(3)
    A("s_branch L_c_join")
    A("L_c3:")
    A("s_cmp_eq_u32 s40, 0\ns_cbranch_scc1 L_c3a")
    A("s_lshl_b32 s44, s41, 6")
    A("v_and_b32 v6, 31, v0\nv_lshlrev_b32 v7, 1, v6\nv_add_u32 v7, s44, v7")
    A("global_load_ushort v8, v7, s[22:23]")
    A("v_lshlrev_b32 v6, 2, v6\nv_add_u32 v6, %d, v6" % L_B1)
    A("s_waitcnt vmcnt(0)")
    A("v_lshlrev_b32 v8, 16, v8")
    A("ds_write_b32 v6, v8")
    A("L_c3a:")
    tags()
    lds_spin(100, 16, 1, 20, 4)
    A("v_lshlrev_b32 v8, 4, v0\nv_add_u32 v8, %d, v8" % W_FLAG)
    p = poll_begin()
    A("global_load_dwordx4 v[16:19], v8, s[32:33]%s" % SC)
    A("global_load_dwordx4 v[20:23], v8, s[32:33] offset:1024%s" % SC)
    A("s_waitcnt vmcnt(0)")
    for a in (16, 18, 20, 22):
        A("v_xor_b32 v%d, s42, v%d\nv_xor_b32 v%d, s43, v%d" % (a, a, a + 1, a + 1))
    A("v_or3_b32 v24, v16, v18, v20\nv_or_b32 v24, v24, v22")
    A("v_or3_b32 v25, v17, v19, v21\nv_or_b32 v25, v25, v23\nv_lshrrev_b32 v25, 3, v25")
    A("v_or_b32 v24, v24, v25")
    A("v_cmp_ne_u32 vcc, 0, v24")
    poll_end(p, 8)
    A("s_getreg_b32 s44, hwreg(HW_REG_XCC_ID)\ns_and_b32 s44, s44, 7")
    A("s_cmp_lt_u32 s34, 4\ns_cbranch_scc1 L_c3lo")
    A("v_mov_b32 v17, v21\nv_mov_b32 v19, v23")
    A("L_c3lo:")
    A("v_xor_b32 v17, s44, v17\nv_xor_b32 v19, s44, v19\nv_or_b32 v17, v17, v19")
    A("v_xor_b32 v24, s34, v2\nv_and_b32 v24, 3, v24")
    A("v_cmp_eq_u32 vcc, 0, v24\ns_nop 1\nv_cndmask_b32 v17, 0, v17, vcc")
    A("v_cmp_ne_u32 vcc, 0, v17")
    A("s_cmp_eq_u64 vcc, 0\ns_cbranch_scc0 L_c3nf")
    if "nofast" not in exp: lds_set(100, 101, 32)
    A("L_c3nf:")
    lds_set(100, 101, 40)
    stamp(3)
    A("s_branch L_c_join")
    A("L_c_pre:")
    A("L_c_join:")
    A("v_and_b32 v9, 7, v0\nv_lshlrev_b32 v9, 3, v9")
    A("s_lshl_b32 s44, s36, 10\ns_lshl_b32 s45, s6, 6\ns_add_u32 s44, s44, s45")
    A("v_add_u32 v126, s44, v9")
    A("v_add_u32 v11, s45, v9")
    A("global_load_dwordx2 v[120:121], v126, s[8:9]")
    A("global_load_dwordx2 v[122:123], v11, s[26:27]")
    A("global_load_dwordx2 v[124:125], v126, s[28:29]")
    A("s_lshl_b32 s44, s38, 14\ns_lshl_b32 s45, s3, 12\ns_add_u32 s44, s44, s45\ns_add_u32 s44, s44, %d" % W_OP)
    A("v_lshlrev_b32 v6, 4, v0\nv_add_u32 v6, s44, v6")
    A("s_lshl_b32 s44, s38, 8\ns_lshl_b32 s45, s3, 6\ns_add_u32 s44, s44, s45\ns_add_u32 s44, s44, %d" % W_ML)
    A("v_lshrrev_b32 v7, 5, v0\nv_lshlrev_b32 v7, 5, v7\nv_add_u32 v7, s44, v7")
    A("v_and_b32 v8, 31, v0\nv_lshlrev_b32 v8, 3, v8\ns_lshl_b32 s45, s3, 8\ns_add_u32 s45, s45, %d\nv_add_u32 v8, s45, v8" % L_OB)
    A("v_lshrrev_b32 v9, 2, v3\nv_lshlrev_b32 v9, 8, v9\nv_lshl_add_u32 v9, v2, 4, v9\nv_add_u32 v9, %d, v9" % L_OB)
    A("v_lshlrev_b32 v10, 16, v2\nv_lshl_add_u32 v10, v3, 2, v10")
    A("s_lshl_b32 s45, s38, 7\ns_lshr_b32 s46, s3, 1\ns_lshl_b32 s46, s46, 12\ns_add_u32 s45, s45, s46\ns_and_b32 s46, s3, 1\ns_lshl_b32 s46, s46, 6\ns_add_u32 s45, s45, s46\ns_add_u32 s45, s45, %d" % W_HP)
    A("s_sub_u32 s55, s37, 2\ns_and_b32 s55, s55, 7")
    A("s_lshl_b32 s44, s55, 13\ns_add_u32 s44, s44, s45\nv_add_u32 v99, s44, v10")
    A("s_lshl_b32 s44, s37, 13\ns_add_u32 s44, s44, s45\nv_add_u32 v10, s44, v10")
    A("v_lshrrev_b32 v11, 2, v3\nv_lshlrev_b32 v11, 14, v11\nv_lshl_add_u32 v11, v2, 7, v11\nv_and_b32 v13, 3, v3\nv_lshl_add_u32 v11, v13, 4, v11")
    A("s_lshl_b32 s44, s34, 16\ns_lshl_b32 s45, s36, 12\ns_add_u32 s44, s44, s45\ns_lshl_b32 s45, s37, 9\ns_add_u32 s44, s44, s45")
    A("s_lshl_b32 s45, s3, 6\ns_add_u32 s44, s44, s45\ns_add_u32 s44, s44, %d" % W_OP)
    A("v_add_u32 v11, s44, v11")
    A("v_lshlrev_b32 v13, 4, v0\ns_lshl_b32 s45, s3, 10\ns_add_u32 s45, s45, %d\nv_add_u32 v13, s45, v13" % L_OP)
    A("v_lshrrev_b32 v14, 2, v3\nv_lshl_add_u32 v14, v2, 3, v14\nv_and_b32 v15, 3, v3\nv_lshlrev_b32 v12, 3, v15")
    A("v_lshl_add_u32 v12, v14, 7, v12\ns_lshl_b32 s44, s3, 5\nv_add_u32 v98, s44, v12\nv_add_u32 v12, %d, v98" % L_ST)
    A("s_mov_b32 s54, 0x3fb8aa3b")
    A("v_bfe_u32 v16, v0, 3, 2\nv_lshlrev_b32 v16, 3, v16\nv_lshrrev_b32 v17, 5, v0\nv_add_u32 v16, v16, v17\nv_lshlrev_b32 v16, 10, v16")
    A("v_and_b32 v17, 7, v0\nv_lshl_add_u32 v97, v17, 4, v16")
    A("s_lshl_b32 s44, s38, 17\ns_lshl_b32 s45, s3, 15\ns_add_u32 s44, s44, s45")
    A("s_lshl_b32 s45, s37, 7\ns_add_u32 s45, s45, s44\ns_add_u32 s46, s16, s45\ns_addc_u32 s47, s17, 0")
    A("s_lshl_b32 s45, s55, 7\ns_add_u32 s45, s45, s44\ns_add_u32 s50, s16, s45\ns_addc_u32 s51, s17, 0")
    A("s_lshl_b32 s48, s3, 12\ns_add_u32 s48, s48, %d" % L_ST)
    stamp(4)
    A("s_cmp_lg_u32 s40, 0\ns_cbranch_scc1 L_c_nowo")
    lds_spin2(100, 8, 8, 12, 1, 20, 21, 2)
    for i in range(4):
        A("s_mov_b32 m0, s48\ns_add_u32 s48, s48, 1024")
        A("global_load_lds_dwordx4 v97, s[46:47]")
        A("s_add_u32 s46, s46, 2048\ns_addc_u32 s47, s47, 0")
    A("L_c_nowo:")
    A("s_cmp_eq_u32 s63, 0\ns_cbranch_scc1 L_c_nowo2")
    lds_spin(100, 36, 8, 20, 2)
    A("s_lshr_b32 s48, s3, 1\ns_lshl_b32 s48, s48, 14\ns_and_b32 s45, s3, 1\ns_lshl_b32 s45, s45, 12\ns_add_u32 s48, s48, s45")
    for i in range(4):
        A("s_mov_b32 m0, s48\ns_add_u32 s48, s48, 1024")
        A("global_load_lds_dwordx4 v97, s[50:51]")
        A("s_add_u32 s50, s50, 2048\ns_addc_u32 s51, s51, 0")
    A("L_c_nowo2:")
    A("s_cmp_eq_u32 s40, 0\ns_cbranch_scc1 L_c_nodw")
    A("s_cmp_lg_u32 s3, 3\ns_cbranch_scc1 L_c_nodw")
    if dw_late: lds_spin(100, 24, dw_late, 20, 2) if dw_late == 8 else None
    if dw_late and dw_late != 8:
        p = poll_begin("s61")
        A("ds_read_b32 v20, v100 offset:24")
        A("s_waitcnt lgkmcnt(0)")
        A("v_cmp_gt_u32 vcc, %d, v20" % dw_late)
        poll_end(p, 2, "s61")
    lds_spin2(100, 36, 8, 8, 8, 20, 21, 2)
    A("s_lshl_b32 s44, s41, 6\ns_add_u32 s46, s20, s44\ns_addc_u32 s47, s21, 0")
    A("s_lshl_b32 s44, s41, 15\ns_add_u32 s50, s24, s44\ns_addc_u32 s51, s25, 0")
    A("v_lshrrev_b32 v4, 2, v0\nv_mul_u32_u24 v4, 3584, v4\nv_and_b32 v5, 3, v0\nv_lshl_add_u32 v4, v5, 4, v4")
    A("v_lshrrev_b32 v5, 3, v0\nv_lshlrev_b32 v5, 10, v5\nv_and_b32 v6, 7, v0\nv_lshl_add_u32 v5, v6, 4, v5")
    A("s_mov_b32 s48, 0\ns_mov_b32 s49, 8")
    A("L_c_dwl:")
    A("s_waitcnt vmcnt(40)")
    for n in range(4):
        A("s_mov_b32 m0, s48\ns_add_u32 s48, s48, 1024")
        A("global_load_lds_dwordx4 v4, s[46:47]")
        A("s_add_u32 s46, s46, %d\ns_addc_u32 s47, s47, 0" % (16 * 3584))
    for n in range(4):
        A("s_mov_b32 m0, s48\ns_add_u32 s48, s48, 1024")
        A("global_load_lds_dwordx4 v5, s[50:51] offset:0")
        A("s_add_u32 s50, s50, 8192\ns_addc_u32 s51, s51, 0")
    A("s_add_u32 s48, s48, 8192")
    A("s_sub_u32 s50, s50, %d\ns_subb_u32 s51, s51, 0" % (4 * 8192 - 128))
    A("s_sub_u32 s49, s49, 1\ns_cmp_lg_u32 s49, 0\ns_cbranch_scc1 L_c_dwl")
    A("s_waitcnt vmcnt(0)")
    lds_set(100, 101, 28)
    stamp(6)
    A("s_branch L_chain_end")
    A("L_c_nodw:")
    A("v_and_b32 v14, 3, v0\nv_lshlrev_b32 v15, 5, v14\nv_add_u32 v15, %d, v15\nv_add_u32 v14, %d, v15" % (L_MB, L_LB - L_MB))
    A("v_add_u32 v16, 0x10000, v13")
    lds_spin(100, 40, 1, 26, 2)
    A("ds_read_b32 v26, v100 offset:32")
    A("s_waitcnt lgkmcnt(0)")
    A("v_readfirstlane_b32 s55, v26")
    stamp(5)
    A("s_cmp_eq_u32 s3, 3\ns_cbranch_scc1 L_c_b3")
    lds_spin(100, 24, 8, 26, 0)
    A("s_cmp_eq_u32 s3, 2\ns_cbranch_scc1 L_c_pml")
    for w_ in range(8):
        A("ds_read_b128 v[%d:%d], v%d offset:%d" % (56 + 4 * w_, 59 + 4 * w_, 13 if w_ < 4 else 16, (w_ & 3) * 16384))
    A("s_waitcnt lgkmcnt(4)")
    A("v_pk_add_f32 v[56:57], v[56:57], v[60:61]\nv_pk_add_f32 v[58:59], v[58:59], v[62:63]")
    A("v_pk_add_f32 v[64:65], v[64:65], v[68:69]\nv_pk_add_f32 v[66:67], v[66:67], v[70:71]")
    A("v_pk_add_f32 v[56:57], v[56:57], v[64:65]\nv_pk_add_f32 v[58:59], v[58:59], v[66:67]")
    A("s_waitcnt lgkmcnt(0)")
    A("v_pk_add_f32 v[72:73], v[72:73], v[76:77]\nv_pk_add_f32 v[74:75], v[74:75], v[78:79]")
    A("v_pk_add_f32 v[80:81], v[80:81], v[84:85]\nv_pk_add_f32 v[82:83], v[82:83], v[86:87]")
    A("v_pk_add_f32 v[56:57], v[56:57], v[72:73]\nv_pk_add_f32 v[58:59], v[58:59], v[74:75]")
    A("v_pk_add_f32 v[56:57], v[56:57], v[80:81]\nv_pk_add_f32 v[58:59], v[58:59], v[82:83]")
    A("s_cmp_eq_u32 s55, 0\ns_cbranch_scc1 L_c_oslow")
    A("global_store_dwordx4 v11, v[56:59], s[32:33]")
    A("s_branch L_c_b")
    A("L_c_oslow:")
    A("global_store_dwordx4 v11, v[56:59], s[32:33]%s" % SC)
    A("s_branch L_c_b")
    A("L_c_pml:")
    A("ds_read_b128 v[16:19], v14\nds_read_b128 v[20:23], v14 offset:16")
    A("ds_read_b128 v[28:31], v15\nds_read_b128 v[32:35], v15 offset:16")
    A("s_waitcnt lgkmcnt(0)")
    A("v_max3_f32 v24, v28, v29, v30\nv_max3_f32 v24, v24, v31, v32\nv_max3_f32 v24, v24, v33, v34\nv_max_f32 v24, v24, v35")
    A("v_add_f32 v16, v16, v17\nv_add_f32 v18, v18, v19\nv_add_f32 v20, v20, v21\nv_add_f32 v22, v22, v23")
    A("v_add_f32 v16, v16, v18\nv_add_f32 v20, v20, v22\nv_add_f32 v25, v16, v20")
    A("s_mov_b64 exec, 15")
    A("s_cmp_eq_u32 s55, 0\ns_cbranch_scc1 L_c_mslow")
    A("global_store_dwordx2 v102, v[24:25], s[32:33]")
    A("s_branch L_c_mdone")
    A("L_c_mslow:")
    A("global_store_dwordx2 v102, v[24:25], s[32:33]%s" % SC)
    A("L_c_mdone:")
    A("s_mov_b64 exec, -1")
    A("L_c_b:")
    A("s_cmp_lg_u32 s40, 0\ns_cbranch_scc1 L_c_dexit")
    A("s_waitcnt vmcnt(1)")
    A("s_branch L_c_b2")
    A("L_c_dexit:")
    stamp(6)
    A("s_branch L_chain_end")
    A("L_c_b3:")
    A("s_waitcnt vmcnt(0)")
    A("L_c_b2:")
    lds_inc(100, 101, 20)
    stamp(6)
    lds_spin(100, 20, 4, 20, 0)
    for ks in range(4):
        A("ds_read_b64_tr_b16 v[%d:%d], v12 offset:%d" % (104 + 4 * ks, 105 + 4 * ks, ks * 4096))
        A("ds_read_b64_tr_b16 v[%d:%d], v12 offset:%d" % (106 + 4 * ks, 107 + 4 * ks, ks * 4096 + 512))
    A("s_cmp_eq_u32 s63, 0\ns_cbranch_scc1 L_c_nof2")
    A("s_waitcnt lgkmcnt(0)")
    for ks in range(4):
        o_ = (ks >> 1) * 16384 + (ks & 1) * 4096
        A("ds_read_b64_tr_b16 v[%d:%d], v98 offset:%d" % (72 + 4 * ks, 73 + 4 * ks, o_))
        A("ds_read_b64_tr_b16 v[%d:%d], v98 offset:%d" % (74 + 4 * ks, 75 + 4 * ks, o_ + 512))
    A("L_c_nof2:")
    hop([("global_load_dwordx4 v[%d:%d], v6, s[32:33] offset:%d%s" % (32 + 4 * i, 35 + 4 * i, i * 1024, SC), [35 + 4 * i]) for i in range(4)] +
        [("global_load_dwordx4 v[48:51], v7, s[32:33]%s" % SC, [49, 51]), ("global_load_dwordx4 v[52:55], v7, s[32:33] offset:16%s" % SC, [53, 55])], 20, pipe=PIPE)
    stamp(7)
    A("v_max3_f32 v20, v48, v50, v52\nv_max_f32 v20, v20, v54")
    swap_red([20], [21], 32, "max")
    A("v_mul_f32 v20, s54, v20")
    for i in range(4): A("v_fma_f32 v%d, v%d, s54, -v20" % (56 + i, 48 + 2 * i))
    for i in range(4): A("v_exp_f32 v%d, v%d" % (56 + i, 56 + i))
    A("s_nop 0")
    for e in range(4):
        A("v_mul_f32 v%d, v56, v%d" % (20 + e, 32 + e))
    A("v_mul_f32 v24, v56, v49")
    for i in range(1, 4):
        for e in range(4):
            A("v_fma_f32 v%d, v%d, v%d, v%d" % (20 + e, 56 + i, 32 + 4 * i + e, 20 + e))
        A("v_fma_f32 v24, v%d, v%d, v24" % (56 + i, 49 + 2 * i))
    swap_red([20, 21, 22, 23, 24], [25, 26, 27, 28, 29], 32)
    A("v_rcp_f32 v24, v24\ns_nop 0")
    for e in range(4): A("v_mul_f32 v%d, v%d, v24" % (20 + e, 20 + e))
    A("v_cvt_pk_bf16_f32 v20, v20, v21\nv_cvt_pk_bf16_f32 v21, v22, v23")
    A("s_mov_b32 exec_hi, 0")
    A("ds_write_b64 v8, v[20:21]")
    A("s_mov_b64 exec, -1")
    A("s_waitcnt lgkmcnt(0)")
    A("s_barrier")
    for ks in range(4):
        A("ds_read_b128 v[%d:%d], v9 offset:%d" % (128 + 4 * ks, 131 + 4 * ks, ks * 64))
    for ks in range(4):
        A("s_waitcnt lgkmcnt(%d)" % (3 - ks))
        c = "0" if ks == 0 else "v[20:23]"
        A("v_mfma_f32_16x16x32_bf16 v[20:23], v[%d:%d], v[%d:%d], %s" % (128 + 4 * ks, 131 + 4 * ks, 104 + 4 * ks, 107 + 4 * ks, c))
    A("s_cmp_eq_u32 s63, 0\ns_cbranch_scc1 L_c_one")
    for ks in range(4):
        c = "0" if ks == 0 else "v[24:27]"
        A("v_mfma_f32_16x16x32_bf16 v[24:27], v[%d:%d], v[%d:%d], %s" % (128 + 4 * ks, 131 + 4 * ks, 72 + 4 * ks, 75 + 4 * ks, c))
    A("s_nop 1")
    A("global_store_dword v10, v20, s[32:33]%s" % SC)
    A("s_nop 4")
    A("global_store_dword v99, v24, s[32:33]%s" % SC)
    A("s_branch L_c_bdone")
    A("L_c_one:")
    A("s_nop 5")
    A("global_store_dword v10, v20, s[32:33]%s" % SC)
    A("L_c_bdone:")
    A("s_mov_b64 exec, -1")
    stamp(8)
    A("s_cmp_eq_u32 s39, 0\ns_cbranch_scc1 L_chain_end")
    A("s_lshl_b32 s46, s36, 4\ns_add_u32 s46, s46, s6")
    A("v_lshlrev_b32 v6, 4, v0\nv_and_b32 v7, 7, v0")
    A("s_lshl_b32 s44, s46, 12\ns_lshl_b32 s45, s3, 10\ns_add_u32 s44, s44, s45\ns_add_u32 s44, s44, %d\nv_add_u32 v9, s44, v6" % W_HP)
    A("v_lshlrev_b32 v10, 4, v7\nv_add_u32 v10, %d, v10" % L_CP)
    A("s_lshl_b32 s45, s3, 7\nv_add_u32 v11, s45, v10")
    A("s_lshl_b32 s44, s36, 11\ns_lshl_b32 s45, s6, 7\ns_add_u32 s44, s44, s45\ns_add_u32 s44, s44, %d" % W_H)
    A("v_lshrrev_b32 v8, 3, v0\nv_lshlrev_b32 v8, 13, v8\nv_lshl_add_u32 v8, v7, 4, v8\nv_add_u32 v8, s44, v8")
    A("v_lshlrev_b32 v110, 16, v120\nv_and_b32 v111, 0xffff0000, v120\nv_lshlrev_b32 v112, 16, v121\nv_and_b32 v113, 0xffff0000, v121")
    A("v_lshlrev_b32 v114, 16, v122\nv_and_b32 v115, 0xffff0000, v122\nv_lshlrev_b32 v116, 16, v123\nv_and_b32 v117, 0xffff0000, v123")
    poll1("global_load_dwordx4 v[16:19], v9, s[32:33]%s" % SC, 19)
    stamp(2)
    red8rows([16, 17, 18, 19], [24, 25, 26, 27])
    A("s_mov_b64 exec, 0xff")
    A("ds_write_b128 v11, v[16:19]")
    A("s_mov_b64 exec, -1")
    A("s_waitcnt lgkmcnt(0)")
    A("s_barrier")
    A("s_cmp_eq_u32 s3, 0\ns_cbranch_scc1 L_c_c0")
    A("s_barrier")
    A("s_branch L_chain_end")
    A("L_c_c0:")
    for i in range(4): A("ds_read_b128 v[%d:%d], v10 offset:%d" % (32 + 4 * i, 35 + 4 * i, i * 128))
    A("s_waitcnt lgkmcnt(0)")
    A("v_pk_add_f32 v[16:17], v[32:33], v[36:37]\nv_pk_add_f32 v[18:19], v[34:35], v[38:39]")
    A("v_pk_add_f32 v[20:21], v[40:41], v[44:45]\nv_pk_add_f32 v[22:23], v[42:43], v[46:47]")
    A("v_pk_add_f32 v[16:17], v[16:17], v[20:21]\nv_pk_add_f32 v[18:19], v[18:19], v[22:23]")
    A("v_cvt_pk_bf16_f32 v24, v16, v17\nv_cvt_pk_bf16_f32 v25, v18, v19")
    A("v_lshlrev_b32 v16, 16, v24\nv_and_b32 v17, 0xffff0000, v24\nv_lshlrev_b32 v18, 16, v25\nv_and_b32 v19, 0xffff0000, v25")
    for e in range(4): A("v_add_f32 v%d, v%d, v%d" % (16 + e, 16 + e, 110 + e))
    A("v_cvt_pk_bf16_f32 v24, v16, v17\nv_cvt_pk_bf16_f32 v25, v18, v19")
    A("v_lshlrev_b32 v104, 16, v24\nv_and_b32 v105, 0xffff0000, v24\nv_lshlrev_b32 v106, 16, v25\nv_and_b32 v107, 0xffff0000, v25")
    A("global_store_dwordx4 v8, v[104:107], s[32:33]%s" % SC)
    stamp(9)
    A("s_barrier")
    stamp(10)
    for i in range(7): A("ds_read_b128 v[%d:%d], v10 offset:%d" % (32 + 4 * i, 35 + 4 * i, 1024 + i * 128))
    A("s_waitcnt lgkmcnt(3)")
    A("v_pk_add_f32 v[16:17], v[32:33], v[36:37]\nv_pk_add_f32 v[18:19], v[34:35], v[38:39]")
    A("v_pk_add_f32 v[20:21], v[40:41], v[44:45]\nv_pk_add_f32 v[22:23], v[42:43], v[46:47]")
    A("s_waitcnt lgkmcnt(0)")
    A("v_pk_add_f32 v[24:25], v[48:49], v[52:53]\nv_pk_add_f32 v[26:27], v[50:51], v[54:55]")
    A("v_pk_add_f32 v[16:17], v[16:17], v[56:57]\nv_pk_add_f32 v[18:19], v[18:19], v[58:59]")
    A("v_pk_add_f32 v[20:21], v[20:21], v[24:25]\nv_pk_add_f32 v[22:23], v[22:23], v[26:27]")
    A("v_pk_add_f32 v[16:17], v[16:17], v[20:21]\nv_pk_add_f32 v[18:19], v[18:19], v[22:23]")
    A("v_cvt_pk_bf16_f32 v24, v16, v17\nv_cvt_pk_bf16_f32 v25, v18, v19")
    A("v_lshlrev_b32 v16, 16, v24\nv_and_b32 v17, 0xffff0000, v24\nv_lshlrev_b32 v18, 16, v25\nv_and_b32 v19, 0xffff0000, v25")
    for e in range(4): A("v_add_f32 v%d, v%d, v%d" % (16 + e, 16 + e, 114 + e))
    A("v_cvt_pk_bf16_f32 v24, v16, v17\nv_cvt_pk_bf16_f32 v25, v18, v19")
    A("v_lshlrev_b32 v16, 16, v24\nv_and_b32 v17, 0xffff0000, v24\nv_lshlrev_b32 v18, 16, v25\nv_and_b32 v19, 0xffff0000, v25")
    for e in range(4): A("v_add_f32 v%d, v%d, v%d" % (16 + e, 16 + e, 104 + e))
    A("v_cvt_pk_bf16_f32 v24, v16, v17\nv_cvt_pk_bf16_f32 v25, v18, v19")
    A("s_mov_b64 exec, 0xff")
    A("global_store_dwordx2 v126, v[24:25], s[28:29]")
    A("s_or_b32 s44, s36, s6\ns_cmp_lg_u32 s44, 0\ns_cbranch_scc1 L_c_noe")
    A("s_mov_b64 exec, 1")
    A("v_mov_b32 v8, 0\nv_mov_b32 v9, s42")
    A("global_store_dword v8, v9, s[32:33]%s" % SC)
    A("L_c_noe:")
    A("s_mov_b64 exec, -1")
    A("L_chain_end:")
    stamp(11)
    stamp_flush()
    A("L_exit:")
    A("s_endpgm")

    hdr = open("cdna_kernels/%s.s.ref" % NAME).read().split("; Override launch")[0]
    out = hdr
    out += "; @launch grid=(256,1,1) block=(768,1,1) lds=%d\n" % LDS_TOTAL
    out += '.amdgcn_target "amdgcn-amd-amdhsa--gfx950"\n.text\n.globl %s\n.p2align 8\n.type %s,@function\n' % (K, K)
    out += A.text()
    out += '.section .rodata,"a"\n.p2align 6\n.amdhsa_kernel %s\n' % K
    out += "  .amdhsa_next_free_vgpr 168\n  .amdhsa_next_free_sgpr 102\n  .amdhsa_accum_offset 168\n"
    out += "  .amdhsa_group_segment_fixed_size 0\n  .amdhsa_kernarg_size 104\n  .amdhsa_user_sgpr_count 2\n  .amdhsa_user_sgpr_kernarg_segment_ptr 1\n  .amdhsa_system_sgpr_workgroup_id_x 1\n.end_amdhsa_kernel\n"
    return out

if __name__ == "__main__":
    import argparse
    ap = argparse.ArgumentParser()
    ap.add_argument("-o", default="cdna_kernels/%s.s" % NAME)
    ap.add_argument("--stamps", action="store_true")
    ap.add_argument("--W", type=int, default=2)
    ap.add_argument("--no-nt", action="store_true")
    ap.add_argument("--exp", default="")
    ap.add_argument("--qk_at", type=int, default=8)
    ap.add_argument("--vpre", type=int, default=0)
    ap.add_argument("--ends", action="store_true")
    ap.add_argument("--sE", type=int, default=0)
    ap.add_argument("--nv1", type=int, default=10)
    ap.add_argument("--dw", type=int, default=8)
    ap.add_argument("--sD", type=int, default=0)
    a = ap.parse_args()
    open(a.o, "w").write(gen(W=a.W, nt=not a.no_nt, stamps=a.stamps, exp=a.exp, qk_at=a.qk_at, vpre=a.vpre, ends=a.ends, sE=a.sE, nv1=a.nv1, dw_late=a.dw, sD=a.sD))
    print("wrote", a.o)
```

```python
import sys

NAME = "sequential_preLN__gqa_block_cached__mixer_channel_mlp__decode"

L_OP   = 8192
L_ST   = 131072
L_M    = 147456
L_ZP   = L_M
L_LB   = L_M + 4096
L_FL   = L_M + 4224
L_XH   = L_M + 4288
L_Q    = L_M + 8384
L_MB   = L_M + 9408
L_OB   = L_M + 9536
L_H1   = L_M + 10560
L_B1   = L_M + 10816
L_Z    = L_M + 10944
LDS_TOTAL = L_M + 11008

W_E     = 0x0
W_FLAG  = 0x1000
W_ML    = 0x2000
W_H     = 0x1C0000
W_QP    = 0x10000
W_OP    = 0x90000
W_HP    = 0x110000
W_OUT   = 0x150000
W_DBG   = 0x200000

NJ = 56
STREAM_STAMPS = ["start", "Kissued", "V1issued", "q ready", "max done", "V2issued", "PVdone", "bar3", "Dprep", "h got", "Dstore", "end"]
CHAIN_STAMPS = ["start", "s1", "s2", "s3", "prespin", "prebar3", "Opub", "gathered", "hpstore", "hstore", "outgath", "end"]
POLL_LIMIT = 20000

class Asm:
    def __init__(self): self.l = []
    def __call__(self, s):
        for x in s.split("\n"):
            x = x.strip()
            if x: self.l.append(("" if x.endswith(":") else "  ") + x)
    def text(self): return "\n".join(self.l) + "\n"

def gen(W=2, nt=True, stamps=False, sleep_q=8, scope=" sc1", exp="", qk_at=8, vpre=0, ends=False, sE=0, sD=0, nv1=10, dw_late=8):
    A = Asm()
    PIPE = "pipe" in exp
    NT = " nt" if nt else ""
    SC = scope
    uid = [0]
    def lab(p):
        uid[0] += 1; return "L_%s_%d" % (p, uid[0])
    def stamp(i):
        if stamps and (not ends or i in (0, 11)): A("s_memrealtime s[%d:%d]" % (64 + 2 * i, 65 + 2 * i))
    def stamp_flush():
        if stamps:
            A("s_waitcnt lgkmcnt(0)")
            A("s_lshl_b32 s44, s2, 4\ns_add_u32 s44, s44, s3\ns_lshl_b32 s44, s44, 7\ns_add_u32 s44, s44, %d" % W_DBG)
            A("s_add_u32 s46, s32, s44\ns_addc_u32 s47, s33, 0")
            A("s_mov_b64 exec, 1\nv_mov_b32 v2, 0")
            for i in range(0, 12, 2):
                A("v_mov_b32 v4, s%d\nv_mov_b32 v5, s%d\nv_mov_b32 v6, s%d\nv_mov_b32 v7, s%d" % (64 + 2 * i, 65 + 2 * i, 66 + 2 * i, 67 + 2 * i))
                A("global_store_dwordx4 v2, v[4:7], s[46:47] offset:%d" % (i * 8))
                A("s_nop 1")
            A("s_mov_b64 exec, -1")
    def bf16r(dst, src):
        A("v_cvt_pk_bf16_f32 v%d, v%d, v%d" % (dst, src, src))
        A("v_and_b32 v%d, 0xffff0000, v%d" % (dst, dst))
    def dpp_red(regs, rors, op="add"):
        for k in rors:
            n = max(0, 2 - (len(regs) - 1))
            if n: A("s_nop %d" % (n - 1))
            for r in regs:
                A("v_%s_f32_dpp v%d, v%d, v%d row_ror:%d row_mask:0xf bank_mask:0xf" % (op, r, r, r, k))
    def red16(regs, op="add"): dpp_red(regs, (8, 4, 2, 1), op)
    def swap_red(regs, tmps, which, op="add"):
        ins = "v_permlane16_swap_b32" if which == 16 else "v_permlane32_swap_b32"
        for r, t in zip(regs, tmps): A("v_mov_b32 v%d, v%d" % (t, r))
        n = max(0, 2 - (len(regs) - 1))
        if n: A("s_nop %d" % (n - 1))
        for r, t in zip(regs, tmps): A("%s v%d, v%d" % (ins, r, t))
        if len(regs) < 2: A("s_nop 0")
        for r, t in zip(regs, tmps): A("v_%s_f32 v%d, v%d, v%d" % (op, r, r, t))
    def poll_begin(cnt="s60"):
        l = lab("poll"); A("s_mov_b32 %s, %d" % (cnt, POLL_LIMIT)); A(l + ":"); return l
    def poll_end(l, sleep, cnt="s60"):
        d = lab("pdone")
        A("s_cbranch_vccz %s" % d)
        A("s_sub_u32 %s, %s, 1" % (cnt, cnt))
        A("s_cbranch_scc1 %s" % d)
        if sleep: A("s_sleep %d" % sleep)
        A("s_branch %s" % l)
        A(d + ":")
    def lds_spin(addr_v, off, val, tmp, sleep=1):
        p = poll_begin("s61")
        A("ds_read_b32 v%d, v%d offset:%d" % (tmp, addr_v, off))
        A("s_waitcnt lgkmcnt(0)")
        A("v_cmp_ne_u32 vcc, %d, v%d" % (val, tmp))
        poll_end(p, sleep, "s61")
    def lds_spin2(addr_v, off1, val1, off2, val2, t1, t2, sleep=1):
        p = poll_begin("s61")
        A("ds_read_b32 v%d, v%d offset:%d\nds_read_b32 v%d, v%d offset:%d" % (t1, addr_v, off1, t2, addr_v, off2))
        A("s_waitcnt lgkmcnt(0)")
        A("v_xor_b32 v%d, %d, v%d\nv_xor_b32 v%d, %d, v%d\nv_or_b32 v%d, v%d, v%d" % (t1, val1, t1, t2, val2, t2, t1, t1, t2))
        A("v_cmp_ne_u32 vcc, 0, v%d" % t1)
        poll_end(p, sleep, "s61")
    def lds_inc(addr_v, one_v, off):
        A("s_mov_b64 exec, 1")
        A("ds_add_u32 v%d, v%d offset:%d" % (addr_v, one_v, off))
        A("s_mov_b64 exec, -1")
    def lds_set(addr_v, one_v, off):
        A("s_mov_b64 exec, 1")
        A("ds_write_b32 v%d, v%d offset:%d" % (addr_v, one_v, off))
        A("s_mov_b64 exec, -1")
    def roles():
        A("s_sub_u32 s56, s37, s34\ns_sub_u32 s56, s56, 1\ns_and_b32 s56, s56, 7")
        A("s_lshl_b32 s57, s36, 3\ns_add_u32 s57, s57, s34")
        A("s_lshl_b32 s41, s57, 1\ns_add_u32 s41, s41, s56")
        A("s_cmp_lt_u32 s56, 2\ns_cselect_b32 s40, 1, 0")
        A("s_lshr_b32 s63, s56, 1\ns_cmp_eq_u32 s63, 1\ns_cselect_b32 s63, 1, 0")
        A("s_cmp_ge_u32 s56, 6\ns_cselect_b32 s39, 1, 0")
        A("s_lshl_b32 s6, s34, 1\ns_and_b32 s7, s56, 1\ns_add_u32 s6, s6, s7")
        A("s_cmp_lt_u32 s57, 28\ns_cselect_b32 s40, s40, 0\ns_cselect_b32 s63, s63, 0")
    def tags():
        A("s_waitcnt lgkmcnt(0)")
        A("s_not_b32 s43, s62\ns_add_u32 s42, s62, 1")
    def hop(loads, tmp, mbase=88, rslot=None, tslot=None, init=None, pipe=True):
        top = lab("hop"); done = lab("hopdone")
        n = len(loads)
        for i in range(n):
            if init and init[i] is not None:
                A("s_mov_b32 s%d, 0x%x\ns_mov_b32 s%d, 0x%x" % (mbase + 2 * i, init[i][0] & 0xffffffff, mbase + 2 * i + 1, init[i][1] & 0xffffffff))
            else:
                A("s_mov_b64 s[%d:%d], -1" % (mbase + 2 * i, mbase + 2 * i + 1))
        A("s_mov_b32 s60, %d" % POLL_LIMIT)
        if tslot is not None and "rounds" in exp: stamp(tslot)
        def issue():
            for i, (ins, _) in enumerate(loads):
                A("s_mov_b64 exec, s[%d:%d]" % (mbase + 2 * i, mbase + 2 * i + 1))
                if pipe:
                    A("s_cbranch_execnz .+8" if False else "s_cmp_eq_u64 s[%d:%d], 0\ns_cselect_b64 exec, 1, exec" % (mbase + 2 * i, mbase + 2 * i + 1))
                    A(ins)
                else:
                    sk = lab("sk")
                    A("s_cbranch_execz %s" % sk)
                    A(ins)
                    A(sk + ":")
        if pipe:
            issue()
            A("s_mov_b64 exec, -1")
            A("s_sleep 1")
        A(top + ":")
        issue()
        A("s_waitcnt vmcnt(%d)" % (n if pipe else 0))
        for i, (_, regs) in enumerate(loads):
            A("s_mov_b64 exec, s[%d:%d]" % (mbase + 2 * i, mbase + 2 * i + 1))
            if len(regs) == 1:
                A("v_cmp_eq_u32 s[%d:%d], -1, v%d" % (mbase + 2 * i, mbase + 2 * i + 1, regs[0]))
            else:
                A("v_max_u32 v%d, v%d, v%d" % (tmp, regs[0], regs[1]))
                A("v_cmp_eq_u32 s[%d:%d], -1, v%d" % (mbase + 2 * i, mbase + 2 * i + 1, tmp))
        if n == 1: A("s_or_b64 vcc, s[%d:%d], s[%d:%d]" % (mbase, mbase + 1, mbase, mbase + 1))
        else: A("s_or_b64 vcc, s[%d:%d], s[%d:%d]" % (mbase, mbase + 1, mbase + 2, mbase + 3))
        for i in range(2, n): A("s_or_b64 vcc, vcc, s[%d:%d]" % (mbase + 2 * i, mbase + 2 * i + 1))
        A("s_cbranch_scc0 %s" % done)
        A("s_sub_u32 s60, s60, 1")
        A("s_cbranch_scc0 %s" % top)
        A(done + ":")
        A("s_mov_b64 exec, -1")
        if rslot is not None and stamps and "rounds" in exp:
            A("s_waitcnt lgkmcnt(0)")
            A("s_sub_u32 s%d, %d, s60\ns_mov_b32 s%d, 0" % (64 + 2 * rslot, POLL_LIMIT, 65 + 2 * rslot))

    def poll1(ins, reg):
        top = lab("p1"); done = lab("p1d")
        A("s_mov_b32 s60, %d" % POLL_LIMIT)
        A(top + ":")
        A(ins)
        A("s_waitcnt vmcnt(0)")
        A("v_cmp_eq_u32 vcc, -1, v%d" % reg)
        A("s_cbranch_vccz %s" % done)
        A("s_mov_b64 exec, vcc")
        A("s_sub_u32 s60, s60, 1")
        A("s_cbranch_scc0 %s" % top)
        A(done + ":")
        A("s_mov_b64 exec, -1")
    def red8rows(regs, tmps):
        dpp_red(regs, (8,))
        swap_red(regs, tmps, 16)
        swap_red(regs, tmps, 32)
    L_CP = L_ZP; L_EP = L_ZP + 1024
    K = NAME + "_kernel"
    A("%s:" % K)
    stamp(0)
    A("s_cmp_ge_u32 s2, 256")
    A("s_cbranch_scc1 L_exit")
    A("s_load_dwordx16 s[8:23], s[0:1], 0")
    A("s_load_dwordx8 s[24:31], s[0:1], 64")
    A("s_load_dwordx2 s[32:33], s[0:1], 96")
    A("v_lshrrev_b32 v1, 6, v0")
    A("v_and_b32 v0, 63, v0")
    A("v_readfirstlane_b32 s3, v1")
    A("s_and_b32 s34, s2, 7")
    A("s_lshr_b32 s35, s2, 3")
    A("s_lshr_b32 s36, s35, 3")
    A("s_and_b32 s37, s35, 7")
    A("v_lshrrev_b32 v2, 4, v0")
    A("v_and_b32 v3, 15, v0")
    A("s_cmp_lt_u32 s3, 4")
    A("s_cbranch_scc1 L_chain")

    A("s_sub_u32 s44, s3, 4")
    A("s_lshl_b32 s45, s36, 3\ns_add_u32 s45, s45, s34\ns_lshl_b32 s45, s45, 20")
    A("s_lshl_b32 s46, s37, 17\ns_add_u32 s45, s45, s46")
    A("s_lshl_b32 s47, s44, 14\ns_add_u32 s45, s45, s47")
    for u in range(4):
        A("v_add_u32 v8, %d, v2" % (4 * u))
        A("v_xor_b32 v8, v8, v3")
        A("v_lshlrev_b32 v8, 4, v8")
        A("v_lshl_add_u32 v%d, v2, 8, v8" % (4 + u))
    A("v_lshlrev_b32 v8, 4, v3")
    A("v_lshl_add_u32 v9, v2, 10, v8")
    A("s_mov_b32 m0, s47")
    A("s_mov_b32 s52, s47")
    A("v_mov_b32 v93, %d\nv_mov_b32 v94, 1" % L_FL)
    A("s_waitcnt lgkmcnt(0)")
    A("s_add_u32 s56, s10, s45\ns_addc_u32 s57, s11, 0")
    A("s_add_u32 s58, s12, s45\ns_addc_u32 s59, s13, 0")
    def tile_base(T, dst, src):
        A("s_add_u32 s55, s44, %d\ns_and_b32 s55, s55, 3\ns_lshl_b32 s55, s55, 12" % T)
        A("s_add_u32 s%d, s%d, s55\ns_addc_u32 s%d, s%d, 0" % (dst, src, dst + 1, src + 1))
    tile_base(0, 48, 56)
    A("s_barrier")
    for i in range(16):
        T, u = i >> 2, i & 3
        if u == 0 and T > 0:
            tile_base(T, 48, 56)
            A("s_add_u32 s52, s52, 4096\ns_mov_b32 m0, s52\ns_nop 0")
        A("global_load_lds_dwordx4 v%d, s[48:49] offset:%d%s" % (4 + u, u * 1024, NT))
        if W and i >= W:
            A("s_waitcnt vmcnt(%d)" % W)
    VB = 96
    def vload(idx):
        T, r = idx >> 2, idx & 3
        if r == 0: tile_base(T, 50, 58)
        A("global_load_dwordx4 v[%d:%d], v9, s[50:51] offset:%d%s" % (VB + 4 * idx, VB + 4 * idx + 3, r * 256, NT))
    for idx in range(vpre): vload(idx)
    lds_inc(93, 94, 4)
    stamp(1)
    lds_spin2(93, 4, 8, 16, 1, 8, 10)
    for idx in range(vpre, nv1): vload(idx)
    stamp(2)
    roles()
    for t in range(4):
        A("v_add_u32 v8, %d, v2" % (4 * t))
        A("v_xor_b32 v8, v8, v3")
        A("v_lshlrev_b32 v8, 4, v8")
        A("v_lshl_add_u32 v8, v3, 8, v8")
        A("v_add_u32 v%d, s47, v8" % (10 + t))
    A("v_lshrrev_b32 v8, 2, v3")
    A("v_lshlrev_b32 v14, 8, v8")
    A("v_lshl_add_u32 v14, v2, 4, v14")
    A("v_add_u32 v14, %d, v14" % L_Q)
    A("v_lshlrev_b32 v15, 5, v8")
    A("v_add_u32 v15, %d, v15" % L_MB)
    A("v_lshlrev_b32 v88, 5, v8")
    A("s_lshl_b32 s55, s44, 2\ns_add_u32 s55, s55, %d" % L_LB)
    A("v_add_u32 v88, s55, v88")
    A("v_and_b32 v8, 1, v3\nv_lshlrev_b32 v8, 4, v8\nv_mov_b32 v91, 0xffff\nv_lshlrev_b32 v91, v8, v91")
    A("v_and_b32 v8, 3, v3")
    A("v_cmp_gt_u32 vcc, 2, v8")
    A("v_lshlrev_b32 v92, 4, v0\ns_add_u32 s55, s47, %d\nv_add_u32 v92, s55, v92" % L_OP)
    A("v_cndmask_b32 v89, 0, v91, vcc")
    A("v_cndmask_b32 v90, v91, 0, vcc")
    A("s_mov_b32 s53, 0x3db504f3")
    A("s_mov_b32 s54, 0x3fb8aa3b")
    lds_spin(93, 0, 1, 8)
    stamp(3)
    for t in range(4):
        A("ds_read_b128 v[%d:%d], v14 offset:%d" % (16 + 4 * t, 19 + 4 * t, t * 64))
    A("s_waitcnt vmcnt(%d)" % nv1)
    def kfr(T, buf):
        for t in range(4):
            A("ds_read_b128 v[%d:%d], v%d offset:%d" % (buf + 4 * t, buf + 4 * t + 3, 10 + t, T * 4096))
    def qk(T, buf):
        for t in range(4):
            c = "0" if t == 0 else "v[%d:%d]" % (64 + 4 * T, 67 + 4 * T)
            A("v_mfma_f32_16x16x32_bf16 v[%d:%d], v[%d:%d], v[%d:%d], %s" % (64 + 4 * T, 67 + 4 * T, buf + 4 * t, buf + 4 * t + 3, 16 + 4 * t, 19 + 4 * t, c))
    kfr(0, 32); kfr(1, 48)
    A("s_waitcnt lgkmcnt(4)"); qk(0, 32)
    kfr(2, 32)
    A("s_waitcnt lgkmcnt(4)"); qk(1, 48)
    kfr(3, 48)
    A("s_waitcnt lgkmcnt(4)"); qk(2, 32)
    A("s_waitcnt lgkmcnt(0)"); qk(3, 48)
    def round_pair(a, b):
        A("v_cvt_pk_bf16_f32 v8, v%d, v%d" % (a, b))
        A("v_lshlrev_b32 v%d, 16, v8" % a)
        A("v_and_b32 v%d, 0xffff0000, v8" % b)
        A("v_mul_f32 v%d, s53, v%d" % (a, a))
        A("v_mul_f32 v%d, s53, v%d" % (b, b))
        A("v_cvt_pk_bf16_f32 v8, v%d, v%d" % (a, b))
        A("v_lshlrev_b32 v%d, 16, v8" % a)
        A("v_and_b32 v%d, 0xffff0000, v8" % b)
    for T in range(4):
        round_pair(64 + 4 * T, 65 + 4 * T); round_pair(66 + 4 * T, 67 + 4 * T)
    A("v_max3_f32 v8, v64, v65, v66")
    for i in range(67, 79, 2):
        A("v_max3_f32 v8, v8, v%d, v%d" % (i, i + 1))
    A("v_max_f32 v8, v8, v79")
    swap_red([8], [95], 16, "max"); swap_red([8], [95], 32, "max")
    A("s_lshl_b32 s55, s44, 2")
    A("v_add_u32 v95, s55, v15")
    A("s_mov_b32 exec_lo, 0x1111\ns_mov_b32 exec_hi, 0")
    A("ds_write_b32 v95, v8")
    A("s_mov_b64 exec, 1")
    A("ds_add_u32 v93, v94 offset:36")
    A("s_mov_b64 exec, -1")
    stamp(4)
    A("v_mul_f32 v95, s54, v8")
    for i in range(16):
        A("v_fma_f32 v%d, v%d, s54, -v95" % (64 + i, 64 + i))
    for i in range(16):
        A("v_exp_f32 v%d, v%d" % (64 + i, 64 + i))
    A("s_nop 0")
    A("v_add_f32 v8, v64, v65\nv_add_f32 v87, v66, v67")
    for i in range(4, 16, 2): A("v_add_f32 v8, v8, v%d\nv_add_f32 v87, v87, v%d" % (64 + i, 65 + i))
    A("v_add_f32 v8, v8, v87")
    for i in range(16):
        A("v_cvt_pk_bf16_f32 v%d, v%d, v%d" % (64 + i, 64 + i, 64 + i))
    swap_red([8], [87], 16, "add"); swap_red([8], [87], 32, "add")
    A("v_mov_b32 v16, v8")
    for idx in range(nv1, 16): vload(idx)
    lds_inc(93, 94, 8)
    stamp(5)
    lds_spin(93, 36, 8, 8, 1)
    A("ds_read_b128 v[32:35], v15")
    A("ds_read_b128 v[36:39], v15 offset:16")
    A("s_waitcnt lgkmcnt(0)")
    A("v_max3_f32 v8, v32, v33, v34\nv_max3_f32 v8, v8, v35, v36\nv_max3_f32 v8, v8, v37, v38\nv_max_f32 v8, v8, v39")
    A("v_fma_f32 v17, -v8, s54, v95")
    A("v_exp_f32 v17, v17\ns_nop 0")
    A("v_mul_f32 v16, v16, v17")
    A("s_mov_b32 exec_lo, 0x1111\ns_mov_b32 exec_hi, 0")
    A("ds_write_b32 v88, v16")
    A("s_mov_b64 exec, -1")
    for idx in range(16):
        ta = 32 + 2 * (idx & 3)
        A("v_and_b32 v%d, v%d, v89" % (ta, 64 + idx))
        A("v_and_b32 v%d, v%d, v90" % (ta + 1, 64 + idx))
        A("s_waitcnt vmcnt(%d)" % (15 - idx))
        c0 = "0" if idx == 0 else "v[80:83]"
        c1 = "0" if idx == 0 else "v[84:87]"
        A("s_nop 0")
        A("v_mfma_f32_16x16x16_bf16 v[80:83], v[%d:%d], v[%d:%d], %s" % (VB + 4 * idx, VB + 4 * idx + 1, ta, ta + 1, c0))
        A("v_mfma_f32_16x16x16_bf16 v[84:87], v[%d:%d], v[%d:%d], %s" % (VB + 4 * idx + 2, VB + 4 * idx + 3, ta, ta + 1, c1))
    stamp(6)
    A("s_nop 6")
    for i in range(8): A("v_mul_f32 v%d, v%d, v17" % (80 + i, 80 + i))
    A("ds_write_b128 v92, v[80:83]")
    A("ds_write_b128 v92, v[84:87] offset:1024")
    lds_inc(93, 94, 24)
    stamp(7)
    A("s_cmp_lg_u32 s40, 0")
    A("s_cbranch_scc1 L_s_D")
    A("s_cmp_eq_u32 s39, 0")
    A("s_cbranch_scc1 L_stream_end")
    A("s_lshl_b32 s45, s36, 4\ns_add_u32 s45, s45, s6\ns_mul_i32 s45, s45, %d\ns_lshl_b32 s46, s44, 10\ns_add_u32 s45, s45, s46\ns_add_u32 s45, s45, %d" % (NJ * 128, W_OUT))
    A("v_lshlrev_b32 v6, 4, v0\nv_add_u32 v6, s45, v6")
    A("v_and_b32 v7, 7, v0\nv_lshlrev_b32 v7, 4, v7\ns_lshl_b32 s45, s44, 7\ns_add_u32 s45, s45, %d\nv_add_u32 v7, s45, v7" % L_EP)
    A("s_barrier")
    A("s_barrier")
    A("s_cmp_eq_u32 s44, 7\ns_cbranch_scc1 L_s_e1")
    poll1("global_load_dwordx4 v[16:19], v6, s[32:33]%s" % SC, 19)
    stamp(9)
    red8rows([16, 17, 18, 19], [24, 25, 26, 27])
    A("s_mov_b64 exec, 0xff")
    A("ds_write_b128 v7, v[16:19]")
    A("s_mov_b64 exec, -1")
    A("s_waitcnt lgkmcnt(0)")
    A("L_s_e1:")
    A("s_barrier")
    A("s_branch L_stream_end")
    A("L_s_D:")
    A("v_mov_b32 v90, %d" % L_FL)
    A("v_lshrrev_b32 v8, 2, v3\nv_lshl_add_u32 v8, v2, 3, v8")
    A("v_and_b32 v93, 3, v3\nv_lshlrev_b32 v93, 3, v93")
    A("v_lshl_add_u32 v4, v8, 6, v93\nv_add_u32 v4, s47, v4")
    A("v_lshlrev_b32 v5, 2, v93\nv_lshl_add_u32 v5, v8, 7, v5\nv_add_u32 v5, s47, v5")
    A("v_and_b32 v6, 3, v3\nv_lshlrev_b32 v6, 10, v6\nv_lshl_add_u32 v6, v2, 4, v6")
    A("s_lshl_b32 s58, s44, 7\ns_add_u32 s58, s58, %d" % L_XH)
    A("v_add_u32 v6, s58, v6")
    A("v_lshlrev_b32 v7, 2, v0\ns_lshl_b32 s58, s44, 8\ns_add_u32 s58, s58, %d\nv_add_u32 v7, s58, v7" % L_ZP)
    A("v_lshlrev_b32 v11, 2, v0\ns_lshl_b32 s58, s44, 11\ns_add_u32 s58, s58, %d\nv_add_u32 v11, s58, v11" % L_ZP)
    A("v_lshrrev_b32 v10, 2, v3\nv_lshlrev_b32 v10, 6, v10\nv_lshl_add_u32 v10, v2, 4, v10\nv_add_u32 v10, %d, v10" % L_H1)
    A("v_mov_b32 v92, %d\nv_and_b32 v91, 3, v3" % L_Z)
    for t in range(4):
        A("v_cmp_eq_u32 vcc, %d, v91\ns_nop 1\nv_cndmask_b32 v%d, v92, v10, vcc" % (t, 94 + t))
    A("v_mov_b32 v24, 0\nv_mov_b32 v25, 0\nv_mov_b32 v26, 0\nv_mov_b32 v27, 0\nds_write_b128 v92, v[24:27]")
    A("v_lshrrev_b32 v15, 2, v3")
    A("v_cmp_eq_u32 s[56:57], 1, v15\nv_cmp_eq_u32 s[58:59], 2, v15\nv_cmp_eq_u32 s[48:49], 3, v15")
    A("v_lshrrev_b32 v12, 2, v3\nv_lshlrev_b32 v12, 4, v12\nv_lshrrev_b32 v24, 1, v2\nv_add_u32 v12, v12, v24\nv_mul_u32_u24 v12, %d, v12" % (NJ * 128))
    A("v_and_b32 v24, 1, v2\nv_lshl_add_u32 v12, v24, 6, v12\nv_lshl_add_u32 v12, v91, 4, v12")
    A("s_mul_i32 s45, s44, %d\ns_lshl_b32 s46, s41, 7\ns_add_u32 s45, s45, s46\ns_add_u32 s45, s45, %d" % (2 * NJ * 128, W_OUT))
    A("v_add_u32 v12, s45, v12")
    A("v_lshlrev_b32 v13, 4, v0\ns_lshl_b32 s45, s44, 11\ns_lshl_b32 s46, s34, 13\ns_add_u32 s45, s45, s46\ns_add_u32 s45, s45, %d\nv_add_u32 v13, s45, v13" % W_H)
    A("v_lshlrev_b32 v14, 3, v0\ns_lshl_b32 s45, s44, 10\ns_add_u32 s45, s45, %d\nv_add_u32 v14, s45, v14" % L_XH)
    A("v_lshl_add_u32 v15, v2, 2, v15")
    A("s_and_b32 s45, s44, 1\ns_lshl_b32 s45, s45, 4\nv_add_u32 v15, s45, v15")
    A("v_lshlrev_b32 v9, 2, v15\nv_add_u32 v9, %d, v9" % L_B1)
    A("ds_read_b32 v88, v9")
    A("v_and_b32 v9, 3, v3\nv_lshlrev_b32 v9, 6, v9\nv_lshl_add_u32 v9, v15, 1, v9\nv_add_u32 v9, %d, v9" % L_H1)
    A("v_mov_b32 v89, 0x3d372713")
    lds_spin(90, 28, 1, 91, 1)
    for ft in range(2):
        for ks in range(2):
            fr = 32 + 8 * ft + 4 * ks
            A("ds_read_b64_tr_b16 v[%d:%d], v4 offset:%d" % (fr, fr + 1, ks * 2048 + ft * 32))
            A("ds_read_b64_tr_b16 v[%d:%d], v4 offset:%d" % (fr + 2, fr + 3, ks * 2048 + ft * 32 + 256))
    A("s_waitcnt lgkmcnt(0)")
    for t in range(4):
        A("ds_read_b64_tr_b16 v[%d:%d], v5 offset:%d" % (48 + 4 * t, 49 + 4 * t, 4096 + t * 8))
        A("ds_read_b64_tr_b16 v[%d:%d], v5 offset:%d" % (50 + 4 * t, 51 + 4 * t, 4096 + t * 8 + 512))
    A("s_waitcnt lgkmcnt(0)")
    stamp(8)
    A("s_cmp_ge_u32 s44, 4")
    A("s_cbranch_scc1 L_d1")
    if sD: A("s_sleep %d" % sD)
    hop([("global_load_dwordx4 v[100:103], v13, s[32:33]%s" % SC, [103]), ("global_load_dwordx4 v[104:107], v13, s[32:33] offset:1024%s" % SC, [107])], 24, pipe=PIPE)
    stamp(9)
    A("v_add_f32 v24, v100, v101\nv_add_f32 v25, v102, v103\nv_add_f32 v26, v104, v105\nv_add_f32 v27, v106, v107")
    A("v_add_f32 v24, v24, v25\nv_add_f32 v26, v26, v27\nv_add_f32 v24, v24, v26")
    red16([24]); swap_red([24], [25], 16); swap_red([24], [25], 32)
    A("v_mul_f32 v24, 0x3b000000, v24")
    for i in range(8): A("v_sub_f32 v%d, v%d, v24" % (16 + i, 100 + i))
    A("v_mul_f32 v25, v16, v16\nv_mul_f32 v26, v17, v17")
    for i in range(2, 8, 2): A("v_fma_f32 v25, v%d, v%d, v25\nv_fma_f32 v26, v%d, v%d, v26" % (16 + i, 16 + i, 17 + i, 17 + i))
    A("v_add_f32 v25, v25, v26")
    red16([25]); swap_red([25], [26], 16); swap_red([25], [26], 32)
    A("v_mul_f32 v25, 0x3b000000, v25")
    A("v_add_f32 v26, 0x3727c5ac, v25")
    A("v_rcp_f32 v27, v26\nv_rsq_f32 v26, v26\ns_nop 0")
    A("v_mul_f32 v27, v25, v27")
    A("v_add_f32 v27, 0x3727c5ac, v27")
    A("v_rsq_f32 v27, v27\ns_nop 0")
    A("v_mul_f32 v26, v26, v27")
    for i in range(8): A("v_mul_f32 v%d, v%d, v26" % (16 + i, 16 + i))
    for i in range(4): A("v_cvt_pk_bf16_f32 v%d, v%d, v%d" % (72 + i, 16 + 2 * i, 17 + 2 * i))
    if "dst" in exp: stamp(1)
    A("ds_write_b64 v14, v[72:73]")
    A("ds_write_b64 v14, v[74:75] offset:512")
    A("s_waitcnt lgkmcnt(0)")
    A("L_d1:")
    A("s_barrier")
    if "dst" in exp: stamp(2)
    for ks in range(2):
        A("ds_read_b128 v[%d:%d], v6 offset:%d" % (16 + 4 * ks, 19 + 4 * ks, ks * 64))
    for ks in range(2):
        A("s_waitcnt lgkmcnt(%d)" % (1 - ks))
        for ft in range(2):
            c = "0" if ks == 0 else "v[%d:%d]" % (80 + 4 * ft, 83 + 4 * ft)
            A("v_mfma_f32_16x16x32_bf16 v[%d:%d], v[%d:%d], v[%d:%d], %s" % (80 + 4 * ft, 83 + 4 * ft, 32 + 8 * ft + 4 * ks, 35 + 8 * ft + 4 * ks, 16 + 4 * ks, 19 + 4 * ks, c))
    A("s_nop 6")
    A("v_cndmask_b32 v80, v80, v81, s[56:57]\nv_cndmask_b32 v80, v80, v82, s[58:59]\nv_cndmask_b32 v80, v80, v83, s[48:49]")
    A("v_cndmask_b32 v84, v84, v85, s[56:57]\nv_cndmask_b32 v84, v84, v86, s[58:59]\nv_cndmask_b32 v84, v84, v87, s[48:49]")
    if "dst" in exp: stamp(3)
    A("ds_write_b32 v7, v80")
    A("ds_write_b32 v7, v84 offset:2048")
    A("s_waitcnt lgkmcnt(0)")
    A("s_barrier")
    if "dst" in exp: stamp(4)
    A("s_cmp_ge_u32 s44, 2")
    A("s_cbranch_scc1 L_d3")
    for w_ in range(8): A("ds_read_b32 v%d, v11 offset:%d" % (16 + w_, w_ * 256))
    A("s_waitcnt lgkmcnt(0)")
    A("v_add_f32 v16, v16, v17\nv_add_f32 v18, v18, v19\nv_add_f32 v20, v20, v21\nv_add_f32 v22, v22, v23")
    A("v_add_f32 v16, v16, v18\nv_add_f32 v20, v20, v22\nv_add_f32 v18, v16, v20")
    bf16r(18, 18)
    A("v_add_f32 v18, v18, v88")
    bf16r(18, 18)
    A("v_mul_f32 v19, v18, v18")
    A("v_fma_f32 v19, v19, v89, 1.0")
    A("v_mul_f32 v19, v19, v18")
    A("v_mul_f32 v19, 0xc0135761, v19")
    A("v_exp_f32 v19, v19\ns_nop 0")
    A("v_add_f32 v19, 1.0, v19")
    A("v_rcp_f32 v19, v19\ns_nop 0")
    A("v_mul_f32 v18, v18, v19")
    A("v_cvt_pk_bf16_f32 v18, v18, v18")
    if "dst" in exp: stamp(5)
    A("ds_write_b16 v9, v18")
    A("s_waitcnt lgkmcnt(0)")
    A("L_d3:")
    A("s_barrier")
    if "dst" in exp: stamp(6)
    for t in range(4): A("ds_read_b128 v[%d:%d], v%d" % (16 + 4 * t, 19 + 4 * t, 94 + t))
    for t in range(4):
        A("s_waitcnt lgkmcnt(%d)" % (3 - t))
        c = "0" if t == 0 else "v[64:67]"
        A("v_mfma_f32_16x16x32_bf16 v[64:67], v[%d:%d], v[%d:%d], %s" % (48 + 4 * t, 51 + 4 * t, 16 + 4 * t, 19 + 4 * t, c))
    A("s_nop 7")
    A("global_store_dwordx4 v12, v[64:67], s[32:33]%s" % SC)
    stamp(10)
    A("L_stream_end:")
    stamp(11)
    stamp_flush()
    A("s_endpgm")

    A("L_chain:")
    A("s_cmp_lg_u32 s3, 2\ns_cbranch_scc1 L_c_nz")
    A("v_mov_b32 v8, 0\nv_mov_b32 v9, 0\nv_mov_b32 v10, 0\nv_mov_b32 v11, 0")
    A("v_mov_b32 v7, %d" % L_FL)
    for i in range(4): A("ds_write_b128 v7, v[8:11] offset:%d" % (16 * i))
    A("L_c_nz:")
    A("s_lshl_b32 s38, s34, 2\ns_add_u32 s38, s38, s36")
    roles()
    A("s_lshl_b32 s44, s34, 10\ns_lshl_b32 s45, s36, 6\ns_add_u32 s44, s44, s45\ns_and_b32 s45, s37, 1\ns_lshl_b32 s45, s45, 5\ns_add_u32 s44, s44, s45")
    A("s_lshr_b32 s45, s37, 1\ns_lshl_b32 s45, s45, 3\ns_add_u32 s44, s44, s45\ns_add_u32 s44, s44, %d" % W_ML)
    A("v_and_b32 v102, 3, v0\nv_lshlrev_b32 v102, 8, v102\nv_add_u32 v102, s44, v102")
    A("s_lshr_b32 s45, s35, 1\ns_and_b32 s45, s45, 3")
    A("s_lshl_b32 s44, s34, 16\ns_lshl_b32 s46, s45, 12\ns_add_u32 s44, s44, s46\ns_lshl_b32 s46, s36, 10\ns_add_u32 s44, s44, s46")
    A("s_and_b32 s46, s35, 1\ns_lshl_b32 s46, s46, 9\ns_add_u32 s44, s44, s46\ns_add_u32 s44, s44, %d" % W_QP)
    A("v_and_b32 v103, 3, v3\nv_lshlrev_b32 v103, 14, v103\nv_lshl_add_u32 v103, v2, 5, v103\nv_add_u32 v103, s44, v103")
    A("v_mov_b32 v100, %d\nv_mov_b32 v101, 1\nv_mov_b32 v126, 0" % L_FL)
    A("s_waitcnt lgkmcnt(0)")
    A("s_load_dword s62, s[32:33], 0")
    A("s_cmp_eq_u32 s3, 0\ns_cbranch_scc1 L_c0")
    A("s_barrier")
    A("s_cmp_eq_u32 s3, 1\ns_cbranch_scc1 L_c1")
    A("s_cmp_eq_u32 s3, 2\ns_cbranch_scc1 L_c2")
    A("s_branch L_c3")
    A("L_c0:")
    A("v_lshlrev_b32 v6, 10, v2\nv_lshl_add_u32 v7, v3, 6, v6")
    for i in range(4):
        A("global_load_dwordx4 v[%d:%d], v7, s[8:9] offset:%d" % (16 + 4 * i, 19 + 4 * i, i * 16))
    A("s_lshl_b32 s46, s45, 8")
    A("v_lshl_add_u32 v7, v3, 4, v6\nv_add_u32 v7, s46, v7")
    A("global_load_dwordx4 v[12:15], v7, s[8:9]")
    A("s_lshl_b32 s44, s45, 20\ns_lshl_b32 s46, s34, 10\ns_add_u32 s44, s44, s46\ns_lshl_b32 s46, s36, 8\ns_add_u32 s44, s44, s46")
    A("s_and_b32 s46, s35, 1\ns_lshl_b32 s46, s46, 7\ns_add_u32 s44, s44, s46")
    A("s_add_u32 s46, s14, s44\ns_addc_u32 s47, s15, 0")
    A("v_lshrrev_b32 v7, 3, v0\nv_lshlrev_b32 v7, 13, v7\nv_and_b32 v8, 7, v0\nv_lshl_add_u32 v7, v8, 4, v7")
    A("s_mov_b32 s48, %d" % L_ST)
    for i in range(16):
        A("s_mov_b32 m0, s48\ns_add_u32 s48, s48, 1024")
        A("global_load_lds_dwordx4 v7, s[46:47]")
        A("s_add_u32 s46, s46, 0x10000\ns_addc_u32 s47, s47, 0")
    A("s_barrier")
    stamp(1)
    A("s_waitcnt vmcnt(16)")
    tags()
    for i in range(16):
        A("v_lshlrev_b32 v%d, 16, v%d\nv_and_b32 v%d, 0xffff0000, v%d" % (32 + 2 * i, 16 + i, 33 + 2 * i, 16 + i))
    A("v_add_f32 v64, v32, v33\nv_add_f32 v65, v34, v35\nv_add_f32 v66, v36, v37\nv_add_f32 v67, v38, v39")
    for i in range(8, 32, 4):
        A("v_add_f32 v64, v64, v%d\nv_add_f32 v65, v65, v%d\nv_add_f32 v66, v66, v%d\nv_add_f32 v67, v67, v%d" % (32 + i, 33 + i, 34 + i, 35 + i))
    A("v_add_f32 v64, v64, v65\nv_add_f32 v66, v66, v67\nv_add_f32 v64, v64, v66")
    red16([64])
    A("v_mul_f32 v64, 0x3b000000, v64")
    A("v_mov_b32 v65, 0\nv_mov_b32 v66, 0")
    for i in range(0, 32, 2):
        A("v_sub_f32 v67, v%d, v64\nv_sub_f32 v68, v%d, v64\nv_fma_f32 v65, v67, v67, v65\nv_fma_f32 v66, v68, v68, v66" % (32 + i, 33 + i))
    A("v_add_f32 v65, v65, v66")
    red16([65])
    A("v_mul_f32 v65, 0x3b000000, v65")
    bf16r(64, 64); bf16r(65, 65)
    A("v_add_f32 v65, 0x3727c5ac, v65"); bf16r(65, 65)
    A("v_sqrt_f32 v65, v65\ns_nop 0"); bf16r(65, 65)
    A("v_rcp_f32 v65, v65")
    for i in range(4):
        a, b = 32 + 2 * i, 33 + 2 * i
        A("v_lshlrev_b32 v%d, 16, v%d\nv_and_b32 v%d, 0xffff0000, v%d" % (a, 12 + i, b, 12 + i))
        A("v_sub_f32 v%d, v%d, v64\nv_sub_f32 v%d, v%d, v64" % (a, a, b, b))
        A("v_cvt_pk_bf16_f32 v66, v%d, v%d" % (a, b))
        A("v_lshlrev_b32 v%d, 16, v66\nv_and_b32 v%d, 0xffff0000, v66" % (a, b))
        A("v_mul_f32 v%d, v%d, v65\nv_mul_f32 v%d, v%d, v65" % (a, a, b, b))
        A("v_cvt_pk_bf16_f32 v%d, v%d, v%d" % (16 + i, a, b))
    A("v_lshlrev_b32 v6, 8, v2\nv_lshl_add_u32 v6, v3, 4, v6\nv_add_u32 v6, %d, v6" % L_XH)
    A("ds_write_b128 v6, v[16:19]")
    A("v_lshrrev_b32 v8, 2, v3\nv_lshl_add_u32 v8, v2, 3, v8\nv_and_b32 v9, 3, v3\nv_lshlrev_b32 v12, 3, v9")
    A("v_lshl_add_u32 v12, v8, 7, v12\nv_add_u32 v12, %d, v12" % L_ST)
    A("v_lshlrev_b32 v13, 8, v9\nv_lshl_add_u32 v13, v2, 4, v13\nv_add_u32 v13, %d, v13" % L_XH)
    A("s_waitcnt vmcnt(0) lgkmcnt(0)")
    stamp(2)
    for ks in range(4):
        A("ds_read_b128 v[%d:%d], v13 offset:%d" % (16 + 4 * ks, 19 + 4 * ks, ks * 64))
    for ks in range(4):
        for t in range(4):
            A("ds_read_b64_tr_b16 v[%d:%d], v12 offset:%d" % (32 + 4 * t, 33 + 4 * t, ks * 4096 + t * 32))
            A("ds_read_b64_tr_b16 v[%d:%d], v12 offset:%d" % (34 + 4 * t, 35 + 4 * t, ks * 4096 + t * 32 + 512))
        for t in range(4):
            A("s_waitcnt lgkmcnt(%d)" % (6 - 2 * t))
            c = "0" if ks == 0 else "v[%d:%d]" % (64 + 4 * t, 67 + 4 * t)
            A("v_mfma_f32_16x16x32_bf16 v[%d:%d], v[%d:%d], v[%d:%d], %s" % (64 + 4 * t, 67 + 4 * t, 32 + 4 * t, 35 + 4 * t, 16 + 4 * ks, 19 + 4 * ks, c))
    A("v_mov_b32 v34, s42\nv_mov_b32 v35, s43\nv_mov_b32 v38, s42\nv_mov_b32 v39, s43")
    A("s_mov_b32 exec_lo, 0x000f000f\ns_mov_b32 exec_hi, 0x000f000f")
    A("s_nop 4")
    for t in range(4):
        A("v_mov_b32 v32, v%d\nv_mov_b32 v33, v%d\nv_mov_b32 v36, v%d\nv_mov_b32 v37, v%d" % (64 + 4 * t, 65 + 4 * t, 66 + 4 * t, 67 + 4 * t))
        A("global_store_dwordx4 v103, v[32:35], s[32:33] offset:%d%s" % (t * 128, SC))
        A("global_store_dwordx4 v103, v[36:39], s[32:33] offset:%d%s" % (t * 128 + 16, SC))
        A("s_nop 1")
    A("s_mov_b64 exec, -1")
    lds_set(100, 101, 12)
    stamp(3)
    A("s_branch L_c_pre")
    A("L_c1:")
    A("s_lshl_b32 s44, s34, 16\ns_lshl_b32 s45, s36, 14\ns_add_u32 s44, s44, s45\ns_add_u32 s44, s44, %d" % W_QP)
    A("v_lshlrev_b32 v6, 4, v0\nv_add_u32 v6, s44, v6\nv_add_u32 v7, 4096, v6\nv_add_u32 v8, 4096, v7\nv_add_u32 v9, 4096, v8")
    tags()
    p = poll_begin("s61")
    A("ds_read_b32 v20, v100 offset:4")
    A("s_waitcnt lgkmcnt(0)")
    A("v_cmp_gt_u32 vcc, %d, v20" % qk_at)
    poll_end(p, 4, "s61")
    stamp(2)
    p = poll_begin()
    for i in range(16):
        A("global_load_dwordx4 v[%d:%d], v%d, s[32:33] offset:%d%s" % (32 + 4 * i, 35 + 4 * i, 6 + (i >> 2), (i & 3) * 1024, SC))
    lds_set(100, 101, 16)
    A("s_waitcnt vmcnt(0)")
    for i in range(16):
        A("v_xor_b32 v%d, s42, v%d\nv_xor_b32 v%d, s43, v%d" % (34 + 4 * i, 34 + 4 * i, 35 + 4 * i, 35 + 4 * i))
    A("v_or3_b32 v20, v34, v35, v38")
    A("v_or_b32 v20, v20, v39")
    for i in range(2, 16):
        A("v_or3_b32 v20, v20, v%d, v%d" % (34 + 4 * i, 35 + 4 * i))
    A("v_cmp_ne_u32 vcc, 0, v20")
    poll_end(p, sleep_q)
    for j in range(4):
        a = 32 + 4 * j
        A("v_pk_add_f32 v[%d:%d], v[%d:%d], v[%d:%d]" % (a, a + 1, a, a + 1, a + 16, a + 17))
        A("v_pk_add_f32 v[%d:%d], v[%d:%d], v[%d:%d]" % (a + 32, a + 33, a + 32, a + 33, a + 48, a + 49))
        A("v_pk_add_f32 v[%d:%d], v[%d:%d], v[%d:%d]" % (a, a + 1, a, a + 1, a + 32, a + 33))
    for j in range(4): A("v_cvt_pk_bf16_f32 v%d, v%d, v%d" % (16 + j, 32 + 4 * j, 33 + 4 * j))
    A("v_lshlrev_b32 v7, 2, v0\nv_add_u32 v7, %d, v7" % L_Q)
    for j in range(4): A("ds_write_b32 v7, v%d offset:%d" % (16 + j, j * 256))
    lds_set(100, 101, 0)
    stamp(3)
    A("s_branch L_c_pre")
    A("L_c2:")
    A("v_mov_b32 v12, -1\nv_mov_b32 v13, -1\nv_mov_b32 v14, -1\nv_mov_b32 v15, -1")
    A("v_lshrrev_b32 v16, 5, v0\nv_lshlrev_b32 v16, 14, v16\nv_and_b32 v17, 31, v0\nv_lshl_add_u32 v16, v17, 4, v16")
    A("s_lshl_b32 s44, s34, 16\ns_lshl_b32 s45, s36, 12\ns_add_u32 s44, s44, s45\ns_lshl_b32 s45, s37, 9\ns_add_u32 s44, s44, s45\ns_add_u32 s44, s44, %d" % W_OP)
    A("v_add_u32 v16, s44, v16")
    A("global_store_dwordx4 v16, v[12:15], s[32:33]%s" % SC)
    A("v_add_u32 v17, 0x8000, v16")
    A("global_store_dwordx4 v17, v[12:15], s[32:33]%s" % SC)
    A("global_store_dwordx2 v102, v[12:13], s[32:33]%s" % SC)
    A("v_lshlrev_b32 v18, 4, v2\nv_bfe_u32 v19, v0, 3, 1\nv_add_u32 v18, v18, v19\nv_lshlrev_b32 v18, 12, v18\nv_and_b32 v19, 7, v0\nv_lshl_add_u32 v18, v19, 4, v18")
    A("s_lshl_b32 s45, s38, 7\ns_add_u32 s45, s45, %d" % W_HP)
    A("s_cmp_lg_u32 s40, 0\ns_cbranch_scc1 L_c2h")
    A("s_lshl_b32 s44, s37, 13\ns_add_u32 s44, s44, s45")
    A("v_add_u32 v19, s44, v18")
    A("global_store_dwordx4 v19, v[12:15], s[32:33]%s" % SC)
    A("s_cmp_eq_u32 s63, 0\ns_cbranch_scc1 L_c2h")
    A("s_sub_u32 s44, s37, 2\ns_and_b32 s44, s44, 7\ns_lshl_b32 s44, s44, 13\ns_add_u32 s44, s44, s45")
    A("v_add_u32 v19, s44, v18")
    A("global_store_dwordx4 v19, v[12:15], s[32:33]%s" % SC)
    A("L_c2h:")
    A("s_cmp_eq_u32 s39, 0\ns_cbranch_scc1 L_c2a")
    A("s_lshl_b32 s44, s36, 11\ns_lshl_b32 s45, s6, 7\ns_add_u32 s44, s44, s45\ns_add_u32 s44, s44, %d" % W_H)
    A("v_lshrrev_b32 v19, 3, v0\nv_lshlrev_b32 v19, 13, v19\nv_and_b32 v20, 7, v0\nv_lshl_add_u32 v19, v20, 4, v19\nv_add_u32 v19, s44, v19")
    A("global_store_dwordx4 v19, v[12:15], s[32:33]%s" % SC)
    A("L_c2a:")
    A("s_cmp_eq_u32 s40, 0\ns_cbranch_scc1 L_c2b")
    A("v_lshrrev_b32 v19, 3, v0\nv_mul_u32_u24 v19, %d, v19\nv_and_b32 v20, 7, v0\nv_lshl_add_u32 v19, v20, 4, v19" % (NJ * 128))
    A("s_lshl_b32 s44, s41, 7\ns_add_u32 s44, s44, %d" % W_OUT)
    A("v_add_u32 v19, s44, v19")
    for i in range(8):
        A("global_store_dwordx4 v19, v[12:15], s[32:33]%s" % SC)
        A("v_add_u32 v19, %d, v19" % (8 * NJ * 128))
    A("L_c2b:")
    A("s_waitcnt vmcnt(0)")
    tags()
    A("s_getreg_b32 s44, hwreg(HW_REG_XCC_ID)\ns_and_b32 s44, s44, 7\ns_xor_b32 s44, s44, s43")
    A("v_mov_b32 v20, s42\nv_mov_b32 v21, s44")
    A("s_lshl_b32 s44, s34, 5\ns_add_u32 s44, s44, s35\ns_lshl_b32 s44, s44, 3\ns_add_u32 s44, s44, %d\nv_mov_b32 v22, s44" % W_FLAG)
    A("s_mov_b64 exec, 1")
    A("global_store_dwordx2 v22, v[20:21], s[32:33]%s" % SC)
    A("s_mov_b64 exec, -1")
    stamp(3)
    A("s_branch L_c_join")
    A("L_c3:")
    if "pf" in exp:
        A("s_cmp_ge_u32 s35, 2\ns_cbranch_scc1 L_c3_nopf")
        A("s_getpc_b64 s[44:45]")
        A("L_pc_here:")
        A("s_sub_u32 s44, s44, L_pc_here-%s\ns_subb_u32 s45, s45, 0" % K)
        A("v_lshlrev_b32 v6, 4, v0")
        for i in range(13):
            A("global_load_dwordx4 v[32:35], v6, s[44:45]")
            A("v_add_u32 v6, 1024, v6")
        A("L_c3_nopf:")
    A("s_cmp_eq_u32 s40, 0\ns_cbranch_scc1 L_c3a")
    A("s_lshl_b32 s44, s41, 6")
    A("v_and_b32 v6, 31, v0\nv_lshlrev_b32 v7, 1, v6\nv_add_u32 v7, s44, v7")
    A("global_load_ushort v8, v7, s[22:23]")
    A("v_lshlrev_b32 v6, 2, v6\nv_add_u32 v6, %d, v6" % L_B1)
    A("s_waitcnt vmcnt(0)")
    A("v_lshlrev_b32 v8, 16, v8")
    A("ds_write_b32 v6, v8")
    A("L_c3a:")
    tags()
    lds_spin(100, 16, 1, 20, 4)
    A("v_lshlrev_b32 v8, 4, v0\nv_add_u32 v8, %d, v8" % W_FLAG)
    p = poll_begin()
    A("global_load_dwordx4 v[16:19], v8, s[32:33]%s" % SC)
    A("global_load_dwordx4 v[20:23], v8, s[32:33] offset:1024%s" % SC)
    A("s_waitcnt vmcnt(0)")
    for a in (16, 18, 20, 22):
        A("v_xor_b32 v%d, s42, v%d\nv_xor_b32 v%d, s43, v%d" % (a, a, a + 1, a + 1))
    A("v_or3_b32 v24, v16, v18, v20\nv_or_b32 v24, v24, v22")
    A("v_or3_b32 v25, v17, v19, v21\nv_or_b32 v25, v25, v23\nv_lshrrev_b32 v25, 3, v25")
    A("v_or_b32 v24, v24, v25")
    A("v_cmp_ne_u32 vcc, 0, v24")
    poll_end(p, 8)
    A("s_getreg_b32 s44, hwreg(HW_REG_XCC_ID)\ns_and_b32 s44, s44, 7")
    A("s_cmp_lt_u32 s34, 4\ns_cbranch_scc1 L_c3lo")
    A("v_mov_b32 v17, v21\nv_mov_b32 v19, v23")
    A("L_c3lo:")
    A("v_xor_b32 v17, s44, v17\nv_xor_b32 v19, s44, v19\nv_or_b32 v17, v17, v19")
    A("v_xor_b32 v24, s34, v2\nv_and_b32 v24, 3, v24")
    A("v_cmp_eq_u32 vcc, 0, v24\ns_nop 1\nv_cndmask_b32 v17, 0, v17, vcc")
    A("v_cmp_ne_u32 vcc, 0, v17")
    A("s_cmp_eq_u64 vcc, 0\ns_cbranch_scc0 L_c3nf")
    if "nofast" not in exp: lds_set(100, 101, 32)
    A("L_c3nf:")
    lds_set(100, 101, 40)
    stamp(3)
    A("s_branch L_c_join")
    A("L_c_pre:")
    A("L_c_join:")
    A("v_and_b32 v9, 7, v0\nv_lshlrev_b32 v9, 3, v9")
    A("s_lshl_b32 s44, s36, 10\ns_lshl_b32 s45, s6, 6\ns_add_u32 s44, s44, s45")
    A("v_add_u32 v126, s44, v9")
    A("v_add_u32 v11, s45, v9")
    A("global_load_dwordx2 v[120:121], v126, s[8:9]")
    A("global_load_dwordx2 v[122:123], v11, s[26:27]")
    A("global_load_dwordx2 v[124:125], v126, s[28:29]")
    A("s_lshl_b32 s44, s38, 14\ns_lshl_b32 s45, s3, 12\ns_add_u32 s44, s44, s45\ns_add_u32 s44, s44, %d" % W_OP)
    A("v_lshlrev_b32 v6, 4, v0\nv_add_u32 v6, s44, v6")
    A("s_lshl_b32 s44, s38, 8\ns_lshl_b32 s45, s3, 6\ns_add_u32 s44, s44, s45\ns_add_u32 s44, s44, %d" % W_ML)
    A("v_lshrrev_b32 v7, 5, v0\nv_lshlrev_b32 v7, 5, v7\nv_add_u32 v7, s44, v7")
    A("v_and_b32 v8, 31, v0\nv_lshlrev_b32 v8, 3, v8\ns_lshl_b32 s45, s3, 8\ns_add_u32 s45, s45, %d\nv_add_u32 v8, s45, v8" % L_OB)
    A("v_lshrrev_b32 v9, 2, v3\nv_lshlrev_b32 v9, 8, v9\nv_lshl_add_u32 v9, v2, 4, v9\nv_add_u32 v9, %d, v9" % L_OB)
    A("v_lshlrev_b32 v10, 16, v2\nv_lshl_add_u32 v10, v3, 2, v10")
    A("s_lshl_b32 s45, s38, 7\ns_lshr_b32 s46, s3, 1\ns_lshl_b32 s46, s46, 12\ns_add_u32 s45, s45, s46\ns_and_b32 s46, s3, 1\ns_lshl_b32 s46, s46, 6\ns_add_u32 s45, s45, s46\ns_add_u32 s45, s45, %d" % W_HP)
    A("s_sub_u32 s55, s37, 2\ns_and_b32 s55, s55, 7")
    A("s_lshl_b32 s44, s55, 13\ns_add_u32 s44, s44, s45\nv_add_u32 v99, s44, v10")
    A("s_lshl_b32 s44, s37, 13\ns_add_u32 s44, s44, s45\nv_add_u32 v10, s44, v10")
    A("v_lshrrev_b32 v11, 2, v3\nv_lshlrev_b32 v11, 14, v11\nv_lshl_add_u32 v11, v2, 7, v11\nv_and_b32 v13, 3, v3\nv_lshl_add_u32 v11, v13, 4, v11")
    A("s_lshl_b32 s44, s34, 16\ns_lshl_b32 s45, s36, 12\ns_add_u32 s44, s44, s45\ns_lshl_b32 s45, s37, 9\ns_add_u32 s44, s44, s45")
    A("s_lshl_b32 s45, s3, 6\ns_add_u32 s44, s44, s45\ns_add_u32 s44, s44, %d" % W_OP)
    A("v_add_u32 v11, s44, v11")
    A("v_lshlrev_b32 v13, 4, v0\ns_lshl_b32 s45, s3, 10\ns_add_u32 s45, s45, %d\nv_add_u32 v13, s45, v13" % L_OP)
    A("v_lshrrev_b32 v14, 2, v3\nv_lshl_add_u32 v14, v2, 3, v14\nv_and_b32 v15, 3, v3\nv_lshlrev_b32 v12, 3, v15")
    A("v_lshl_add_u32 v12, v14, 7, v12\ns_lshl_b32 s44, s3, 5\nv_add_u32 v98, s44, v12\nv_add_u32 v12, %d, v98" % L_ST)
    A("s_mov_b32 s54, 0x3fb8aa3b")
    A("v_bfe_u32 v16, v0, 3, 2\nv_lshlrev_b32 v16, 3, v16\nv_lshrrev_b32 v17, 5, v0\nv_add_u32 v16, v16, v17\nv_lshlrev_b32 v16, 10, v16")
    A("v_and_b32 v17, 7, v0\nv_lshl_add_u32 v97, v17, 4, v16")
    A("s_lshl_b32 s44, s38, 17\ns_lshl_b32 s45, s3, 15\ns_add_u32 s44, s44, s45")
    A("s_lshl_b32 s45, s37, 7\ns_add_u32 s45, s45, s44\ns_add_u32 s46, s16, s45\ns_addc_u32 s47, s17, 0")
    A("s_lshl_b32 s45, s55, 7\ns_add_u32 s45, s45, s44\ns_add_u32 s50, s16, s45\ns_addc_u32 s51, s17, 0")
    A("s_lshl_b32 s48, s3, 12\ns_add_u32 s48, s48, %d" % L_ST)
    stamp(4)
    A("s_cmp_lg_u32 s40, 0\ns_cbranch_scc1 L_c_nowo")
    lds_spin2(100, 8, 8, 12, 1, 20, 21, 2)
    for i in range(4):
        A("s_mov_b32 m0, s48\ns_add_u32 s48, s48, 1024")
        A("global_load_lds_dwordx4 v97, s[46:47]")
        A("s_add_u32 s46, s46, 2048\ns_addc_u32 s47, s47, 0")
    A("L_c_nowo:")
    A("s_cmp_eq_u32 s63, 0\ns_cbranch_scc1 L_c_nowo2")
    lds_spin(100, 36, 8, 20, 2)
    A("s_lshr_b32 s48, s3, 1\ns_lshl_b32 s48, s48, 14\ns_and_b32 s45, s3, 1\ns_lshl_b32 s45, s45, 12\ns_add_u32 s48, s48, s45")
    for i in range(4):
        A("s_mov_b32 m0, s48\ns_add_u32 s48, s48, 1024")
        A("global_load_lds_dwordx4 v97, s[50:51]")
        A("s_add_u32 s50, s50, 2048\ns_addc_u32 s51, s51, 0")
    A("L_c_nowo2:")
    A("s_cmp_eq_u32 s40, 0\ns_cbranch_scc1 L_c_nodw")
    A("s_cmp_lg_u32 s3, 3\ns_cbranch_scc1 L_c_nodw")
    if dw_late: lds_spin(100, 24, dw_late, 20, 2) if dw_late == 8 else None
    if dw_late and dw_late != 8:
        p = poll_begin("s61")
        A("ds_read_b32 v20, v100 offset:24")
        A("s_waitcnt lgkmcnt(0)")
        A("v_cmp_gt_u32 vcc, %d, v20" % dw_late)
        poll_end(p, 2, "s61")
    lds_spin2(100, 36, 8, 8, 8, 20, 21, 2)
    A("s_lshl_b32 s44, s41, 6\ns_add_u32 s46, s20, s44\ns_addc_u32 s47, s21, 0")
    A("s_lshl_b32 s44, s41, 15\ns_add_u32 s50, s24, s44\ns_addc_u32 s51, s25, 0")
    A("v_lshrrev_b32 v4, 2, v0\nv_mul_u32_u24 v4, 3584, v4\nv_and_b32 v5, 3, v0\nv_lshl_add_u32 v4, v5, 4, v4")
    A("v_lshrrev_b32 v5, 3, v0\nv_lshlrev_b32 v5, 10, v5\nv_and_b32 v6, 7, v0\nv_lshl_add_u32 v5, v6, 4, v5")
    A("s_mov_b32 s48, 0\ns_mov_b32 s49, 8")
    A("L_c_dwl:")
    A("s_waitcnt vmcnt(40)")
    for n in range(4):
        A("s_mov_b32 m0, s48\ns_add_u32 s48, s48, 1024")
        A("global_load_lds_dwordx4 v4, s[46:47]")
        A("s_add_u32 s46, s46, %d\ns_addc_u32 s47, s47, 0" % (16 * 3584))
    for n in range(4):
        A("s_mov_b32 m0, s48\ns_add_u32 s48, s48, 1024")
        A("global_load_lds_dwordx4 v5, s[50:51] offset:0")
        A("s_add_u32 s50, s50, 8192\ns_addc_u32 s51, s51, 0")
    A("s_add_u32 s48, s48, 8192")
    A("s_sub_u32 s50, s50, %d\ns_subb_u32 s51, s51, 0" % (4 * 8192 - 128))
    A("s_sub_u32 s49, s49, 1\ns_cmp_lg_u32 s49, 0\ns_cbranch_scc1 L_c_dwl")
    A("s_waitcnt vmcnt(0)")
    lds_set(100, 101, 28)
    stamp(6)
    A("s_branch L_chain_end")
    A("L_c_nodw:")
    A("v_and_b32 v14, 3, v0\nv_lshlrev_b32 v15, 5, v14\nv_add_u32 v15, %d, v15\nv_add_u32 v14, %d, v15" % (L_MB, L_LB - L_MB))
    A("v_add_u32 v16, 0x10000, v13")
    lds_spin(100, 40, 1, 26, 2)
    A("ds_read_b32 v26, v100 offset:32")
    A("s_waitcnt lgkmcnt(0)")
    A("v_readfirstlane_b32 s55, v26")
    stamp(5)
    A("s_cmp_eq_u32 s3, 3\ns_cbranch_scc1 L_c_b3")
    lds_spin(100, 24, 8, 26, 0)
    A("s_cmp_eq_u32 s3, 2\ns_cbranch_scc1 L_c_pml")
    for w_ in range(8):
        A("ds_read_b128 v[%d:%d], v%d offset:%d" % (56 + 4 * w_, 59 + 4 * w_, 13 if w_ < 4 else 16, (w_ & 3) * 16384))
    A("s_waitcnt lgkmcnt(4)")
    A("v_pk_add_f32 v[56:57], v[56:57], v[60:61]\nv_pk_add_f32 v[58:59], v[58:59], v[62:63]")
    A("v_pk_add_f32 v[64:65], v[64:65], v[68:69]\nv_pk_add_f32 v[66:67], v[66:67], v[70:71]")
    A("v_pk_add_f32 v[56:57], v[56:57], v[64:65]\nv_pk_add_f32 v[58:59], v[58:59], v[66:67]")
    A("s_waitcnt lgkmcnt(0)")
    A("v_pk_add_f32 v[72:73], v[72:73], v[76:77]\nv_pk_add_f32 v[74:75], v[74:75], v[78:79]")
    A("v_pk_add_f32 v[80:81], v[80:81], v[84:85]\nv_pk_add_f32 v[82:83], v[82:83], v[86:87]")
    A("v_pk_add_f32 v[56:57], v[56:57], v[72:73]\nv_pk_add_f32 v[58:59], v[58:59], v[74:75]")
    A("v_pk_add_f32 v[56:57], v[56:57], v[80:81]\nv_pk_add_f32 v[58:59], v[58:59], v[82:83]")
    A("s_cmp_eq_u32 s55, 0\ns_cbranch_scc1 L_c_oslow")
    A("global_store_dwordx4 v11, v[56:59], s[32:33]")
    A("s_branch L_c_b")
    A("L_c_oslow:")
    A("global_store_dwordx4 v11, v[56:59], s[32:33]%s" % SC)
    A("s_branch L_c_b")
    A("L_c_pml:")
    A("ds_read_b128 v[16:19], v14\nds_read_b128 v[20:23], v14 offset:16")
    A("ds_read_b128 v[28:31], v15\nds_read_b128 v[32:35], v15 offset:16")
    A("s_waitcnt lgkmcnt(0)")
    A("v_max3_f32 v24, v28, v29, v30\nv_max3_f32 v24, v24, v31, v32\nv_max3_f32 v24, v24, v33, v34\nv_max_f32 v24, v24, v35")
    A("v_add_f32 v16, v16, v17\nv_add_f32 v18, v18, v19\nv_add_f32 v20, v20, v21\nv_add_f32 v22, v22, v23")
    A("v_add_f32 v16, v16, v18\nv_add_f32 v20, v20, v22\nv_add_f32 v25, v16, v20")
    A("s_mov_b64 exec, 15")
    A("s_cmp_eq_u32 s55, 0\ns_cbranch_scc1 L_c_mslow")
    A("global_store_dwordx2 v102, v[24:25], s[32:33]")
    A("s_branch L_c_mdone")
    A("L_c_mslow:")
    A("global_store_dwordx2 v102, v[24:25], s[32:33]%s" % SC)
    A("L_c_mdone:")
    A("s_mov_b64 exec, -1")
    A("L_c_b:")
    A("s_cmp_lg_u32 s40, 0\ns_cbranch_scc1 L_c_dexit")
    A("s_waitcnt vmcnt(1)")
    A("s_branch L_c_b2")
    A("L_c_dexit:")
    stamp(6)
    A("s_branch L_chain_end")
    A("L_c_b3:")
    A("s_waitcnt vmcnt(0)")
    A("L_c_b2:")
    lds_inc(100, 101, 20)
    stamp(6)
    lds_spin(100, 20, 4, 20, 0)
    for ks in range(4):
        A("ds_read_b64_tr_b16 v[%d:%d], v12 offset:%d" % (104 + 4 * ks, 105 + 4 * ks, ks * 4096))
        A("ds_read_b64_tr_b16 v[%d:%d], v12 offset:%d" % (106 + 4 * ks, 107 + 4 * ks, ks * 4096 + 512))
    A("s_cmp_eq_u32 s63, 0\ns_cbranch_scc1 L_c_nof2")
    A("s_waitcnt lgkmcnt(0)")
    for ks in range(4):
        o_ = (ks >> 1) * 16384 + (ks & 1) * 4096
        A("ds_read_b64_tr_b16 v[%d:%d], v98 offset:%d" % (72 + 4 * ks, 73 + 4 * ks, o_))
        A("ds_read_b64_tr_b16 v[%d:%d], v98 offset:%d" % (74 + 4 * ks, 75 + 4 * ks, o_ + 512))
    A("L_c_nof2:")
    hop([("global_load_dwordx4 v[%d:%d], v6, s[32:33] offset:%d%s" % (32 + 4 * i, 35 + 4 * i, i * 1024, SC), [35 + 4 * i]) for i in range(4)] +
        [("global_load_dwordx4 v[48:51], v7, s[32:33]%s" % SC, [49, 51]), ("global_load_dwordx4 v[52:55], v7, s[32:33] offset:16%s" % SC, [53, 55])], 20, pipe=PIPE)
    stamp(7)
    A("v_max3_f32 v20, v48, v50, v52\nv_max_f32 v20, v20, v54")
    swap_red([20], [21], 32, "max")
    A("v_mul_f32 v20, s54, v20")
    for i in range(4): A("v_fma_f32 v%d, v%d, s54, -v20" % (56 + i, 48 + 2 * i))
    for i in range(4): A("v_exp_f32 v%d, v%d" % (56 + i, 56 + i))
    A("s_nop 0")
    for e in range(4):
        A("v_mul_f32 v%d, v56, v%d" % (20 + e, 32 + e))
    A("v_mul_f32 v24, v56, v49")
    for i in range(1, 4):
        for e in range(4):
            A("v_fma_f32 v%d, v%d, v%d, v%d" % (20 + e, 56 + i, 32 + 4 * i + e, 20 + e))
        A("v_fma_f32 v24, v%d, v%d, v24" % (56 + i, 49 + 2 * i))
    swap_red([20, 21, 22, 23, 24], [25, 26, 27, 28, 29], 32)
    A("v_rcp_f32 v24, v24\ns_nop 0")
    for e in range(4): A("v_mul_f32 v%d, v%d, v24" % (20 + e, 20 + e))
    A("v_cvt_pk_bf16_f32 v20, v20, v21\nv_cvt_pk_bf16_f32 v21, v22, v23")
    A("s_mov_b32 exec_hi, 0")
    A("ds_write_b64 v8, v[20:21]")
    A("s_mov_b64 exec, -1")
    A("s_waitcnt lgkmcnt(0)")
    A("s_barrier")
    for ks in range(4):
        A("ds_read_b128 v[%d:%d], v9 offset:%d" % (128 + 4 * ks, 131 + 4 * ks, ks * 64))
    for ks in range(4):
        A("s_waitcnt lgkmcnt(%d)" % (3 - ks))
        c = "0" if ks == 0 else "v[20:23]"
        A("v_mfma_f32_16x16x32_bf16 v[20:23], v[%d:%d], v[%d:%d], %s" % (128 + 4 * ks, 131 + 4 * ks, 104 + 4 * ks, 107 + 4 * ks, c))
    A("s_cmp_eq_u32 s63, 0\ns_cbranch_scc1 L_c_one")
    for ks in range(4):
        c = "0" if ks == 0 else "v[24:27]"
        A("v_mfma_f32_16x16x32_bf16 v[24:27], v[%d:%d], v[%d:%d], %s" % (128 + 4 * ks, 131 + 4 * ks, 72 + 4 * ks, 75 + 4 * ks, c))
    A("s_nop 1")
    A("global_store_dword v10, v20, s[32:33]%s" % SC)
    A("s_nop 4")
    A("global_store_dword v99, v24, s[32:33]%s" % SC)
    A("s_branch L_c_bdone")
    A("L_c_one:")
    A("s_nop 5")
    A("global_store_dword v10, v20, s[32:33]%s" % SC)
    A("L_c_bdone:")
    A("s_mov_b64 exec, -1")
    stamp(8)
    A("s_cmp_eq_u32 s39, 0\ns_cbranch_scc1 L_chain_end")
    A("s_lshl_b32 s46, s36, 4\ns_add_u32 s46, s46, s6")
    A("v_lshlrev_b32 v6, 4, v0\nv_and_b32 v7, 7, v0")
    A("s_lshl_b32 s44, s46, 12\ns_lshl_b32 s45, s3, 10\ns_add_u32 s44, s44, s45\ns_add_u32 s44, s44, %d\nv_add_u32 v9, s44, v6" % W_HP)
    A("v_lshlrev_b32 v10, 4, v7\nv_add_u32 v10, %d, v10" % L_CP)
    A("s_lshl_b32 s45, s3, 7\nv_add_u32 v11, s45, v10")
    A("s_lshl_b32 s44, s36, 11\ns_lshl_b32 s45, s6, 7\ns_add_u32 s44, s44, s45\ns_add_u32 s44, s44, %d" % W_H)
    A("v_lshrrev_b32 v8, 3, v0\nv_lshlrev_b32 v8, 13, v8\nv_lshl_add_u32 v8, v7, 4, v8\nv_add_u32 v8, s44, v8")
    A("v_lshlrev_b32 v110, 16, v120\nv_and_b32 v111, 0xffff0000, v120\nv_lshlrev_b32 v112, 16, v121\nv_and_b32 v113, 0xffff0000, v121")
    A("v_lshlrev_b32 v114, 16, v122\nv_and_b32 v115, 0xffff0000, v122\nv_lshlrev_b32 v116, 16, v123\nv_and_b32 v117, 0xffff0000, v123")
    poll1("global_load_dwordx4 v[16:19], v9, s[32:33]%s" % SC, 19)
    stamp(2)
    red8rows([16, 17, 18, 19], [24, 25, 26, 27])
    A("s_mov_b64 exec, 0xff")
    A("ds_write_b128 v11, v[16:19]")
    A("s_mov_b64 exec, -1")
    A("s_waitcnt lgkmcnt(0)")
    A("s_barrier")
    A("s_cmp_eq_u32 s3, 0\ns_cbranch_scc1 L_c_c0")
    A("s_barrier")
    A("s_branch L_chain_end")
    A("L_c_c0:")
    for i in range(4): A("ds_read_b128 v[%d:%d], v10 offset:%d" % (32 + 4 * i, 35 + 4 * i, i * 128))
    A("s_waitcnt lgkmcnt(0)")
    A("v_pk_add_f32 v[16:17], v[32:33], v[36:37]\nv_pk_add_f32 v[18:19], v[34:35], v[38:39]")
    A("v_pk_add_f32 v[20:21], v[40:41], v[44:45]\nv_pk_add_f32 v[22:23], v[42:43], v[46:47]")
    A("v_pk_add_f32 v[16:17], v[16:17], v[20:21]\nv_pk_add_f32 v[18:19], v[18:19], v[22:23]")
    A("v_cvt_pk_bf16_f32 v24, v16, v17\nv_cvt_pk_bf16_f32 v25, v18, v19")
    A("v_lshlrev_b32 v16, 16, v24\nv_and_b32 v17, 0xffff0000, v24\nv_lshlrev_b32 v18, 16, v25\nv_and_b32 v19, 0xffff0000, v25")
    for e in range(4): A("v_add_f32 v%d, v%d, v%d" % (16 + e, 16 + e, 110 + e))
    A("v_cvt_pk_bf16_f32 v24, v16, v17\nv_cvt_pk_bf16_f32 v25, v18, v19")
    A("v_lshlrev_b32 v104, 16, v24\nv_and_b32 v105, 0xffff0000, v24\nv_lshlrev_b32 v106, 16, v25\nv_and_b32 v107, 0xffff0000, v25")
    A("global_store_dwordx4 v8, v[104:107], s[32:33]%s" % SC)
    stamp(9)
    A("s_barrier")
    stamp(10)
    for i in range(7): A("ds_read_b128 v[%d:%d], v10 offset:%d" % (32 + 4 * i, 35 + 4 * i, 1024 + i * 128))
    A("s_waitcnt lgkmcnt(3)")
    A("v_pk_add_f32 v[16:17], v[32:33], v[36:37]\nv_pk_add_f32 v[18:19], v[34:35], v[38:39]")
    A("v_pk_add_f32 v[20:21], v[40:41], v[44:45]\nv_pk_add_f32 v[22:23], v[42:43], v[46:47]")
    A("s_waitcnt lgkmcnt(0)")
    A("v_pk_add_f32 v[24:25], v[48:49], v[52:53]\nv_pk_add_f32 v[26:27], v[50:51], v[54:55]")
    A("v_pk_add_f32 v[16:17], v[16:17], v[56:57]\nv_pk_add_f32 v[18:19], v[18:19], v[58:59]")
    A("v_pk_add_f32 v[20:21], v[20:21], v[24:25]\nv_pk_add_f32 v[22:23], v[22:23], v[26:27]")
    A("v_pk_add_f32 v[16:17], v[16:17], v[20:21]\nv_pk_add_f32 v[18:19], v[18:19], v[22:23]")
    A("v_cvt_pk_bf16_f32 v24, v16, v17\nv_cvt_pk_bf16_f32 v25, v18, v19")
    A("v_lshlrev_b32 v16, 16, v24\nv_and_b32 v17, 0xffff0000, v24\nv_lshlrev_b32 v18, 16, v25\nv_and_b32 v19, 0xffff0000, v25")
    for e in range(4): A("v_add_f32 v%d, v%d, v%d" % (16 + e, 16 + e, 114 + e))
    A("v_cvt_pk_bf16_f32 v24, v16, v17\nv_cvt_pk_bf16_f32 v25, v18, v19")
    A("v_lshlrev_b32 v16, 16, v24\nv_and_b32 v17, 0xffff0000, v24\nv_lshlrev_b32 v18, 16, v25\nv_and_b32 v19, 0xffff0000, v25")
    for e in range(4): A("v_add_f32 v%d, v%d, v%d" % (16 + e, 16 + e, 104 + e))
    A("v_cvt_pk_bf16_f32 v24, v16, v17\nv_cvt_pk_bf16_f32 v25, v18, v19")
    A("s_mov_b64 exec, 0xff")
    A("global_store_dwordx2 v126, v[24:25], s[28:29]")
    A("s_or_b32 s44, s36, s6\ns_cmp_lg_u32 s44, 0\ns_cbranch_scc1 L_c_noe")
    A("s_mov_b64 exec, 1")
    A("v_mov_b32 v8, 0\nv_mov_b32 v9, s42")
    A("global_store_dword v8, v9, s[32:33]%s" % SC)
    A("L_c_noe:")
    A("s_mov_b64 exec, -1")
    A("L_chain_end:")
    stamp(11)
    stamp_flush()
    A("L_exit:")
    A("s_endpgm")
    A("L_code_end:")
    if "pf" in exp: A(".fill 256, 4, 0xbf800000")

    hdr = open("cdna_kernels/%s.s.ref" % NAME).read().split("; Override launch")[0]
    out = hdr
    out += "; @launch grid=(256,1,1) block=(768,1,1) lds=%d\n" % LDS_TOTAL
    out += '.amdgcn_target "amdgcn-amd-amdhsa--gfx950"\n.text\n.globl %s\n.p2align 8\n.type %s,@function\n' % (K, K)
    out += A.text()
    out += '.section .rodata,"a"\n.p2align 6\n.amdhsa_kernel %s\n' % K
    out += "  .amdhsa_next_free_vgpr 168\n  .amdhsa_next_free_sgpr 102\n  .amdhsa_accum_offset 168\n"
    out += "  .amdhsa_group_segment_fixed_size 0\n  .amdhsa_kernarg_size 104\n  .amdhsa_user_sgpr_count 2\n  .amdhsa_user_sgpr_kernarg_segment_ptr 1\n  .amdhsa_system_sgpr_workgroup_id_x 1\n.end_amdhsa_kernel\n"
    return out

if __name__ == "__main__":
    import argparse
    ap = argparse.ArgumentParser()
    ap.add_argument("-o", default="cdna_kernels/%s.s" % NAME)
    ap.add_argument("--stamps", action="store_true")
    ap.add_argument("--W", type=int, default=2)
    ap.add_argument("--no-nt", action="store_true")
    ap.add_argument("--exp", default="")
    ap.add_argument("--qk_at", type=int, default=8)
    ap.add_argument("--vpre", type=int, default=0)
    ap.add_argument("--ends", action="store_true")
    ap.add_argument("--sE", type=int, default=0)
    ap.add_argument("--nv1", type=int, default=10)
    ap.add_argument("--dw", type=int, default=8)
    ap.add_argument("--sD", type=int, default=0)
    a = ap.parse_args()
    open(a.o, "w").write(gen(W=a.W, nt=not a.no_nt, stamps=a.stamps, exp=a.exp, qk_at=a.qk_at, vpre=a.vpre, ends=a.ends, sE=a.sE, nv1=a.nv1, dw_late=a.dw, sD=a.sD))
    print("wrote", a.o)
```

```python
import sys

NAME = "sequential_preLN__gqa_block_cached__mixer_channel_mlp__decode"

L_OP   = 8192
L_ST   = 131072
L_M    = 147456
L_ZP   = L_M
L_LB   = L_M + 4096
L_FL   = L_M + 4224
L_XH   = L_M + 4288
L_Q    = L_M + 8384
L_MB   = L_M + 9408
L_OB   = L_M + 9536
L_H1   = L_M + 10560
L_B1   = L_M + 10816
L_Z    = L_M + 10944
LDS_TOTAL = L_M + 11008

W_E     = 0x0
W_FLAG  = 0x1000
W_ML    = 0x2000
W_H     = 0x1C0000
W_QP    = 0x10000
W_OP    = 0x90000
W_HP    = 0x110000
W_OUT   = 0x150000
W_DBG   = 0x200000

NJ = 56
STREAM_STAMPS = ["start", "Kissued", "V1issued", "q ready", "max done", "V2issued", "PVdone", "bar3", "Dprep", "h got", "Dstore", "end"]
CHAIN_STAMPS = ["start", "s1", "s2", "s3", "prespin", "prebar3", "Opub", "gathered", "hpstore", "hstore", "outgath", "end"]
POLL_LIMIT = 20000

class Asm:
    def __init__(self): self.l = []
    def __call__(self, s):
        for x in s.split("\n"):
            x = x.strip()
            if x: self.l.append(("" if x.endswith(":") else "  ") + x)
    def text(self): return "\n".join(self.l) + "\n"

import re
def dryify(lines):
    out = []; on = False; n = 0; i = 0
    while i < len(lines):
        l = lines[i]; t = l.strip()
        if t == "; DRY_BEGIN": on = True; i += 1; continue
        if t == "; DRY_END": on = False; i += 1; continue
        if not on: out.append(l); i += 1; continue
        m = re.fullmatch(r"s_mov_b64 exec, (-1|\d+|0x[0-9a-f]+)", t)
        if m:
            out.append("  s_mov_b64 exec, s[4:5]" if m.group(1) == "-1" else "  s_and_b64 exec, s[4:5], %s" % m.group(1)); i += 1; continue
        m = re.fullmatch(r"s_mov_b32 exec_(lo|hi), (0x[0-9a-f]+|\d+)", t)
        if m:
            out.append(l if int(m.group(2), 0) == 0 else "  s_and_b32 exec_%s, s%d, %s" % (m.group(1), 4 if m.group(1) == "lo" else 5, m.group(2))); i += 1; continue
        m = re.fullmatch(r"s_mov_b64 (s\[\d+:\d+\]), -1", t)
        if m: out.append("  s_mov_b64 %s, s[4:5]" % m.group(1)); i += 1; continue
        if t == "s_barrier":
            n += 1; out += ["  s_cbranch_execz L_dry_%d" % n, l, "L_dry_%d:" % n]; i += 1; continue
        if t.startswith("global_"):
            prev = out[-1].strip() if out else ""
            if prev.startswith("s_cbranch_execz"):
                out.append(l); i += 1; continue
            n += 1; out.append("  s_cbranch_execz L_dry_%d" % n)
            while i < len(lines) and (lines[i].strip().startswith("global_") or lines[i].strip().startswith("s_nop") or lines[i].strip().startswith("v_add_u32")) and not lines[i].strip().endswith(":"):
                out.append(lines[i]); i += 1
            out.append("L_dry_%d:" % n); continue
        out.append(l); i += 1
    return out

def gen(W=2, nt=True, stamps=False, sleep_q=8, scope=" sc1", exp="", qk_at=8, vpre=0, ends=False, sE=0, sD=0, nv1=10, dw_late=8):
    A = Asm()
    PIPE = "pipe" in exp
    DRY = "nodry" not in exp
    NT = " nt" if nt else ""
    SC = scope
    uid = [0]
    def lab(p):
        uid[0] += 1; return "L_%s_%d" % (p, uid[0])
    def stamp(i):
        if stamps and (not ends or i in (0, 11)): A("s_memrealtime s[%d:%d]" % (64 + 2 * i, 65 + 2 * i))
    def stamp_flush():
        if stamps:
            A("s_waitcnt lgkmcnt(0)")
            A("s_lshl_b32 s44, s2, 4\ns_add_u32 s44, s44, s3\ns_lshl_b32 s44, s44, 7\ns_add_u32 s44, s44, %d" % W_DBG)
            A("s_add_u32 s46, s32, s44\ns_addc_u32 s47, s33, 0")
            A("s_mov_b64 exec, 1\nv_mov_b32 v2, 0")
            for i in range(0, 12, 2):
                A("v_mov_b32 v4, s%d\nv_mov_b32 v5, s%d\nv_mov_b32 v6, s%d\nv_mov_b32 v7, s%d" % (64 + 2 * i, 65 + 2 * i, 66 + 2 * i, 67 + 2 * i))
                A("global_store_dwordx4 v2, v[4:7], s[46:47] offset:%d" % (i * 8))
                A("s_nop 1")
            A("s_mov_b64 exec, -1")
    def bf16r(dst, src):
        A("v_cvt_pk_bf16_f32 v%d, v%d, v%d" % (dst, src, src))
        A("v_and_b32 v%d, 0xffff0000, v%d" % (dst, dst))
    def dpp_red(regs, rors, op="add"):
        for k in rors:
            n = max(0, 2 - (len(regs) - 1))
            if n: A("s_nop %d" % (n - 1))
            for r in regs:
                A("v_%s_f32_dpp v%d, v%d, v%d row_ror:%d row_mask:0xf bank_mask:0xf" % (op, r, r, r, k))
    def red16(regs, op="add"): dpp_red(regs, (8, 4, 2, 1), op)
    def swap_red(regs, tmps, which, op="add"):
        ins = "v_permlane16_swap_b32" if which == 16 else "v_permlane32_swap_b32"
        for r, t in zip(regs, tmps): A("v_mov_b32 v%d, v%d" % (t, r))
        n = max(0, 2 - (len(regs) - 1))
        if n: A("s_nop %d" % (n - 1))
        for r, t in zip(regs, tmps): A("%s v%d, v%d" % (ins, r, t))
        if len(regs) < 2: A("s_nop 0")
        for r, t in zip(regs, tmps): A("v_%s_f32 v%d, v%d, v%d" % (op, r, r, t))
    def poll_begin(cnt="s60"):
        l = lab("poll"); A("s_mov_b32 %s, %d" % (cnt, POLL_LIMIT)); A(l + ":"); return l
    def poll_end(l, sleep, cnt="s60"):
        d = lab("pdone")
        A("s_cbranch_vccz %s" % d)
        A("s_sub_u32 %s, %s, 1" % (cnt, cnt))
        A("s_cbranch_scc1 %s" % d)
        if sleep: A("s_sleep %d" % sleep)
        A("s_branch %s" % l)
        A(d + ":")
    def lds_spin(addr_v, off, val, tmp, sleep=1):
        p = poll_begin("s61")
        A("ds_read_b32 v%d, v%d offset:%d" % (tmp, addr_v, off))
        A("s_waitcnt lgkmcnt(0)")
        A("v_cmp_ne_u32 vcc, %d, v%d" % (val, tmp))
        poll_end(p, sleep, "s61")
    def lds_spin2(addr_v, off1, val1, off2, val2, t1, t2, sleep=1):
        p = poll_begin("s61")
        A("ds_read_b32 v%d, v%d offset:%d\nds_read_b32 v%d, v%d offset:%d" % (t1, addr_v, off1, t2, addr_v, off2))
        A("s_waitcnt lgkmcnt(0)")
        A("v_xor_b32 v%d, %d, v%d\nv_xor_b32 v%d, %d, v%d\nv_or_b32 v%d, v%d, v%d" % (t1, val1, t1, t2, val2, t2, t1, t1, t2))
        A("v_cmp_ne_u32 vcc, 0, v%d" % t1)
        poll_end(p, sleep, "s61")
    def lds_inc(addr_v, one_v, off):
        A("s_mov_b64 exec, 1")
        A("ds_add_u32 v%d, v%d offset:%d" % (addr_v, one_v, off))
        A("s_mov_b64 exec, -1")
    def lds_set(addr_v, one_v, off):
        A("s_mov_b64 exec, 1")
        A("ds_write_b32 v%d, v%d offset:%d" % (addr_v, one_v, off))
        A("s_mov_b64 exec, -1")
    def roles():
        A("s_sub_u32 s56, s37, s34\ns_sub_u32 s56, s56, 1\ns_and_b32 s56, s56, 7")
        A("s_lshl_b32 s57, s36, 3\ns_add_u32 s57, s57, s34")
        A("s_lshl_b32 s41, s57, 1\ns_add_u32 s41, s41, s56")
        A("s_cmp_lt_u32 s56, 2\ns_cselect_b32 s40, 1, 0")
        A("s_lshr_b32 s63, s56, 1\ns_cmp_eq_u32 s63, 1\ns_cselect_b32 s63, 1, 0")
        A("s_cmp_ge_u32 s56, 6\ns_cselect_b32 s39, 1, 0")
        A("s_lshl_b32 s6, s34, 1\ns_and_b32 s7, s56, 1\ns_add_u32 s6, s6, s7")
        A("s_cmp_lt_u32 s57, 28\ns_cselect_b32 s40, s40, 0\ns_cselect_b32 s63, s63, 0")
    def tags():
        A("s_waitcnt lgkmcnt(0)")
        A("s_not_b32 s43, s62\ns_add_u32 s42, s62, 1")
    def hop(loads, tmp, mbase=88, rslot=None, tslot=None, init=None, pipe=True):
        top = lab("hop"); done = lab("hopdone")
        n = len(loads)
        for i in range(n):
            if init and init[i] is not None:
                A("s_mov_b32 s%d, 0x%x\ns_mov_b32 s%d, 0x%x" % (mbase + 2 * i, init[i][0] & 0xffffffff, mbase + 2 * i + 1, init[i][1] & 0xffffffff))
            else:
                A("s_mov_b64 s[%d:%d], -1" % (mbase + 2 * i, mbase + 2 * i + 1))
        A("s_mov_b32 s60, %d" % POLL_LIMIT)
        if tslot is not None and "rounds" in exp: stamp(tslot)
        def issue():
            for i, (ins, _) in enumerate(loads):
                A("s_mov_b64 exec, s[%d:%d]" % (mbase + 2 * i, mbase + 2 * i + 1))
                if pipe:
                    A("s_cbranch_execnz .+8" if False else "s_cmp_eq_u64 s[%d:%d], 0\ns_cselect_b64 exec, 1, exec" % (mbase + 2 * i, mbase + 2 * i + 1))
                    A(ins)
                else:
                    sk = lab("sk")
                    A("s_cbranch_execz %s" % sk)
                    A(ins)
                    A(sk + ":")
        if pipe:
            issue()
            A("s_mov_b64 exec, -1")
            A("s_sleep 1")
        A(top + ":")
        issue()
        A("s_waitcnt vmcnt(%d)" % (n if pipe else 0))
        for i, (_, regs) in enumerate(loads):
            A("s_mov_b64 exec, s[%d:%d]" % (mbase + 2 * i, mbase + 2 * i + 1))
            if len(regs) == 1:
                A("v_cmp_eq_u32 s[%d:%d], -1, v%d" % (mbase + 2 * i, mbase + 2 * i + 1, regs[0]))
            else:
                A("v_max_u32 v%d, v%d, v%d" % (tmp, regs[0], regs[1]))
                A("v_cmp_eq_u32 s[%d:%d], -1, v%d" % (mbase + 2 * i, mbase + 2 * i + 1, tmp))
        if n == 1: A("s_or_b64 vcc, s[%d:%d], s[%d:%d]" % (mbase, mbase + 1, mbase, mbase + 1))
        else: A("s_or_b64 vcc, s[%d:%d], s[%d:%d]" % (mbase, mbase + 1, mbase + 2, mbase + 3))
        for i in range(2, n): A("s_or_b64 vcc, vcc, s[%d:%d]" % (mbase + 2 * i, mbase + 2 * i + 1))
        A("s_cbranch_scc0 %s" % done)
        A("s_sub_u32 s60, s60, 1")
        A("s_cbranch_scc0 %s" % top)
        A(done + ":")
        A("s_mov_b64 exec, -1")
        if rslot is not None and stamps and "rounds" in exp:
            A("s_waitcnt lgkmcnt(0)")
            A("s_sub_u32 s%d, %d, s60\ns_mov_b32 s%d, 0" % (64 + 2 * rslot, POLL_LIMIT, 65 + 2 * rslot))

    def poll1(ins, reg):
        top = lab("p1"); done = lab("p1d")
        A("s_mov_b32 s60, %d" % POLL_LIMIT)
        A(top + ":")
        A(ins)
        A("s_waitcnt vmcnt(0)")
        A("v_cmp_eq_u32 vcc, -1, v%d" % reg)
        A("s_cbranch_vccz %s" % done)
        A("s_mov_b64 exec, vcc")
        A("s_sub_u32 s60, s60, 1")
        A("s_cbranch_scc0 %s" % top)
        A(done + ":")
        A("s_mov_b64 exec, -1")
    def red8rows(regs, tmps):
        dpp_red(regs, (8,))
        swap_red(regs, tmps, 16)
        swap_red(regs, tmps, 32)
    L_CP = L_ZP; L_EP = L_ZP + 1024
    K = NAME + "_kernel"
    A("%s:" % K)
    stamp(0)
    A("s_cmp_ge_u32 s2, 256")
    A("s_cbranch_scc1 L_exit")
    A("s_mov_b64 s[4:5], -1")
    A("s_load_dwordx16 s[8:23], s[0:1], 0")
    A("s_load_dwordx8 s[24:31], s[0:1], 64")
    A("s_load_dwordx2 s[32:33], s[0:1], 96")
    A("v_lshrrev_b32 v1, 6, v0")
    A("v_and_b32 v0, 63, v0")
    A("v_readfirstlane_b32 s3, v1")
    A("s_and_b32 s34, s2, 7")
    A("s_lshr_b32 s35, s2, 3")
    A("s_lshr_b32 s36, s35, 3")
    A("s_and_b32 s37, s35, 7")
    A("v_lshrrev_b32 v2, 4, v0")
    A("v_and_b32 v3, 15, v0")
    A("s_cmp_lt_u32 s3, 4")
    A("s_cbranch_scc1 L_chain")

    A("s_sub_u32 s44, s3, 4")
    A("s_lshl_b32 s45, s36, 3\ns_add_u32 s45, s45, s34\ns_lshl_b32 s45, s45, 20")
    A("s_lshl_b32 s46, s37, 17\ns_add_u32 s45, s45, s46")
    A("s_lshl_b32 s47, s44, 14\ns_add_u32 s45, s45, s47")
    for u in range(4):
        A("v_add_u32 v8, %d, v2" % (4 * u))
        A("v_xor_b32 v8, v8, v3")
        A("v_lshlrev_b32 v8, 4, v8")
        A("v_lshl_add_u32 v%d, v2, 8, v8" % (4 + u))
    A("v_lshlrev_b32 v8, 4, v3")
    A("v_lshl_add_u32 v9, v2, 10, v8")
    A("s_mov_b32 m0, s47")
    A("s_mov_b32 s52, s47")
    A("v_mov_b32 v93, %d\nv_mov_b32 v94, 1" % L_FL)
    A("s_waitcnt lgkmcnt(0)")
    A("s_add_u32 s56, s10, s45\ns_addc_u32 s57, s11, 0")
    A("s_add_u32 s58, s12, s45\ns_addc_u32 s59, s13, 0")
    def tile_base(T, dst, src):
        A("s_add_u32 s55, s44, %d\ns_and_b32 s55, s55, 3\ns_lshl_b32 s55, s55, 12" % T)
        A("s_add_u32 s%d, s%d, s55\ns_addc_u32 s%d, s%d, 0" % (dst, src, dst + 1, src + 1))
    tile_base(0, 48, 56)
    A("s_barrier")
    for i in range(16):
        T, u = i >> 2, i & 3
        if u == 0 and T > 0:
            tile_base(T, 48, 56)
            A("s_add_u32 s52, s52, 4096\ns_mov_b32 m0, s52\ns_nop 0")
        A("global_load_lds_dwordx4 v%d, s[48:49] offset:%d%s" % (4 + u, u * 1024, NT))
        if W and i >= W:
            A("s_waitcnt vmcnt(%d)" % W)
    VB = 96
    def vload(idx):
        T, r = idx >> 2, idx & 3
        if r == 0: tile_base(T, 50, 58)
        A("global_load_dwordx4 v[%d:%d], v9, s[50:51] offset:%d%s" % (VB + 4 * idx, VB + 4 * idx + 3, r * 256, NT))
    for idx in range(vpre): vload(idx)
    lds_inc(93, 94, 4)
    stamp(1)
    if "noks" in exp: lds_spin(93, 16, 1, 8)
    else: lds_spin2(93, 4, 8, 16, 1, 8, 10)
    for idx in range(vpre, nv1): vload(idx)
    stamp(2)
    roles()
    for t in range(4):
        A("v_add_u32 v8, %d, v2" % (4 * t))
        A("v_xor_b32 v8, v8, v3")
        A("v_lshlrev_b32 v8, 4, v8")
        A("v_lshl_add_u32 v8, v3, 8, v8")
        A("v_add_u32 v%d, s47, v8" % (10 + t))
    A("v_lshrrev_b32 v8, 2, v3")
    A("v_lshlrev_b32 v14, 8, v8")
    A("v_lshl_add_u32 v14, v2, 4, v14")
    A("v_add_u32 v14, %d, v14" % L_Q)
    A("v_lshlrev_b32 v15, 5, v8")
    A("v_add_u32 v15, %d, v15" % L_MB)
    A("v_lshlrev_b32 v88, 5, v8")
    A("s_lshl_b32 s55, s44, 2\ns_add_u32 s55, s55, %d" % L_LB)
    A("v_add_u32 v88, s55, v88")
    A("v_and_b32 v8, 1, v3\nv_lshlrev_b32 v8, 4, v8\nv_mov_b32 v91, 0xffff\nv_lshlrev_b32 v91, v8, v91")
    A("v_and_b32 v8, 3, v3")
    A("v_cmp_gt_u32 vcc, 2, v8")
    A("v_lshlrev_b32 v92, 4, v0\ns_add_u32 s55, s47, %d\nv_add_u32 v92, s55, v92" % L_OP)
    A("v_cndmask_b32 v89, 0, v91, vcc")
    A("v_cndmask_b32 v90, v91, 0, vcc")
    A("s_mov_b32 s53, 0x3db504f3")
    A("s_mov_b32 s54, 0x3fb8aa3b")
    lds_spin(93, 0, 1, 8)
    stamp(3)
    for t in range(4):
        A("ds_read_b128 v[%d:%d], v14 offset:%d" % (16 + 4 * t, 19 + 4 * t, t * 64))
    A("s_waitcnt vmcnt(%d)" % nv1)
    def kfr(T, buf):
        for t in range(4):
            A("ds_read_b128 v[%d:%d], v%d offset:%d" % (buf + 4 * t, buf + 4 * t + 3, 10 + t, T * 4096))
    def qk(T, buf):
        for t in range(4):
            c = "0" if t == 0 else "v[%d:%d]" % (64 + 4 * T, 67 + 4 * T)
            A("v_mfma_f32_16x16x32_bf16 v[%d:%d], v[%d:%d], v[%d:%d], %s" % (64 + 4 * T, 67 + 4 * T, buf + 4 * t, buf + 4 * t + 3, 16 + 4 * t, 19 + 4 * t, c))
    kfr(0, 32); kfr(1, 48)
    A("s_waitcnt lgkmcnt(4)"); qk(0, 32)
    kfr(2, 32)
    A("s_waitcnt lgkmcnt(4)"); qk(1, 48)
    kfr(3, 48)
    A("s_waitcnt lgkmcnt(4)"); qk(2, 32)
    A("s_waitcnt lgkmcnt(0)"); qk(3, 48)
    def round_pair(a, b):
        A("v_cvt_pk_bf16_f32 v8, v%d, v%d" % (a, b))
        A("v_lshlrev_b32 v%d, 16, v8" % a)
        A("v_and_b32 v%d, 0xffff0000, v8" % b)
        A("v_mul_f32 v%d, s53, v%d" % (a, a))
        A("v_mul_f32 v%d, s53, v%d" % (b, b))
        A("v_cvt_pk_bf16_f32 v8, v%d, v%d" % (a, b))
        A("v_lshlrev_b32 v%d, 16, v8" % a)
        A("v_and_b32 v%d, 0xffff0000, v8" % b)
    for T in range(4):
        round_pair(64 + 4 * T, 65 + 4 * T); round_pair(66 + 4 * T, 67 + 4 * T)
    A("v_max3_f32 v8, v64, v65, v66")
    for i in range(67, 79, 2):
        A("v_max3_f32 v8, v8, v%d, v%d" % (i, i + 1))
    A("v_max_f32 v8, v8, v79")
    swap_red([8], [95], 16, "max"); swap_red([8], [95], 32, "max")
    A("s_lshl_b32 s55, s44, 2")
    A("v_add_u32 v95, s55, v15")
    A("s_mov_b32 exec_lo, 0x1111\ns_mov_b32 exec_hi, 0")
    A("ds_write_b32 v95, v8")
    A("s_mov_b64 exec, 1")
    A("ds_add_u32 v93, v94 offset:36")
    A("s_mov_b64 exec, -1")
    stamp(4)
    A("v_mul_f32 v95, s54, v8")
    for i in range(16):
        A("v_fma_f32 v%d, v%d, s54, -v95" % (64 + i, 64 + i))
    for i in range(16):
        A("v_exp_f32 v%d, v%d" % (64 + i, 64 + i))
    A("s_nop 0")
    A("v_add_f32 v8, v64, v65\nv_add_f32 v87, v66, v67")
    for i in range(4, 16, 2): A("v_add_f32 v8, v8, v%d\nv_add_f32 v87, v87, v%d" % (64 + i, 65 + i))
    A("v_add_f32 v8, v8, v87")
    for i in range(16):
        A("v_cvt_pk_bf16_f32 v%d, v%d, v%d" % (64 + i, 64 + i, 64 + i))
    swap_red([8], [87], 16, "add"); swap_red([8], [87], 32, "add")
    A("v_mov_b32 v16, v8")
    for idx in range(nv1, 16): vload(idx)
    lds_inc(93, 94, 8)
    stamp(5)
    lds_spin(93, 36, 8, 8, 1)
    A("ds_read_b128 v[32:35], v15")
    A("ds_read_b128 v[36:39], v15 offset:16")
    A("s_waitcnt lgkmcnt(0)")
    A("v_max3_f32 v8, v32, v33, v34\nv_max3_f32 v8, v8, v35, v36\nv_max3_f32 v8, v8, v37, v38\nv_max_f32 v8, v8, v39")
    A("v_fma_f32 v17, -v8, s54, v95")
    A("v_exp_f32 v17, v17\ns_nop 0")
    A("v_mul_f32 v16, v16, v17")
    A("s_mov_b32 exec_lo, 0x1111\ns_mov_b32 exec_hi, 0")
    A("ds_write_b32 v88, v16")
    A("s_mov_b64 exec, -1")
    for idx in range(16):
        ta = 32 + 2 * (idx & 3)
        A("v_and_b32 v%d, v%d, v89" % (ta, 64 + idx))
        A("v_and_b32 v%d, v%d, v90" % (ta + 1, 64 + idx))
        A("s_waitcnt vmcnt(%d)" % (15 - idx))
        c0 = "0" if idx == 0 else "v[80:83]"
        c1 = "0" if idx == 0 else "v[84:87]"
        A("s_nop 0")
        A("v_mfma_f32_16x16x16_bf16 v[80:83], v[%d:%d], v[%d:%d], %s" % (VB + 4 * idx, VB + 4 * idx + 1, ta, ta + 1, c0))
        A("v_mfma_f32_16x16x16_bf16 v[84:87], v[%d:%d], v[%d:%d], %s" % (VB + 4 * idx + 2, VB + 4 * idx + 3, ta, ta + 1, c1))
    stamp(6)
    A("s_nop 6")
    for i in range(8): A("v_mul_f32 v%d, v%d, v17" % (80 + i, 80 + i))
    A("ds_write_b128 v92, v[80:83]")
    A("ds_write_b128 v92, v[84:87] offset:1024")
    lds_inc(93, 94, 24)
    stamp(7)
    A("s_cmp_lg_u32 s40, 0")
    A("s_cbranch_scc1 L_s_D")
    A("s_cmp_eq_u32 s39, 0")
    A("s_cbranch_scc1 L_stream_end")
    A("s_lshl_b32 s45, s36, 4\ns_add_u32 s45, s45, s6\ns_mul_i32 s45, s45, %d\ns_lshl_b32 s46, s44, 10\ns_add_u32 s45, s45, s46\ns_add_u32 s45, s45, %d" % (NJ * 128, W_OUT))
    A("v_lshlrev_b32 v6, 4, v0\nv_add_u32 v6, s45, v6")
    A("v_and_b32 v7, 7, v0\nv_lshlrev_b32 v7, 4, v7\ns_lshl_b32 s45, s44, 7\ns_add_u32 s45, s45, %d\nv_add_u32 v7, s45, v7" % L_EP)
    A("s_barrier")
    A("s_barrier")
    A("s_cmp_eq_u32 s44, 7\ns_cbranch_scc1 L_s_e1")
    poll1("global_load_dwordx4 v[16:19], v6, s[32:33]%s" % SC, 19)
    stamp(9)
    red8rows([16, 17, 18, 19], [24, 25, 26, 27])
    A("s_mov_b64 exec, 0xff")
    A("ds_write_b128 v7, v[16:19]")
    A("s_mov_b64 exec, -1")
    A("s_waitcnt lgkmcnt(0)")
    A("L_s_e1:")
    A("s_barrier")
    A("s_branch L_stream_end")
    A("L_s_D:")
    A("; DRY_BEGIN")
    A("v_mov_b32 v90, %d" % L_FL)
    A("v_lshrrev_b32 v8, 2, v3\nv_lshl_add_u32 v8, v2, 3, v8")
    A("v_and_b32 v93, 3, v3\nv_lshlrev_b32 v93, 3, v93")
    A("v_lshl_add_u32 v4, v8, 6, v93\nv_add_u32 v4, s47, v4")
    A("v_lshlrev_b32 v5, 2, v93\nv_lshl_add_u32 v5, v8, 7, v5\nv_add_u32 v5, s47, v5")
    A("v_and_b32 v6, 3, v3\nv_lshlrev_b32 v6, 10, v6\nv_lshl_add_u32 v6, v2, 4, v6")
    A("s_lshl_b32 s58, s44, 7\ns_add_u32 s58, s58, %d" % L_XH)
    A("v_add_u32 v6, s58, v6")
    A("v_lshlrev_b32 v7, 2, v0\ns_lshl_b32 s58, s44, 8\ns_add_u32 s58, s58, %d\nv_add_u32 v7, s58, v7" % L_ZP)
    A("v_lshlrev_b32 v11, 2, v0\ns_lshl_b32 s58, s44, 11\ns_add_u32 s58, s58, %d\nv_add_u32 v11, s58, v11" % L_ZP)
    A("v_lshrrev_b32 v10, 2, v3\nv_lshlrev_b32 v10, 6, v10\nv_lshl_add_u32 v10, v2, 4, v10\nv_add_u32 v10, %d, v10" % L_H1)
    A("v_mov_b32 v92, %d\nv_and_b32 v91, 3, v3" % L_Z)
    for t in range(4):
        A("v_cmp_eq_u32 vcc, %d, v91\ns_nop 1\nv_cndmask_b32 v%d, v92, v10, vcc" % (t, 94 + t))
    A("v_mov_b32 v24, 0\nv_mov_b32 v25, 0\nv_mov_b32 v26, 0\nv_mov_b32 v27, 0\nds_write_b128 v92, v[24:27]")
    A("v_lshrrev_b32 v15, 2, v3")
    A("v_cmp_eq_u32 s[56:57], 1, v15\nv_cmp_eq_u32 s[58:59], 2, v15\nv_cmp_eq_u32 s[48:49], 3, v15")
    A("v_lshrrev_b32 v12, 2, v3\nv_lshlrev_b32 v12, 4, v12\nv_lshrrev_b32 v24, 1, v2\nv_add_u32 v12, v12, v24\nv_mul_u32_u24 v12, %d, v12" % (NJ * 128))
    A("v_and_b32 v24, 1, v2\nv_lshl_add_u32 v12, v24, 6, v12\nv_lshl_add_u32 v12, v91, 4, v12")
    A("s_mul_i32 s45, s44, %d\ns_lshl_b32 s46, s41, 7\ns_add_u32 s45, s45, s46\ns_add_u32 s45, s45, %d" % (2 * NJ * 128, W_OUT))
    A("v_add_u32 v12, s45, v12")
    A("v_lshlrev_b32 v13, 4, v0\ns_lshl_b32 s45, s44, 11\ns_lshl_b32 s46, s34, 13\ns_add_u32 s45, s45, s46\ns_add_u32 s45, s45, %d\nv_add_u32 v13, s45, v13" % W_H)
    A("v_lshlrev_b32 v14, 3, v0\ns_lshl_b32 s45, s44, 10\ns_add_u32 s45, s45, %d\nv_add_u32 v14, s45, v14" % L_XH)
    A("v_lshl_add_u32 v15, v2, 2, v15")
    A("s_and_b32 s45, s44, 1\ns_lshl_b32 s45, s45, 4\nv_add_u32 v15, s45, v15")
    A("v_lshlrev_b32 v9, 2, v15\nv_add_u32 v9, %d, v9" % L_B1)
    A("ds_read_b32 v88, v9")
    A("v_and_b32 v9, 3, v3\nv_lshlrev_b32 v9, 6, v9\nv_lshl_add_u32 v9, v15, 1, v9\nv_add_u32 v9, %d, v9" % L_H1)
    A("v_mov_b32 v89, 0x3d372713")
    lds_spin(90, 28, 1, 91, 1)
    for ft in range(2):
        for ks in range(2):
            fr = 32 + 8 * ft + 4 * ks
            A("ds_read_b64_tr_b16 v[%d:%d], v4 offset:%d" % (fr, fr + 1, ks * 2048 + ft * 32))
            A("ds_read_b64_tr_b16 v[%d:%d], v4 offset:%d" % (fr + 2, fr + 3, ks * 2048 + ft * 32 + 256))
    A("s_waitcnt lgkmcnt(0)")
    for t in range(4):
        A("ds_read_b64_tr_b16 v[%d:%d], v5 offset:%d" % (48 + 4 * t, 49 + 4 * t, 4096 + t * 8))
        A("ds_read_b64_tr_b16 v[%d:%d], v5 offset:%d" % (50 + 4 * t, 51 + 4 * t, 4096 + t * 8 + 512))
    A("s_waitcnt lgkmcnt(0)")
    stamp(8)
    A("s_cmp_ge_u32 s44, 4")
    A("s_cbranch_scc1 L_d1")
    if sD: A("s_sleep %d" % sD)
    hop([("global_load_dwordx4 v[100:103], v13, s[32:33]%s" % SC, [103]), ("global_load_dwordx4 v[104:107], v13, s[32:33] offset:1024%s" % SC, [107])], 24, pipe=PIPE)
    stamp(9)
    A("v_add_f32 v24, v100, v101\nv_add_f32 v25, v102, v103\nv_add_f32 v26, v104, v105\nv_add_f32 v27, v106, v107")
    A("v_add_f32 v24, v24, v25\nv_add_f32 v26, v26, v27\nv_add_f32 v24, v24, v26")
    red16([24]); swap_red([24], [25], 16); swap_red([24], [25], 32)
    A("v_mul_f32 v24, 0x3b000000, v24")
    for i in range(8): A("v_sub_f32 v%d, v%d, v24" % (16 + i, 100 + i))
    A("v_mul_f32 v25, v16, v16\nv_mul_f32 v26, v17, v17")
    for i in range(2, 8, 2): A("v_fma_f32 v25, v%d, v%d, v25\nv_fma_f32 v26, v%d, v%d, v26" % (16 + i, 16 + i, 17 + i, 17 + i))
    A("v_add_f32 v25, v25, v26")
    red16([25]); swap_red([25], [26], 16); swap_red([25], [26], 32)
    A("v_mul_f32 v25, 0x3b000000, v25")
    A("v_add_f32 v26, 0x3727c5ac, v25")
    A("v_rcp_f32 v27, v26\nv_rsq_f32 v26, v26\ns_nop 0")
    A("v_mul_f32 v27, v25, v27")
    A("v_add_f32 v27, 0x3727c5ac, v27")
    A("v_rsq_f32 v27, v27\ns_nop 0")
    A("v_mul_f32 v26, v26, v27")
    for i in range(8): A("v_mul_f32 v%d, v%d, v26" % (16 + i, 16 + i))
    for i in range(4): A("v_cvt_pk_bf16_f32 v%d, v%d, v%d" % (72 + i, 16 + 2 * i, 17 + 2 * i))
    if "dst" in exp: stamp(1)
    A("ds_write_b64 v14, v[72:73]")
    A("ds_write_b64 v14, v[74:75] offset:512")
    A("s_waitcnt lgkmcnt(0)")
    A("L_d1:")
    A("s_barrier")
    if "dst" in exp: stamp(2)
    for ks in range(2):
        A("ds_read_b128 v[%d:%d], v6 offset:%d" % (16 + 4 * ks, 19 + 4 * ks, ks * 64))
    for ks in range(2):
        A("s_waitcnt lgkmcnt(%d)" % (1 - ks))
        for ft in range(2):
            c = "0" if ks == 0 else "v[%d:%d]" % (80 + 4 * ft, 83 + 4 * ft)
            A("v_mfma_f32_16x16x32_bf16 v[%d:%d], v[%d:%d], v[%d:%d], %s" % (80 + 4 * ft, 83 + 4 * ft, 32 + 8 * ft + 4 * ks, 35 + 8 * ft + 4 * ks, 16 + 4 * ks, 19 + 4 * ks, c))
    A("s_nop 6")
    A("v_cndmask_b32 v80, v80, v81, s[56:57]\nv_cndmask_b32 v80, v80, v82, s[58:59]\nv_cndmask_b32 v80, v80, v83, s[48:49]")
    A("v_cndmask_b32 v84, v84, v85, s[56:57]\nv_cndmask_b32 v84, v84, v86, s[58:59]\nv_cndmask_b32 v84, v84, v87, s[48:49]")
    if "dst" in exp: stamp(3)
    A("ds_write_b32 v7, v80")
    A("ds_write_b32 v7, v84 offset:2048")
    A("s_waitcnt lgkmcnt(0)")
    A("s_barrier")
    if "dst" in exp: stamp(4)
    A("s_cmp_ge_u32 s44, 2")
    A("s_cbranch_scc1 L_d3")
    for w_ in range(8): A("ds_read_b32 v%d, v11 offset:%d" % (16 + w_, w_ * 256))
    A("s_waitcnt lgkmcnt(0)")
    A("v_add_f32 v16, v16, v17\nv_add_f32 v18, v18, v19\nv_add_f32 v20, v20, v21\nv_add_f32 v22, v22, v23")
    A("v_add_f32 v16, v16, v18\nv_add_f32 v20, v20, v22\nv_add_f32 v18, v16, v20")
    bf16r(18, 18)
    A("v_add_f32 v18, v18, v88")
    bf16r(18, 18)
    A("v_mul_f32 v19, v18, v18")
    A("v_fma_f32 v19, v19, v89, 1.0")
    A("v_mul_f32 v19, v19, v18")
    A("v_mul_f32 v19, 0xc0135761, v19")
    A("v_exp_f32 v19, v19\ns_nop 0")
    A("v_add_f32 v19, 1.0, v19")
    A("v_rcp_f32 v19, v19\ns_nop 0")
    A("v_mul_f32 v18, v18, v19")
    A("v_cvt_pk_bf16_f32 v18, v18, v18")
    if "dst" in exp: stamp(5)
    A("ds_write_b16 v9, v18")
    A("s_waitcnt lgkmcnt(0)")
    A("L_d3:")
    A("s_barrier")
    if "dst" in exp: stamp(6)
    for t in range(4): A("ds_read_b128 v[%d:%d], v%d" % (16 + 4 * t, 19 + 4 * t, 94 + t))
    for t in range(4):
        A("s_waitcnt lgkmcnt(%d)" % (3 - t))
        c = "0" if t == 0 else "v[64:67]"
        A("v_mfma_f32_16x16x32_bf16 v[64:67], v[%d:%d], v[%d:%d], %s" % (48 + 4 * t, 51 + 4 * t, 16 + 4 * t, 19 + 4 * t, c))
    A("s_nop 7")
    A("global_store_dwordx4 v12, v[64:67], s[32:33]%s" % SC)
    stamp(10)
    A("; DRY_END")
    A("L_stream_end:")
    if DRY: A("s_cbranch_execz L_dry_ret3")
    stamp(11)
    stamp_flush()
    A("s_endpgm")

    A("L_chain:")
    A("s_cmp_lg_u32 s3, 2\ns_cbranch_scc1 L_c_nz")
    A("v_mov_b32 v8, 0\nv_mov_b32 v9, 0\nv_mov_b32 v10, 0\nv_mov_b32 v11, 0")
    A("v_mov_b32 v7, %d" % L_FL)
    for i in range(4): A("ds_write_b128 v7, v[8:11] offset:%d" % (16 * i))
    A("L_c_nz:")
    A("s_lshl_b32 s38, s34, 2\ns_add_u32 s38, s38, s36")
    roles()
    A("s_lshl_b32 s44, s34, 10\ns_lshl_b32 s45, s36, 6\ns_add_u32 s44, s44, s45\ns_and_b32 s45, s37, 1\ns_lshl_b32 s45, s45, 5\ns_add_u32 s44, s44, s45")
    A("s_lshr_b32 s45, s37, 1\ns_lshl_b32 s45, s45, 3\ns_add_u32 s44, s44, s45\ns_add_u32 s44, s44, %d" % W_ML)
    A("v_and_b32 v102, 3, v0\nv_lshlrev_b32 v102, 8, v102\nv_add_u32 v102, s44, v102")
    A("s_lshr_b32 s45, s35, 1\ns_and_b32 s45, s45, 3")
    A("s_lshl_b32 s44, s34, 16\ns_lshl_b32 s46, s45, 12\ns_add_u32 s44, s44, s46\ns_lshl_b32 s46, s36, 10\ns_add_u32 s44, s44, s46")
    A("s_and_b32 s46, s35, 1\ns_lshl_b32 s46, s46, 9\ns_add_u32 s44, s44, s46\ns_add_u32 s44, s44, %d" % W_QP)
    A("v_and_b32 v103, 3, v3\nv_lshlrev_b32 v103, 14, v103\nv_lshl_add_u32 v103, v2, 5, v103\nv_add_u32 v103, s44, v103")
    A("v_mov_b32 v100, %d\nv_mov_b32 v101, 1\nv_mov_b32 v126, 0" % L_FL)
    A("s_waitcnt lgkmcnt(0)")
    A("s_load_dword s62, s[32:33], 0")
    A("s_cmp_eq_u32 s3, 0\ns_cbranch_scc1 L_c0")
    A("s_barrier")
    A("s_cmp_eq_u32 s3, 1\ns_cbranch_scc1 L_c1")
    A("s_cmp_eq_u32 s3, 2\ns_cbranch_scc1 L_c2")
    A("s_branch L_c3")
    A("L_c0:")
    A("v_lshlrev_b32 v6, 10, v2\nv_lshl_add_u32 v7, v3, 6, v6")
    for i in range(4):
        A("global_load_dwordx4 v[%d:%d], v7, s[8:9] offset:%d" % (16 + 4 * i, 19 + 4 * i, i * 16))
    A("s_lshl_b32 s46, s45, 8")
    A("v_lshl_add_u32 v7, v3, 4, v6\nv_add_u32 v7, s46, v7")
    A("global_load_dwordx4 v[12:15], v7, s[8:9]")
    A("s_lshl_b32 s44, s45, 20\ns_lshl_b32 s46, s34, 10\ns_add_u32 s44, s44, s46\ns_lshl_b32 s46, s36, 8\ns_add_u32 s44, s44, s46")
    A("s_and_b32 s46, s35, 1\ns_lshl_b32 s46, s46, 7\ns_add_u32 s44, s44, s46")
    A("s_add_u32 s46, s14, s44\ns_addc_u32 s47, s15, 0")
    A("v_lshrrev_b32 v7, 3, v0\nv_lshlrev_b32 v7, 13, v7\nv_and_b32 v8, 7, v0\nv_lshl_add_u32 v7, v8, 4, v7")
    A("s_mov_b32 s48, %d" % L_ST)
    for i in range(16):
        A("s_mov_b32 m0, s48\ns_add_u32 s48, s48, 1024")
        A("global_load_lds_dwordx4 v7, s[46:47]")
        A("s_add_u32 s46, s46, 0x10000\ns_addc_u32 s47, s47, 0")
    A("s_barrier")
    stamp(1)
    A("s_waitcnt vmcnt(16)")
    tags()
    for i in range(16):
        A("v_lshlrev_b32 v%d, 16, v%d\nv_and_b32 v%d, 0xffff0000, v%d" % (32 + 2 * i, 16 + i, 33 + 2 * i, 16 + i))
    A("v_add_f32 v64, v32, v33\nv_add_f32 v65, v34, v35\nv_add_f32 v66, v36, v37\nv_add_f32 v67, v38, v39")
    for i in range(8, 32, 4):
        A("v_add_f32 v64, v64, v%d\nv_add_f32 v65, v65, v%d\nv_add_f32 v66, v66, v%d\nv_add_f32 v67, v67, v%d" % (32 + i, 33 + i, 34 + i, 35 + i))
    A("v_add_f32 v64, v64, v65\nv_add_f32 v66, v66, v67\nv_add_f32 v64, v64, v66")
    red16([64])
    A("v_mul_f32 v64, 0x3b000000, v64")
    A("v_mov_b32 v65, 0\nv_mov_b32 v66, 0")
    for i in range(0, 32, 2):
        A("v_sub_f32 v67, v%d, v64\nv_sub_f32 v68, v%d, v64\nv_fma_f32 v65, v67, v67, v65\nv_fma_f32 v66, v68, v68, v66" % (32 + i, 33 + i))
    A("v_add_f32 v65, v65, v66")
    red16([65])
    A("v_mul_f32 v65, 0x3b000000, v65")
    bf16r(64, 64); bf16r(65, 65)
    A("v_add_f32 v65, 0x3727c5ac, v65"); bf16r(65, 65)
    A("v_sqrt_f32 v65, v65\ns_nop 0"); bf16r(65, 65)
    A("v_rcp_f32 v65, v65")
    for i in range(4):
        a, b = 32 + 2 * i, 33 + 2 * i
        A("v_lshlrev_b32 v%d, 16, v%d\nv_and_b32 v%d, 0xffff0000, v%d" % (a, 12 + i, b, 12 + i))
        A("v_sub_f32 v%d, v%d, v64\nv_sub_f32 v%d, v%d, v64" % (a, a, b, b))
        A("v_cvt_pk_bf16_f32 v66, v%d, v%d" % (a, b))
        A("v_lshlrev_b32 v%d, 16, v66\nv_and_b32 v%d, 0xffff0000, v66" % (a, b))
        A("v_mul_f32 v%d, v%d, v65\nv_mul_f32 v%d, v%d, v65" % (a, a, b, b))
        A("v_cvt_pk_bf16_f32 v%d, v%d, v%d" % (16 + i, a, b))
    A("v_lshlrev_b32 v6, 8, v2\nv_lshl_add_u32 v6, v3, 4, v6\nv_add_u32 v6, %d, v6" % L_XH)
    A("ds_write_b128 v6, v[16:19]")
    A("v_lshrrev_b32 v8, 2, v3\nv_lshl_add_u32 v8, v2, 3, v8\nv_and_b32 v9, 3, v3\nv_lshlrev_b32 v12, 3, v9")
    A("v_lshl_add_u32 v12, v8, 7, v12\nv_add_u32 v12, %d, v12" % L_ST)
    A("v_lshlrev_b32 v13, 8, v9\nv_lshl_add_u32 v13, v2, 4, v13\nv_add_u32 v13, %d, v13" % L_XH)
    A("s_waitcnt vmcnt(0) lgkmcnt(0)")
    stamp(2)
    for ks in range(4):
        A("ds_read_b128 v[%d:%d], v13 offset:%d" % (16 + 4 * ks, 19 + 4 * ks, ks * 64))
    for ks in range(4):
        for t in range(4):
            A("ds_read_b64_tr_b16 v[%d:%d], v12 offset:%d" % (32 + 4 * t, 33 + 4 * t, ks * 4096 + t * 32))
            A("ds_read_b64_tr_b16 v[%d:%d], v12 offset:%d" % (34 + 4 * t, 35 + 4 * t, ks * 4096 + t * 32 + 512))
        for t in range(4):
            A("s_waitcnt lgkmcnt(%d)" % (6 - 2 * t))
            c = "0" if ks == 0 else "v[%d:%d]" % (64 + 4 * t, 67 + 4 * t)
            A("v_mfma_f32_16x16x32_bf16 v[%d:%d], v[%d:%d], v[%d:%d], %s" % (64 + 4 * t, 67 + 4 * t, 32 + 4 * t, 35 + 4 * t, 16 + 4 * ks, 19 + 4 * ks, c))
    A("v_mov_b32 v34, s42\nv_mov_b32 v35, s43\nv_mov_b32 v38, s42\nv_mov_b32 v39, s43")
    A("s_mov_b32 exec_lo, 0x000f000f\ns_mov_b32 exec_hi, 0x000f000f")
    A("s_nop 4")
    for t in range(4):
        A("v_mov_b32 v32, v%d\nv_mov_b32 v33, v%d\nv_mov_b32 v36, v%d\nv_mov_b32 v37, v%d" % (64 + 4 * t, 65 + 4 * t, 66 + 4 * t, 67 + 4 * t))
        A("global_store_dwordx4 v103, v[32:35], s[32:33] offset:%d%s" % (t * 128, SC))
        A("global_store_dwordx4 v103, v[36:39], s[32:33] offset:%d%s" % (t * 128 + 16, SC))
        A("s_nop 1")
    A("s_mov_b64 exec, -1")
    lds_set(100, 101, 12)
    stamp(3)
    A("s_branch L_c_pre")
    A("L_c1:")
    A("s_lshl_b32 s44, s34, 16\ns_lshl_b32 s45, s36, 14\ns_add_u32 s44, s44, s45\ns_add_u32 s44, s44, %d" % W_QP)
    A("v_lshlrev_b32 v6, 4, v0\nv_add_u32 v6, s44, v6\nv_add_u32 v7, 4096, v6\nv_add_u32 v8, 4096, v7\nv_add_u32 v9, 4096, v8")
    tags()
    p = poll_begin("s61")
    A("ds_read_b32 v20, v100 offset:4")
    A("s_waitcnt lgkmcnt(0)")
    A("v_cmp_gt_u32 vcc, %d, v20" % qk_at)
    poll_end(p, 4, "s61")
    stamp(2)
    p = poll_begin()
    for i in range(16):
        A("global_load_dwordx4 v[%d:%d], v%d, s[32:33] offset:%d%s" % (32 + 4 * i, 35 + 4 * i, 6 + (i >> 2), (i & 3) * 1024, SC))
    lds_set(100, 101, 16)
    A("s_waitcnt vmcnt(0)")
    for i in range(16):
        A("v_xor_b32 v%d, s42, v%d\nv_xor_b32 v%d, s43, v%d" % (34 + 4 * i, 34 + 4 * i, 35 + 4 * i, 35 + 4 * i))
    A("v_or3_b32 v20, v34, v35, v38")
    A("v_or_b32 v20, v20, v39")
    for i in range(2, 16):
        A("v_or3_b32 v20, v20, v%d, v%d" % (34 + 4 * i, 35 + 4 * i))
    A("v_cmp_ne_u32 vcc, 0, v20")
    poll_end(p, sleep_q)
    for j in range(4):
        a = 32 + 4 * j
        A("v_pk_add_f32 v[%d:%d], v[%d:%d], v[%d:%d]" % (a, a + 1, a, a + 1, a + 16, a + 17))
        A("v_pk_add_f32 v[%d:%d], v[%d:%d], v[%d:%d]" % (a + 32, a + 33, a + 32, a + 33, a + 48, a + 49))
        A("v_pk_add_f32 v[%d:%d], v[%d:%d], v[%d:%d]" % (a, a + 1, a, a + 1, a + 32, a + 33))
    for j in range(4): A("v_cvt_pk_bf16_f32 v%d, v%d, v%d" % (16 + j, 32 + 4 * j, 33 + 4 * j))
    A("v_lshlrev_b32 v7, 2, v0\nv_add_u32 v7, %d, v7" % L_Q)
    for j in range(4): A("ds_write_b32 v7, v%d offset:%d" % (16 + j, j * 256))
    lds_set(100, 101, 0)
    stamp(3)
    A("s_branch L_c_pre")
    A("L_c2:")
    A("v_mov_b32 v12, -1\nv_mov_b32 v13, -1\nv_mov_b32 v14, -1\nv_mov_b32 v15, -1")
    A("v_lshrrev_b32 v16, 5, v0\nv_lshlrev_b32 v16, 14, v16\nv_and_b32 v17, 31, v0\nv_lshl_add_u32 v16, v17, 4, v16")
    A("s_lshl_b32 s44, s34, 16\ns_lshl_b32 s45, s36, 12\ns_add_u32 s44, s44, s45\ns_lshl_b32 s45, s37, 9\ns_add_u32 s44, s44, s45\ns_add_u32 s44, s44, %d" % W_OP)
    A("v_add_u32 v16, s44, v16")
    A("global_store_dwordx4 v16, v[12:15], s[32:33]%s" % SC)
    A("v_add_u32 v17, 0x8000, v16")
    A("global_store_dwordx4 v17, v[12:15], s[32:33]%s" % SC)
    A("global_store_dwordx2 v102, v[12:13], s[32:33]%s" % SC)
    A("v_lshlrev_b32 v18, 4, v2\nv_bfe_u32 v19, v0, 3, 1\nv_add_u32 v18, v18, v19\nv_lshlrev_b32 v18, 12, v18\nv_and_b32 v19, 7, v0\nv_lshl_add_u32 v18, v19, 4, v18")
    A("s_lshl_b32 s45, s38, 7\ns_add_u32 s45, s45, %d" % W_HP)
    A("s_cmp_lg_u32 s40, 0\ns_cbranch_scc1 L_c2h")
    A("s_lshl_b32 s44, s37, 13\ns_add_u32 s44, s44, s45")
    A("v_add_u32 v19, s44, v18")
    A("global_store_dwordx4 v19, v[12:15], s[32:33]%s" % SC)
    A("s_cmp_eq_u32 s63, 0\ns_cbranch_scc1 L_c2h")
    A("s_sub_u32 s44, s37, 2\ns_and_b32 s44, s44, 7\ns_lshl_b32 s44, s44, 13\ns_add_u32 s44, s44, s45")
    A("v_add_u32 v19, s44, v18")
    A("global_store_dwordx4 v19, v[12:15], s[32:33]%s" % SC)
    A("L_c2h:")
    A("s_cmp_eq_u32 s39, 0\ns_cbranch_scc1 L_c2a")
    A("s_lshl_b32 s44, s36, 11\ns_lshl_b32 s45, s6, 7\ns_add_u32 s44, s44, s45\ns_add_u32 s44, s44, %d" % W_H)
    A("v_lshrrev_b32 v19, 3, v0\nv_lshlrev_b32 v19, 13, v19\nv_and_b32 v20, 7, v0\nv_lshl_add_u32 v19, v20, 4, v19\nv_add_u32 v19, s44, v19")
    A("global_store_dwordx4 v19, v[12:15], s[32:33]%s" % SC)
    A("L_c2a:")
    A("s_cmp_eq_u32 s40, 0\ns_cbranch_scc1 L_c2b")
    A("v_lshrrev_b32 v19, 3, v0\nv_mul_u32_u24 v19, %d, v19\nv_and_b32 v20, 7, v0\nv_lshl_add_u32 v19, v20, 4, v19" % (NJ * 128))
    A("s_lshl_b32 s44, s41, 7\ns_add_u32 s44, s44, %d" % W_OUT)
    A("v_add_u32 v19, s44, v19")
    for i in range(8):
        A("global_store_dwordx4 v19, v[12:15], s[32:33]%s" % SC)
        A("v_add_u32 v19, %d, v19" % (8 * NJ * 128))
    A("L_c2b:")
    A("s_waitcnt vmcnt(0)")
    tags()
    A("s_getreg_b32 s44, hwreg(HW_REG_XCC_ID)\ns_and_b32 s44, s44, 7\ns_xor_b32 s44, s44, s43")
    A("v_mov_b32 v20, s42\nv_mov_b32 v21, s44")
    A("s_lshl_b32 s44, s34, 5\ns_add_u32 s44, s44, s35\ns_lshl_b32 s44, s44, 3\ns_add_u32 s44, s44, %d\nv_mov_b32 v22, s44" % W_FLAG)
    A("s_mov_b64 exec, 1")
    A("global_store_dwordx2 v22, v[20:21], s[32:33]%s" % SC)
    A("s_mov_b64 exec, -1")
    stamp(3)
    A("s_branch L_c_join")
    A("L_c3:")
    if "nopf" not in exp:
        A("s_cmp_ge_u32 s35, 2\ns_cbranch_scc1 L_c3_nopf")
        A("s_getpc_b64 s[44:45]")
        A("L_pc_here:")
        A("s_sub_u32 s44, s44, L_pc_here-%s\ns_subb_u32 s45, s45, 0" % K)
        A("v_lshlrev_b32 v6, 4, v0")
        for i in range(13):
            A("global_load_dwordx4 v[32:35], v6, s[44:45]")
            A("v_add_u32 v6, 1024, v6")
        A("L_c3_nopf:")
    A("s_cmp_eq_u32 s40, 0\ns_cbranch_scc1 L_c3a")
    if DRY:
        A("s_mov_b32 s44, 0\ns_mov_b32 s47, 0\ns_mov_b64 s[4:5], 0\ns_mov_b64 exec, 0\ns_branch L_s_D")
        A("L_dry_ret3:")
        A("s_mov_b64 s[4:5], -1\ns_mov_b64 exec, -1")
    A("s_lshl_b32 s44, s41, 6")
    A("v_and_b32 v6, 31, v0\nv_lshlrev_b32 v7, 1, v6\nv_add_u32 v7, s44, v7")
    A("global_load_ushort v8, v7, s[22:23]")
    A("v_lshlrev_b32 v6, 2, v6\nv_add_u32 v6, %d, v6" % L_B1)
    A("s_waitcnt vmcnt(0)")
    A("v_lshlrev_b32 v8, 16, v8")
    A("ds_write_b32 v6, v8")
    A("L_c3a:")
    tags()
    lds_spin(100, 16, 1, 20, 4)
    A("v_lshlrev_b32 v8, 4, v0\nv_add_u32 v8, %d, v8" % W_FLAG)
    p = poll_begin()
    A("global_load_dwordx4 v[16:19], v8, s[32:33]%s" % SC)
    A("global_load_dwordx4 v[20:23], v8, s[32:33] offset:1024%s" % SC)
    A("s_waitcnt vmcnt(0)")
    for a in (16, 18, 20, 22):
        A("v_xor_b32 v%d, s42, v%d\nv_xor_b32 v%d, s43, v%d" % (a, a, a + 1, a + 1))
    A("v_or3_b32 v24, v16, v18, v20\nv_or_b32 v24, v24, v22")
    A("v_or3_b32 v25, v17, v19, v21\nv_or_b32 v25, v25, v23\nv_lshrrev_b32 v25, 3, v25")
    A("v_or_b32 v24, v24, v25")
    A("v_cmp_ne_u32 vcc, 0, v24")
    poll_end(p, 8)
    A("s_getreg_b32 s44, hwreg(HW_REG_XCC_ID)\ns_and_b32 s44, s44, 7")
    A("s_cmp_lt_u32 s34, 4\ns_cbranch_scc1 L_c3lo")
    A("v_mov_b32 v17, v21\nv_mov_b32 v19, v23")
    A("L_c3lo:")
    A("v_xor_b32 v17, s44, v17\nv_xor_b32 v19, s44, v19\nv_or_b32 v17, v17, v19")
    A("v_xor_b32 v24, s34, v2\nv_and_b32 v24, 3, v24")
    A("v_cmp_eq_u32 vcc, 0, v24\ns_nop 1\nv_cndmask_b32 v17, 0, v17, vcc")
    A("v_cmp_ne_u32 vcc, 0, v17")
    A("s_cmp_eq_u64 vcc, 0\ns_cbranch_scc0 L_c3nf")
    if "nofast" not in exp: lds_set(100, 101, 32)
    A("L_c3nf:")
    lds_set(100, 101, 40)
    stamp(3)
    A("s_branch L_c_join")
    A("L_c_pre:")
    A("L_c_join:")
    A("v_and_b32 v9, 7, v0\nv_lshlrev_b32 v9, 3, v9")
    A("s_lshl_b32 s44, s36, 10\ns_lshl_b32 s45, s6, 6\ns_add_u32 s44, s44, s45")
    A("v_add_u32 v126, s44, v9")
    A("v_add_u32 v11, s45, v9")
    A("global_load_dwordx2 v[120:121], v126, s[8:9]")
    A("global_load_dwordx2 v[122:123], v11, s[26:27]")
    A("global_load_dwordx2 v[124:125], v126, s[28:29]")
    A("s_lshl_b32 s44, s38, 14\ns_lshl_b32 s45, s3, 12\ns_add_u32 s44, s44, s45\ns_add_u32 s44, s44, %d" % W_OP)
    A("v_lshlrev_b32 v6, 4, v0\nv_add_u32 v6, s44, v6")
    A("s_lshl_b32 s44, s38, 8\ns_lshl_b32 s45, s3, 6\ns_add_u32 s44, s44, s45\ns_add_u32 s44, s44, %d" % W_ML)
    A("v_lshrrev_b32 v7, 5, v0\nv_lshlrev_b32 v7, 5, v7\nv_add_u32 v7, s44, v7")
    A("v_and_b32 v8, 31, v0\nv_lshlrev_b32 v8, 3, v8\ns_lshl_b32 s45, s3, 8\ns_add_u32 s45, s45, %d\nv_add_u32 v8, s45, v8" % L_OB)
    A("v_lshrrev_b32 v9, 2, v3\nv_lshlrev_b32 v9, 8, v9\nv_lshl_add_u32 v9, v2, 4, v9\nv_add_u32 v9, %d, v9" % L_OB)
    A("v_lshlrev_b32 v10, 16, v2\nv_lshl_add_u32 v10, v3, 2, v10")
    A("s_lshl_b32 s45, s38, 7\ns_lshr_b32 s46, s3, 1\ns_lshl_b32 s46, s46, 12\ns_add_u32 s45, s45, s46\ns_and_b32 s46, s3, 1\ns_lshl_b32 s46, s46, 6\ns_add_u32 s45, s45, s46\ns_add_u32 s45, s45, %d" % W_HP)
    A("s_sub_u32 s55, s37, 2\ns_and_b32 s55, s55, 7")
    A("s_lshl_b32 s44, s55, 13\ns_add_u32 s44, s44, s45\nv_add_u32 v99, s44, v10")
    A("s_lshl_b32 s44, s37, 13\ns_add_u32 s44, s44, s45\nv_add_u32 v10, s44, v10")
    A("v_lshrrev_b32 v11, 2, v3\nv_lshlrev_b32 v11, 14, v11\nv_lshl_add_u32 v11, v2, 7, v11\nv_and_b32 v13, 3, v3\nv_lshl_add_u32 v11, v13, 4, v11")
    A("s_lshl_b32 s44, s34, 16\ns_lshl_b32 s45, s36, 12\ns_add_u32 s44, s44, s45\ns_lshl_b32 s45, s37, 9\ns_add_u32 s44, s44, s45")
    A("s_lshl_b32 s45, s3, 6\ns_add_u32 s44, s44, s45\ns_add_u32 s44, s44, %d" % W_OP)
    A("v_add_u32 v11, s44, v11")
    A("v_lshlrev_b32 v13, 4, v0\ns_lshl_b32 s45, s3, 10\ns_add_u32 s45, s45, %d\nv_add_u32 v13, s45, v13" % L_OP)
    A("v_lshrrev_b32 v14, 2, v3\nv_lshl_add_u32 v14, v2, 3, v14\nv_and_b32 v15, 3, v3\nv_lshlrev_b32 v12, 3, v15")
    A("v_lshl_add_u32 v12, v14, 7, v12\ns_lshl_b32 s44, s3, 5\nv_add_u32 v98, s44, v12\nv_add_u32 v12, %d, v98" % L_ST)
    A("s_mov_b32 s54, 0x3fb8aa3b")
    A("v_bfe_u32 v16, v0, 3, 2\nv_lshlrev_b32 v16, 3, v16\nv_lshrrev_b32 v17, 5, v0\nv_add_u32 v16, v16, v17\nv_lshlrev_b32 v16, 10, v16")
    A("v_and_b32 v17, 7, v0\nv_lshl_add_u32 v97, v17, 4, v16")
    if DRY:
        A("s_cmp_lg_u32 s3, 0\ns_cbranch_scc1 L_dry_skip0")
        A("s_mov_b64 s[4:5], 0\ns_mov_b64 exec, 0\ns_branch L_c_nodw")
        A("L_dry_ret0:")
        A("s_mov_b64 s[4:5], -1\ns_mov_b64 exec, -1")
        A("L_dry_skip0:")
    A("s_sub_u32 s55, s37, 2\ns_and_b32 s55, s55, 7")
    A("s_lshl_b32 s44, s38, 17\ns_lshl_b32 s45, s3, 15\ns_add_u32 s44, s44, s45")
    A("s_lshl_b32 s45, s37, 7\ns_add_u32 s45, s45, s44\ns_add_u32 s46, s16, s45\ns_addc_u32 s47, s17, 0")
    A("s_lshl_b32 s45, s55, 7\ns_add_u32 s45, s45, s44\ns_add_u32 s50, s16, s45\ns_addc_u32 s51, s17, 0")
    A("s_lshl_b32 s48, s3, 12\ns_add_u32 s48, s48, %d" % L_ST)
    stamp(4)
    A("s_cmp_lg_u32 s40, 0\ns_cbranch_scc1 L_c_nowo")
    lds_spin2(100, 8, 8, 12, 1, 20, 21, 2)
    for i in range(4):
        A("s_mov_b32 m0, s48\ns_add_u32 s48, s48, 1024")
        A("global_load_lds_dwordx4 v97, s[46:47]")
        A("s_add_u32 s46, s46, 2048\ns_addc_u32 s47, s47, 0")
    A("L_c_nowo:")
    A("s_cmp_eq_u32 s63, 0\ns_cbranch_scc1 L_c_nowo2")
    lds_spin(100, 36, 8, 20, 2)
    A("s_lshr_b32 s48, s3, 1\ns_lshl_b32 s48, s48, 14\ns_and_b32 s45, s3, 1\ns_lshl_b32 s45, s45, 12\ns_add_u32 s48, s48, s45")
    for i in range(4):
        A("s_mov_b32 m0, s48\ns_add_u32 s48, s48, 1024")
        A("global_load_lds_dwordx4 v97, s[50:51]")
        A("s_add_u32 s50, s50, 2048\ns_addc_u32 s51, s51, 0")
    A("L_c_nowo2:")
    A("s_cmp_eq_u32 s40, 0\ns_cbranch_scc1 L_c_nodw")
    A("s_cmp_lg_u32 s3, 3\ns_cbranch_scc1 L_c_nodw")
    if dw_late: lds_spin(100, 24, dw_late, 20, 2) if dw_late == 8 else None
    if dw_late and dw_late != 8:
        p = poll_begin("s61")
        A("ds_read_b32 v20, v100 offset:24")
        A("s_waitcnt lgkmcnt(0)")
        A("v_cmp_gt_u32 vcc, %d, v20" % dw_late)
        poll_end(p, 2, "s61")
    lds_spin2(100, 36, 8, 8, 8, 20, 21, 2)
    A("s_lshl_b32 s44, s41, 6\ns_add_u32 s46, s20, s44\ns_addc_u32 s47, s21, 0")
    A("s_lshl_b32 s44, s41, 15\ns_add_u32 s50, s24, s44\ns_addc_u32 s51, s25, 0")
    A("v_lshrrev_b32 v4, 2, v0\nv_mul_u32_u24 v4, 3584, v4\nv_and_b32 v5, 3, v0\nv_lshl_add_u32 v4, v5, 4, v4")
    A("v_lshrrev_b32 v5, 3, v0\nv_lshlrev_b32 v5, 10, v5\nv_and_b32 v6, 7, v0\nv_lshl_add_u32 v5, v6, 4, v5")
    A("s_mov_b32 s48, 0\ns_mov_b32 s49, 8")
    A("L_c_dwl:")
    A("s_waitcnt vmcnt(40)")
    for n in range(4):
        A("s_mov_b32 m0, s48\ns_add_u32 s48, s48, 1024")
        A("global_load_lds_dwordx4 v4, s[46:47]")
        A("s_add_u32 s46, s46, %d\ns_addc_u32 s47, s47, 0" % (16 * 3584))
    for n in range(4):
        A("s_mov_b32 m0, s48\ns_add_u32 s48, s48, 1024")
        A("global_load_lds_dwordx4 v5, s[50:51] offset:0")
        A("s_add_u32 s50, s50, 8192\ns_addc_u32 s51, s51, 0")
    A("s_add_u32 s48, s48, 8192")
    A("s_sub_u32 s50, s50, %d\ns_subb_u32 s51, s51, 0" % (4 * 8192 - 128))
    A("s_sub_u32 s49, s49, 1\ns_cmp_lg_u32 s49, 0\ns_cbranch_scc1 L_c_dwl")
    A("s_waitcnt vmcnt(0)")
    lds_set(100, 101, 28)
    stamp(6)
    A("s_branch L_chain_end")
    A("L_c_nodw:")
    A("; DRY_BEGIN")
    A("v_and_b32 v14, 3, v0\nv_lshlrev_b32 v15, 5, v14\nv_add_u32 v15, %d, v15\nv_add_u32 v14, %d, v15" % (L_MB, L_LB - L_MB))
    A("v_add_u32 v16, 0x10000, v13")
    lds_spin(100, 40, 1, 26, 2)
    A("ds_read_b32 v26, v100 offset:32")
    A("s_waitcnt lgkmcnt(0)")
    A("v_readfirstlane_b32 s55, v26")
    stamp(5)
    A("s_cmp_eq_u32 s3, 3\ns_cbranch_scc1 L_c_b3")
    lds_spin(100, 24, 8, 26, 0)
    A("s_cmp_eq_u32 s3, 2\ns_cbranch_scc1 L_c_pml")
    for w_ in range(8):
        A("ds_read_b128 v[%d:%d], v%d offset:%d" % (56 + 4 * w_, 59 + 4 * w_, 13 if w_ < 4 else 16, (w_ & 3) * 16384))
    A("s_waitcnt lgkmcnt(4)")
    A("v_pk_add_f32 v[56:57], v[56:57], v[60:61]\nv_pk_add_f32 v[58:59], v[58:59], v[62:63]")
    A("v_pk_add_f32 v[64:65], v[64:65], v[68:69]\nv_pk_add_f32 v[66:67], v[66:67], v[70:71]")
    A("v_pk_add_f32 v[56:57], v[56:57], v[64:65]\nv_pk_add_f32 v[58:59], v[58:59], v[66:67]")
    A("s_waitcnt lgkmcnt(0)")
    A("v_pk_add_f32 v[72:73], v[72:73], v[76:77]\nv_pk_add_f32 v[74:75], v[74:75], v[78:79]")
    A("v_pk_add_f32 v[80:81], v[80:81], v[84:85]\nv_pk_add_f32 v[82:83], v[82:83], v[86:87]")
    A("v_pk_add_f32 v[56:57], v[56:57], v[72:73]\nv_pk_add_f32 v[58:59], v[58:59], v[74:75]")
    A("v_pk_add_f32 v[56:57], v[56:57], v[80:81]\nv_pk_add_f32 v[58:59], v[58:59], v[82:83]")
    A("s_cmp_eq_u32 s55, 0\ns_cbranch_scc1 L_c_oslow")
    A("global_store_dwordx4 v11, v[56:59], s[32:33]")
    A("s_branch L_c_b")
    A("L_c_oslow:")
    A("global_store_dwordx4 v11, v[56:59], s[32:33]%s" % SC)
    A("s_branch L_c_b")
    A("L_c_pml:")
    A("ds_read_b128 v[16:19], v14\nds_read_b128 v[20:23], v14 offset:16")
    A("ds_read_b128 v[28:31], v15\nds_read_b128 v[32:35], v15 offset:16")
    A("s_waitcnt lgkmcnt(0)")
    A("v_max3_f32 v24, v28, v29, v30\nv_max3_f32 v24, v24, v31, v32\nv_max3_f32 v24, v24, v33, v34\nv_max_f32 v24, v24, v35")
    A("v_add_f32 v16, v16, v17\nv_add_f32 v18, v18, v19\nv_add_f32 v20, v20, v21\nv_add_f32 v22, v22, v23")
    A("v_add_f32 v16, v16, v18\nv_add_f32 v20, v20, v22\nv_add_f32 v25, v16, v20")
    A("s_mov_b64 exec, 15")
    A("s_cmp_eq_u32 s55, 0\ns_cbranch_scc1 L_c_mslow")
    A("global_store_dwordx2 v102, v[24:25], s[32:33]")
    A("s_branch L_c_mdone")
    A("L_c_mslow:")
    A("global_store_dwordx2 v102, v[24:25], s[32:33]%s" % SC)
    A("L_c_mdone:")
    A("s_mov_b64 exec, -1")
    A("L_c_b:")
    A("s_cmp_lg_u32 s40, 0\ns_cbranch_scc1 L_c_dexit")
    A("s_waitcnt vmcnt(1)")
    A("s_branch L_c_b2")
    A("L_c_dexit:")
    stamp(6)
    A("s_branch L_chain_end")
    A("L_c_b3:")
    A("s_waitcnt vmcnt(0)")
    A("L_c_b2:")
    lds_inc(100, 101, 20)
    stamp(6)
    lds_spin(100, 20, 4, 20, 0)
    for ks in range(4):
        A("ds_read_b64_tr_b16 v[%d:%d], v12 offset:%d" % (104 + 4 * ks, 105 + 4 * ks, ks * 4096))
        A("ds_read_b64_tr_b16 v[%d:%d], v12 offset:%d" % (106 + 4 * ks, 107 + 4 * ks, ks * 4096 + 512))
    A("s_cmp_eq_u32 s63, 0\ns_cbranch_scc1 L_c_nof2")
    A("s_waitcnt lgkmcnt(0)")
    for ks in range(4):
        o_ = (ks >> 1) * 16384 + (ks & 1) * 4096
        A("ds_read_b64_tr_b16 v[%d:%d], v98 offset:%d" % (72 + 4 * ks, 73 + 4 * ks, o_))
        A("ds_read_b64_tr_b16 v[%d:%d], v98 offset:%d" % (74 + 4 * ks, 75 + 4 * ks, o_ + 512))
    A("L_c_nof2:")
    hop([("global_load_dwordx4 v[%d:%d], v6, s[32:33] offset:%d%s" % (32 + 4 * i, 35 + 4 * i, i * 1024, SC), [35 + 4 * i]) for i in range(4)] +
        [("global_load_dwordx4 v[48:51], v7, s[32:33]%s" % SC, [49, 51]), ("global_load_dwordx4 v[52:55], v7, s[32:33] offset:16%s" % SC, [53, 55])], 20, pipe=PIPE)
    stamp(7)
    A("v_max3_f32 v20, v48, v50, v52\nv_max_f32 v20, v20, v54")
    swap_red([20], [21], 32, "max")
    A("v_mul_f32 v20, s54, v20")
    for i in range(4): A("v_fma_f32 v%d, v%d, s54, -v20" % (56 + i, 48 + 2 * i))
    for i in range(4): A("v_exp_f32 v%d, v%d" % (56 + i, 56 + i))
    A("s_nop 0")
    for e in range(4):
        A("v_mul_f32 v%d, v56, v%d" % (20 + e, 32 + e))
    A("v_mul_f32 v24, v56, v49")
    for i in range(1, 4):
        for e in range(4):
            A("v_fma_f32 v%d, v%d, v%d, v%d" % (20 + e, 56 + i, 32 + 4 * i + e, 20 + e))
        A("v_fma_f32 v24, v%d, v%d, v24" % (56 + i, 49 + 2 * i))
    swap_red([20, 21, 22, 23, 24], [25, 26, 27, 28, 29], 32)
    A("v_rcp_f32 v24, v24\ns_nop 0")
    for e in range(4): A("v_mul_f32 v%d, v%d, v24" % (20 + e, 20 + e))
    A("v_cvt_pk_bf16_f32 v20, v20, v21\nv_cvt_pk_bf16_f32 v21, v22, v23")
    A("s_mov_b32 exec_hi, 0")
    A("ds_write_b64 v8, v[20:21]")
    A("s_mov_b64 exec, -1")
    A("s_waitcnt lgkmcnt(0)")
    A("s_barrier")
    for ks in range(4):
        A("ds_read_b128 v[%d:%d], v9 offset:%d" % (128 + 4 * ks, 131 + 4 * ks, ks * 64))
    for ks in range(4):
        A("s_waitcnt lgkmcnt(%d)" % (3 - ks))
        c = "0" if ks == 0 else "v[20:23]"
        A("v_mfma_f32_16x16x32_bf16 v[20:23], v[%d:%d], v[%d:%d], %s" % (128 + 4 * ks, 131 + 4 * ks, 104 + 4 * ks, 107 + 4 * ks, c))
    A("s_cmp_eq_u32 s63, 0\ns_cbranch_scc1 L_c_one")
    for ks in range(4):
        c = "0" if ks == 0 else "v[24:27]"
        A("v_mfma_f32_16x16x32_bf16 v[24:27], v[%d:%d], v[%d:%d], %s" % (128 + 4 * ks, 131 + 4 * ks, 72 + 4 * ks, 75 + 4 * ks, c))
    A("s_nop 1")
    A("global_store_dword v10, v20, s[32:33]%s" % SC)
    A("s_nop 4")
    A("global_store_dword v99, v24, s[32:33]%s" % SC)
    A("s_branch L_c_bdone")
    A("L_c_one:")
    A("s_nop 5")
    A("global_store_dword v10, v20, s[32:33]%s" % SC)
    A("L_c_bdone:")
    A("s_mov_b64 exec, -1")
    stamp(8)
    A("s_cmp_eq_u32 s39, 0\ns_cbranch_scc1 L_chain_end")
    A("s_lshl_b32 s46, s36, 4\ns_add_u32 s46, s46, s6")
    A("v_lshlrev_b32 v6, 4, v0\nv_and_b32 v7, 7, v0")
    A("s_lshl_b32 s44, s46, 12\ns_lshl_b32 s45, s3, 10\ns_add_u32 s44, s44, s45\ns_add_u32 s44, s44, %d\nv_add_u32 v9, s44, v6" % W_HP)
    A("v_lshlrev_b32 v10, 4, v7\nv_add_u32 v10, %d, v10" % L_CP)
    A("s_lshl_b32 s45, s3, 7\nv_add_u32 v11, s45, v10")
    A("s_lshl_b32 s44, s36, 11\ns_lshl_b32 s45, s6, 7\ns_add_u32 s44, s44, s45\ns_add_u32 s44, s44, %d" % W_H)
    A("v_lshrrev_b32 v8, 3, v0\nv_lshlrev_b32 v8, 13, v8\nv_lshl_add_u32 v8, v7, 4, v8\nv_add_u32 v8, s44, v8")
    A("v_lshlrev_b32 v110, 16, v120\nv_and_b32 v111, 0xffff0000, v120\nv_lshlrev_b32 v112, 16, v121\nv_and_b32 v113, 0xffff0000, v121")
    A("v_lshlrev_b32 v114, 16, v122\nv_and_b32 v115, 0xffff0000, v122\nv_lshlrev_b32 v116, 16, v123\nv_and_b32 v117, 0xffff0000, v123")
    poll1("global_load_dwordx4 v[16:19], v9, s[32:33]%s" % SC, 19)
    stamp(2)
    red8rows([16, 17, 18, 19], [24, 25, 26, 27])
    A("s_mov_b64 exec, 0xff")
    A("ds_write_b128 v11, v[16:19]")
    A("s_mov_b64 exec, -1")
    A("s_waitcnt lgkmcnt(0)")
    A("s_barrier")
    A("s_cmp_eq_u32 s3, 0\ns_cbranch_scc1 L_c_c0")
    A("s_barrier")
    A("s_branch L_chain_end")
    A("L_c_c0:")
    for i in range(4): A("ds_read_b128 v[%d:%d], v10 offset:%d" % (32 + 4 * i, 35 + 4 * i, i * 128))
    A("s_waitcnt lgkmcnt(0)")
    A("v_pk_add_f32 v[16:17], v[32:33], v[36:37]\nv_pk_add_f32 v[18:19], v[34:35], v[38:39]")
    A("v_pk_add_f32 v[20:21], v[40:41], v[44:45]\nv_pk_add_f32 v[22:23], v[42:43], v[46:47]")
    A("v_pk_add_f32 v[16:17], v[16:17], v[20:21]\nv_pk_add_f32 v[18:19], v[18:19], v[22:23]")
    A("v_cvt_pk_bf16_f32 v24, v16, v17\nv_cvt_pk_bf16_f32 v25, v18, v19")
    A("v_lshlrev_b32 v16, 16, v24\nv_and_b32 v17, 0xffff0000, v24\nv_lshlrev_b32 v18, 16, v25\nv_and_b32 v19, 0xffff0000, v25")
    for e in range(4): A("v_add_f32 v%d, v%d, v%d" % (16 + e, 16 + e, 110 + e))
    A("v_cvt_pk_bf16_f32 v24, v16, v17\nv_cvt_pk_bf16_f32 v25, v18, v19")
    A("v_lshlrev_b32 v104, 16, v24\nv_and_b32 v105, 0xffff0000, v24\nv_lshlrev_b32 v106, 16, v25\nv_and_b32 v107, 0xffff0000, v25")
    A("global_store_dwordx4 v8, v[104:107], s[32:33]%s" % SC)
    stamp(9)
    A("s_barrier")
    stamp(10)
    for i in range(7): A("ds_read_b128 v[%d:%d], v10 offset:%d" % (32 + 4 * i, 35 + 4 * i, 1024 + i * 128))
    A("s_waitcnt lgkmcnt(3)")
    A("v_pk_add_f32 v[16:17], v[32:33], v[36:37]\nv_pk_add_f32 v[18:19], v[34:35], v[38:39]")
    A("v_pk_add_f32 v[20:21], v[40:41], v[44:45]\nv_pk_add_f32 v[22:23], v[42:43], v[46:47]")
    A("s_waitcnt lgkmcnt(0)")
    A("v_pk_add_f32 v[24:25], v[48:49], v[52:53]\nv_pk_add_f32 v[26:27], v[50:51], v[54:55]")
    A("v_pk_add_f32 v[16:17], v[16:17], v[56:57]\nv_pk_add_f32 v[18:19], v[18:19], v[58:59]")
    A("v_pk_add_f32 v[20:21], v[20:21], v[24:25]\nv_pk_add_f32 v[22:23], v[22:23], v[26:27]")
    A("v_pk_add_f32 v[16:17], v[16:17], v[20:21]\nv_pk_add_f32 v[18:19], v[18:19], v[22:23]")
    A("v_cvt_pk_bf16_f32 v24, v16, v17\nv_cvt_pk_bf16_f32 v25, v18, v19")
    A("v_lshlrev_b32 v16, 16, v24\nv_and_b32 v17, 0xffff0000, v24\nv_lshlrev_b32 v18, 16, v25\nv_and_b32 v19, 0xffff0000, v25")
    for e in range(4): A("v_add_f32 v%d, v%d, v%d" % (16 + e, 16 + e, 114 + e))
    A("v_cvt_pk_bf16_f32 v24, v16, v17\nv_cvt_pk_bf16_f32 v25, v18, v19")
    A("v_lshlrev_b32 v16, 16, v24\nv_and_b32 v17, 0xffff0000, v24\nv_lshlrev_b32 v18, 16, v25\nv_and_b32 v19, 0xffff0000, v25")
    for e in range(4): A("v_add_f32 v%d, v%d, v%d" % (16 + e, 16 + e, 104 + e))
    A("v_cvt_pk_bf16_f32 v24, v16, v17\nv_cvt_pk_bf16_f32 v25, v18, v19")
    A("s_mov_b64 exec, 0xff")
    A("global_store_dwordx2 v126, v[24:25], s[28:29]")
    A("s_or_b32 s44, s36, s6\ns_cmp_lg_u32 s44, 0\ns_cbranch_scc1 L_c_noe")
    A("s_mov_b64 exec, 1")
    A("v_mov_b32 v8, 0\nv_mov_b32 v9, s42")
    A("global_store_dword v8, v9, s[32:33]%s" % SC)
    A("L_c_noe:")
    A("s_mov_b64 exec, -1")
    A("; DRY_END")
    A("L_chain_end:")
    if DRY: A("s_cbranch_execz L_dry_ret0")
    stamp(11)
    stamp_flush()
    A("L_exit:")
    A("s_endpgm")
    A("L_code_end:")
    if "nopf" not in exp: A(".fill 256, 4, 0xbf800000")

    hdr = open("cdna_kernels/%s.s.ref" % NAME).read().split("; Override launch")[0]
    out = hdr
    out += "; @launch grid=(256,1,1) block=(768,1,1) lds=%d\n" % LDS_TOTAL
    out += '.amdgcn_target "amdgcn-amd-amdhsa--gfx950"\n.text\n.globl %s\n.p2align 8\n.type %s,@function\n' % (K, K)
    A.l = dryify(A.l) if DRY else [x for x in A.l if not x.strip().startswith("; DRY_")]
    out += A.text()
    out += '.section .rodata,"a"\n.p2align 6\n.amdhsa_kernel %s\n' % K
    out += "  .amdhsa_next_free_vgpr 168\n  .amdhsa_next_free_sgpr 102\n  .amdhsa_accum_offset 168\n"
    out += "  .amdhsa_group_segment_fixed_size 0\n  .amdhsa_kernarg_size 104\n  .amdhsa_user_sgpr_count 2\n  .amdhsa_user_sgpr_kernarg_segment_ptr 1\n  .amdhsa_system_sgpr_workgroup_id_x 1\n.end_amdhsa_kernel\n"
    return out

if __name__ == "__main__":
    import argparse
    ap = argparse.ArgumentParser()
    ap.add_argument("-o", default="cdna_kernels/%s.s" % NAME)
    ap.add_argument("--stamps", action="store_true")
    ap.add_argument("--W", type=int, default=2)
    ap.add_argument("--no-nt", action="store_true")
    ap.add_argument("--exp", default="")
    ap.add_argument("--qk_at", type=int, default=8)
    ap.add_argument("--vpre", type=int, default=0)
    ap.add_argument("--ends", action="store_true")
    ap.add_argument("--sE", type=int, default=0)
    ap.add_argument("--nv1", type=int, default=10)
    ap.add_argument("--dw", type=int, default=8)
    ap.add_argument("--sD", type=int, default=0)
    a = ap.parse_args()
    open(a.o, "w").write(gen(W=a.W, nt=not a.no_nt, stamps=a.stamps, exp=a.exp, qk_at=a.qk_at, vpre=a.vpre, ends=a.ends, sE=a.sE, nv1=a.nv1, dw_late=a.dw, sD=a.sD))
    print("wrote", a.o)
```

```python
import sys

NAME = "sequential_preLN__gqa_block_cached__mixer_channel_mlp__decode"

L_OP   = 8192
L_ST   = 131072
L_M    = 147456
L_ZP   = L_M
L_LB   = L_M + 4096
L_FL   = L_M + 4224
L_XH   = L_M + 4288
L_Q    = L_M + 8384
L_MB   = L_M + 9408
L_OB   = L_M + 9536
L_H1   = L_M + 10560
L_B1   = L_M + 10816
L_Z    = L_M + 10944
LDS_TOTAL = L_M + 11008

W_E     = 0x0
W_FLAG  = 0x1000
W_ML    = 0x2000
W_H     = 0x1C0000
W_QP    = 0x10000
W_OP    = 0x90000
W_HP    = 0x110000
W_OUT   = 0x150000
W_DBG   = 0x200000

NJ = 56
STREAM_STAMPS = ["start", "Kissued", "V1issued", "q ready", "max done", "V2issued", "PVdone", "bar3", "Dprep", "h got", "Dstore", "end"]
CHAIN_STAMPS = ["start", "s1", "s2", "s3", "prespin", "prebar3", "Opub", "gathered", "hpstore", "hstore", "outgath", "end"]
POLL_LIMIT = 20000

class Asm:
    def __init__(self): self.l = []
    def __call__(self, s):
        for x in s.split("\n"):
            x = x.strip()
            if x: self.l.append(("" if x.endswith(":") else "  ") + x)
    def text(self): return "\n".join(self.l) + "\n"

import re
def dryify(lines):
    out = []; on = False; n = 0; i = 0
    while i < len(lines):
        l = lines[i]; t = l.strip()
        if t == "; DRY_BEGIN": on = True; i += 1; continue
        if t == "; DRY_END": on = False; i += 1; continue
        if not on: out.append(l); i += 1; continue
        m = re.fullmatch(r"s_mov_b64 exec, (-1|\d+|0x[0-9a-f]+)", t)
        if m:
            out.append("  s_mov_b64 exec, s[4:5]" if m.group(1) == "-1" else "  s_and_b64 exec, s[4:5], %s" % m.group(1)); i += 1; continue
        m = re.fullmatch(r"s_mov_b32 exec_(lo|hi), (0x[0-9a-f]+|\d+)", t)
        if m:
            out.append(l if int(m.group(2), 0) == 0 else "  s_and_b32 exec_%s, s%d, %s" % (m.group(1), 4 if m.group(1) == "lo" else 5, m.group(2))); i += 1; continue
        m = re.fullmatch(r"s_mov_b64 (s\[\d+:\d+\]), -1", t)
        if m: out.append("  s_mov_b64 %s, s[4:5]" % m.group(1)); i += 1; continue
        if t == "s_barrier":
            n += 1; out += ["  s_cbranch_execz L_dry_%d" % n, l, "L_dry_%d:" % n]; i += 1; continue
        if t.startswith("global_"):
            prev = out[-1].strip() if out else ""
            if prev.startswith("s_cbranch_execz"):
                out.append(l); i += 1; continue
            n += 1; out.append("  s_cbranch_execz L_dry_%d" % n)
            while i < len(lines) and (lines[i].strip().startswith("global_") or lines[i].strip().startswith("s_nop") or lines[i].strip().startswith("v_add_u32")) and not lines[i].strip().endswith(":"):
                out.append(lines[i]); i += 1
            out.append("L_dry_%d:" % n); continue
        out.append(l); i += 1
    return out

def gen(W=2, nt=True, stamps=False, sleep_q=8, scope=" sc1", exp="", qk_at=8, vpre=0, ends=False, sE=0, sD=0, nv1=10, dw_late=8):
    A = Asm()
    PIPE = "pipe" in exp
    DRY = "dry" in exp.split(",")
    NT = " nt" if nt else ""
    SC = scope
    uid = [0]
    def lab(p):
        uid[0] += 1; return "L_%s_%d" % (p, uid[0])
    def stamp(i):
        if stamps and (not ends or i in (0, 11)): A("s_memrealtime s[%d:%d]" % (64 + 2 * i, 65 + 2 * i))
    def stamp_flush():
        if stamps:
            A("s_waitcnt lgkmcnt(0)")
            A("s_lshl_b32 s44, s2, 4\ns_add_u32 s44, s44, s3\ns_lshl_b32 s44, s44, 7\ns_add_u32 s44, s44, %d" % W_DBG)
            A("s_add_u32 s46, s32, s44\ns_addc_u32 s47, s33, 0")
            A("s_mov_b64 exec, 1\nv_mov_b32 v2, 0")
            for i in range(0, 12, 2):
                A("v_mov_b32 v4, s%d\nv_mov_b32 v5, s%d\nv_mov_b32 v6, s%d\nv_mov_b32 v7, s%d" % (64 + 2 * i, 65 + 2 * i, 66 + 2 * i, 67 + 2 * i))
                A("global_store_dwordx4 v2, v[4:7], s[46:47] offset:%d" % (i * 8))
                A("s_nop 1")
            A("s_mov_b64 exec, -1")
    def bf16r(dst, src):
        A("v_cvt_pk_bf16_f32 v%d, v%d, v%d" % (dst, src, src))
        A("v_and_b32 v%d, 0xffff0000, v%d" % (dst, dst))
    def dpp_red(regs, rors, op="add"):
        for k in rors:
            n = max(0, 2 - (len(regs) - 1))
            if n: A("s_nop %d" % (n - 1))
            for r in regs:
                A("v_%s_f32_dpp v%d, v%d, v%d row_ror:%d row_mask:0xf bank_mask:0xf" % (op, r, r, r, k))
    def red16(regs, op="add"): dpp_red(regs, (8, 4, 2, 1), op)
    def swap_red(regs, tmps, which, op="add"):
        ins = "v_permlane16_swap_b32" if which == 16 else "v_permlane32_swap_b32"
        for r, t in zip(regs, tmps): A("v_mov_b32 v%d, v%d" % (t, r))
        n = max(0, 2 - (len(regs) - 1))
        if n: A("s_nop %d" % (n - 1))
        for r, t in zip(regs, tmps): A("%s v%d, v%d" % (ins, r, t))
        if len(regs) < 2: A("s_nop 0")
        for r, t in zip(regs, tmps): A("v_%s_f32 v%d, v%d, v%d" % (op, r, r, t))
    def poll_begin(cnt="s60"):
        l = lab("poll"); A("s_mov_b32 %s, %d" % (cnt, POLL_LIMIT)); A(l + ":"); return l
    def poll_end(l, sleep, cnt="s60"):
        d = lab("pdone")
        A("s_cbranch_vccz %s" % d)
        A("s_sub_u32 %s, %s, 1" % (cnt, cnt))
        A("s_cbranch_scc1 %s" % d)
        if sleep: A("s_sleep %d" % sleep)
        A("s_branch %s" % l)
        A(d + ":")
    def lds_spin(addr_v, off, val, tmp, sleep=1):
        p = poll_begin("s61")
        A("ds_read_b32 v%d, v%d offset:%d" % (tmp, addr_v, off))
        A("s_waitcnt lgkmcnt(0)")
        A("v_cmp_ne_u32 vcc, %d, v%d" % (val, tmp))
        poll_end(p, sleep, "s61")
    def lds_spin2(addr_v, off1, val1, off2, val2, t1, t2, sleep=1):
        p = poll_begin("s61")
        A("ds_read_b32 v%d, v%d offset:%d\nds_read_b32 v%d, v%d offset:%d" % (t1, addr_v, off1, t2, addr_v, off2))
        A("s_waitcnt lgkmcnt(0)")
        A("v_xor_b32 v%d, %d, v%d\nv_xor_b32 v%d, %d, v%d\nv_or_b32 v%d, v%d, v%d" % (t1, val1, t1, t2, val2, t2, t1, t1, t2))
        A("v_cmp_ne_u32 vcc, 0, v%d" % t1)
        poll_end(p, sleep, "s61")
    def lds_inc(addr_v, one_v, off):
        A("s_mov_b64 exec, 1")
        A("ds_add_u32 v%d, v%d offset:%d" % (addr_v, one_v, off))
        A("s_mov_b64 exec, -1")
    def lds_set(addr_v, one_v, off):
        A("s_mov_b64 exec, 1")
        A("ds_write_b32 v%d, v%d offset:%d" % (addr_v, one_v, off))
        A("s_mov_b64 exec, -1")
    def roles():
        A("s_sub_u32 s56, s37, s34\ns_sub_u32 s56, s56, 1\ns_and_b32 s56, s56, 7")
        A("s_lshl_b32 s57, s36, 3\ns_add_u32 s57, s57, s34")
        A("s_lshl_b32 s41, s57, 1\ns_add_u32 s41, s41, s56")
        A("s_cmp_lt_u32 s56, 2\ns_cselect_b32 s40, 1, 0")
        A("s_lshr_b32 s63, s56, 1\ns_cmp_eq_u32 s63, 1\ns_cselect_b32 s63, 1, 0")
        A("s_cmp_ge_u32 s56, 6\ns_cselect_b32 s39, 1, 0")
        A("s_lshl_b32 s6, s34, 1\ns_and_b32 s7, s56, 1\ns_add_u32 s6, s6, s7")
        A("s_cmp_lt_u32 s57, 28\ns_cselect_b32 s40, s40, 0\ns_cselect_b32 s63, s63, 0")
    def tags():
        A("s_waitcnt lgkmcnt(0)")
        A("s_not_b32 s43, s62\ns_add_u32 s42, s62, 1")
    def hop(loads, tmp, mbase=88, rslot=None, tslot=None, init=None, pipe=True):
        top = lab("hop"); done = lab("hopdone")
        n = len(loads)
        for i in range(n):
            if init and init[i] is not None:
                A("s_mov_b32 s%d, 0x%x\ns_mov_b32 s%d, 0x%x" % (mbase + 2 * i, init[i][0] & 0xffffffff, mbase + 2 * i + 1, init[i][1] & 0xffffffff))
            else:
                A("s_mov_b64 s[%d:%d], -1" % (mbase + 2 * i, mbase + 2 * i + 1))
        A("s_mov_b32 s60, %d" % POLL_LIMIT)
        if tslot is not None and "rounds" in exp: stamp(tslot)
        def issue():
            for i, (ins, _) in enumerate(loads):
                A("s_mov_b64 exec, s[%d:%d]" % (mbase + 2 * i, mbase + 2 * i + 1))
                if pipe:
                    A("s_cbranch_execnz .+8" if False else "s_cmp_eq_u64 s[%d:%d], 0\ns_cselect_b64 exec, 1, exec" % (mbase + 2 * i, mbase + 2 * i + 1))
                    A(ins)
                else:
                    sk = lab("sk")
                    A("s_cbranch_execz %s" % sk)
                    A(ins)
                    A(sk + ":")
        if pipe:
            issue()
            A("s_mov_b64 exec, -1")
            A("s_sleep 1")
        A(top + ":")
        issue()
        A("s_waitcnt vmcnt(%d)" % (n if pipe else 0))
        for i, (_, regs) in enumerate(loads):
            A("s_mov_b64 exec, s[%d:%d]" % (mbase + 2 * i, mbase + 2 * i + 1))
            if len(regs) == 1:
                A("v_cmp_eq_u32 s[%d:%d], -1, v%d" % (mbase + 2 * i, mbase + 2 * i + 1, regs[0]))
            else:
                A("v_max_u32 v%d, v%d, v%d" % (tmp, regs[0], regs[1]))
                A("v_cmp_eq_u32 s[%d:%d], -1, v%d" % (mbase + 2 * i, mbase + 2 * i + 1, tmp))
        if n == 1: A("s_or_b64 vcc, s[%d:%d], s[%d:%d]" % (mbase, mbase + 1, mbase, mbase + 1))
        else: A("s_or_b64 vcc, s[%d:%d], s[%d:%d]" % (mbase, mbase + 1, mbase + 2, mbase + 3))
        for i in range(2, n): A("s_or_b64 vcc, vcc, s[%d:%d]" % (mbase + 2 * i, mbase + 2 * i + 1))
        A("s_cbranch_scc0 %s" % done)
        A("s_sub_u32 s60, s60, 1")
        A("s_cbranch_scc0 %s" % top)
        A(done + ":")
        A("s_mov_b64 exec, -1")
        if rslot is not None and stamps and "rounds" in exp:
            A("s_waitcnt lgkmcnt(0)")
            A("s_sub_u32 s%d, %d, s60\ns_mov_b32 s%d, 0" % (64 + 2 * rslot, POLL_LIMIT, 65 + 2 * rslot))

    def poll1(ins, reg):
        top = lab("p1"); done = lab("p1d")
        A("s_mov_b32 s60, %d" % POLL_LIMIT)
        A(top + ":")
        A(ins)
        A("s_waitcnt vmcnt(0)")
        A("v_cmp_eq_u32 vcc, -1, v%d" % reg)
        A("s_cbranch_vccz %s" % done)
        A("s_mov_b64 exec, vcc")
        A("s_sub_u32 s60, s60, 1")
        A("s_cbranch_scc0 %s" % top)
        A(done + ":")
        A("s_mov_b64 exec, -1")
    def red8rows(regs, tmps):
        dpp_red(regs, (8,))
        swap_red(regs, tmps, 16)
        swap_red(regs, tmps, 32)
    L_CP = L_ZP; L_EP = L_ZP + 1024
    K = NAME + "_kernel"
    A("%s:" % K)
    stamp(0)
    A("s_cmp_ge_u32 s2, 256")
    A("s_cbranch_scc1 L_exit")
    A("s_mov_b64 s[4:5], -1")
    A("s_load_dwordx16 s[8:23], s[0:1], 0")
    A("s_load_dwordx8 s[24:31], s[0:1], 64")
    A("s_load_dwordx2 s[32:33], s[0:1], 96")
    A("v_lshrrev_b32 v1, 6, v0")
    A("v_and_b32 v0, 63, v0")
    A("v_readfirstlane_b32 s3, v1")
    A("s_and_b32 s34, s2, 7")
    A("s_lshr_b32 s35, s2, 3")
    A("s_lshr_b32 s36, s35, 3")
    A("s_and_b32 s37, s35, 7")
    A("v_lshrrev_b32 v2, 4, v0")
    A("v_and_b32 v3, 15, v0")
    A("s_cmp_lt_u32 s3, 4")
    A("s_cbranch_scc1 L_chain")

    A("s_sub_u32 s44, s3, 4")
    A("s_lshl_b32 s45, s36, 3\ns_add_u32 s45, s45, s34\ns_lshl_b32 s45, s45, 20")
    A("s_lshl_b32 s46, s37, 17\ns_add_u32 s45, s45, s46")
    A("s_lshl_b32 s47, s44, 14\ns_add_u32 s45, s45, s47")
    for u in range(4):
        A("v_add_u32 v8, %d, v2" % (4 * u))
        A("v_xor_b32 v8, v8, v3")
        A("v_lshlrev_b32 v8, 4, v8")
        A("v_lshl_add_u32 v%d, v2, 8, v8" % (4 + u))
    A("v_lshlrev_b32 v8, 4, v3")
    A("v_lshl_add_u32 v9, v2, 10, v8")
    A("s_mov_b32 m0, s47")
    A("s_mov_b32 s52, s47")
    A("v_mov_b32 v93, %d\nv_mov_b32 v94, 1" % L_FL)
    A("s_waitcnt lgkmcnt(0)")
    A("s_add_u32 s56, s10, s45\ns_addc_u32 s57, s11, 0")
    A("s_add_u32 s58, s12, s45\ns_addc_u32 s59, s13, 0")
    def tile_base(T, dst, src):
        A("s_add_u32 s55, s44, %d\ns_and_b32 s55, s55, 3\ns_lshl_b32 s55, s55, 12" % T)
        A("s_add_u32 s%d, s%d, s55\ns_addc_u32 s%d, s%d, 0" % (dst, src, dst + 1, src + 1))
    tile_base(0, 48, 56)
    if "latebar" not in exp: A("s_barrier")
    for i in range(16):
        T, u = i >> 2, i & 3
        if u == 0 and T > 0:
            tile_base(T, 48, 56)
            A("s_add_u32 s52, s52, 4096\ns_mov_b32 m0, s52\ns_nop 0")
        A("global_load_lds_dwordx4 v%d, s[48:49] offset:%d%s" % (4 + u, u * 1024, NT))
        if "latebar" in exp and i == W: A("s_barrier")
        if W and i >= W:
            A("s_waitcnt vmcnt(%d)" % W)
    VB = 96
    def vload(idx):
        T, r = idx >> 2, idx & 3
        if r == 0: tile_base(T, 50, 58)
        A("global_load_dwordx4 v[%d:%d], v9, s[50:51] offset:%d%s" % (VB + 4 * idx, VB + 4 * idx + 3, r * 256, NT))
    for idx in range(vpre): vload(idx)
    lds_inc(93, 94, 4)
    stamp(1)
    if "noks" in exp: lds_spin(93, 16, 1, 8)
    else: lds_spin2(93, 4, 8, 16, 1, 8, 10)
    for idx in range(vpre, nv1): vload(idx)
    stamp(2)
    roles()
    for t in range(4):
        A("v_add_u32 v8, %d, v2" % (4 * t))
        A("v_xor_b32 v8, v8, v3")
        A("v_lshlrev_b32 v8, 4, v8")
        A("v_lshl_add_u32 v8, v3, 8, v8")
        A("v_add_u32 v%d, s47, v8" % (10 + t))
    A("v_lshrrev_b32 v8, 2, v3")
    A("v_lshlrev_b32 v14, 8, v8")
    A("v_lshl_add_u32 v14, v2, 4, v14")
    A("v_add_u32 v14, %d, v14" % L_Q)
    A("v_lshlrev_b32 v15, 5, v8")
    A("v_add_u32 v15, %d, v15" % L_MB)
    A("v_lshlrev_b32 v88, 5, v8")
    A("s_lshl_b32 s55, s44, 2\ns_add_u32 s55, s55, %d" % L_LB)
    A("v_add_u32 v88, s55, v88")
    A("v_and_b32 v8, 1, v3\nv_lshlrev_b32 v8, 4, v8\nv_mov_b32 v91, 0xffff\nv_lshlrev_b32 v91, v8, v91")
    A("v_and_b32 v8, 3, v3")
    A("v_cmp_gt_u32 vcc, 2, v8")
    A("v_lshlrev_b32 v92, 4, v0\ns_add_u32 s55, s47, %d\nv_add_u32 v92, s55, v92" % L_OP)
    A("v_cndmask_b32 v89, 0, v91, vcc")
    A("v_cndmask_b32 v90, v91, 0, vcc")
    A("s_mov_b32 s53, 0x3db504f3")
    A("s_mov_b32 s54, 0x3fb8aa3b")
    lds_spin(93, 0, 1, 8)
    stamp(3)
    for t in range(4):
        A("ds_read_b128 v[%d:%d], v14 offset:%d" % (16 + 4 * t, 19 + 4 * t, t * 64))
    A("s_waitcnt vmcnt(%d)" % nv1)
    def kfr(T, buf):
        for t in range(4):
            A("ds_read_b128 v[%d:%d], v%d offset:%d" % (buf + 4 * t, buf + 4 * t + 3, 10 + t, T * 4096))
    def qk(T, buf):
        for t in range(4):
            c = "0" if t == 0 else "v[%d:%d]" % (64 + 4 * T, 67 + 4 * T)
            A("v_mfma_f32_16x16x32_bf16 v[%d:%d], v[%d:%d], v[%d:%d], %s" % (64 + 4 * T, 67 + 4 * T, buf + 4 * t, buf + 4 * t + 3, 16 + 4 * t, 19 + 4 * t, c))
    kfr(0, 32); kfr(1, 48)
    A("s_waitcnt lgkmcnt(4)"); qk(0, 32)
    kfr(2, 32)
    A("s_waitcnt lgkmcnt(4)"); qk(1, 48)
    kfr(3, 48)
    A("s_waitcnt lgkmcnt(4)"); qk(2, 32)
    A("s_waitcnt lgkmcnt(0)"); qk(3, 48)
    def round_pair(a, b):
        A("v_cvt_pk_bf16_f32 v8, v%d, v%d" % (a, b))
        A("v_lshlrev_b32 v%d, 16, v8" % a)
        A("v_and_b32 v%d, 0xffff0000, v8" % b)
        A("v_mul_f32 v%d, s53, v%d" % (a, a))
        A("v_mul_f32 v%d, s53, v%d" % (b, b))
        A("v_cvt_pk_bf16_f32 v8, v%d, v%d" % (a, b))
        A("v_lshlrev_b32 v%d, 16, v8" % a)
        A("v_and_b32 v%d, 0xffff0000, v8" % b)
    for T in range(4):
        round_pair(64 + 4 * T, 65 + 4 * T); round_pair(66 + 4 * T, 67 + 4 * T)
    A("v_max3_f32 v8, v64, v65, v66")
    for i in range(67, 79, 2):
        A("v_max3_f32 v8, v8, v%d, v%d" % (i, i + 1))
    A("v_max_f32 v8, v8, v79")
    swap_red([8], [95], 16, "max"); swap_red([8], [95], 32, "max")
    A("s_lshl_b32 s55, s44, 2")
    A("v_add_u32 v95, s55, v15")
    A("s_mov_b32 exec_lo, 0x1111\ns_mov_b32 exec_hi, 0")
    A("ds_write_b32 v95, v8")
    A("s_mov_b64 exec, 1")
    A("ds_add_u32 v93, v94 offset:36")
    A("s_mov_b64 exec, -1")
    stamp(4)
    A("v_mul_f32 v95, s54, v8")
    for i in range(16):
        A("v_fma_f32 v%d, v%d, s54, -v95" % (64 + i, 64 + i))
    for i in range(16):
        A("v_exp_f32 v%d, v%d" % (64 + i, 64 + i))
    A("s_nop 0")
    A("v_add_f32 v8, v64, v65\nv_add_f32 v87, v66, v67")
    for i in range(4, 16, 2): A("v_add_f32 v8, v8, v%d\nv_add_f32 v87, v87, v%d" % (64 + i, 65 + i))
    A("v_add_f32 v8, v8, v87")
    for i in range(16):
        A("v_cvt_pk_bf16_f32 v%d, v%d, v%d" % (64 + i, 64 + i, 64 + i))
    swap_red([8], [87], 16, "add"); swap_red([8], [87], 32, "add")
    A("v_mov_b32 v16, v8")
    for idx in range(nv1, 16): vload(idx)
    lds_inc(93, 94, 8)
    stamp(5)
    lds_spin(93, 36, 8, 8, 1)
    A("ds_read_b128 v[32:35], v15")
    A("ds_read_b128 v[36:39], v15 offset:16")
    A("s_waitcnt lgkmcnt(0)")
    A("v_max3_f32 v8, v32, v33, v34\nv_max3_f32 v8, v8, v35, v36\nv_max3_f32 v8, v8, v37, v38\nv_max_f32 v8, v8, v39")
    A("v_fma_f32 v17, -v8, s54, v95")
    A("v_exp_f32 v17, v17\ns_nop 0")
    A("v_mul_f32 v16, v16, v17")
    A("s_mov_b32 exec_lo, 0x1111\ns_mov_b32 exec_hi, 0")
    A("ds_write_b32 v88, v16")
    A("s_mov_b64 exec, -1")
    for idx in range(16):
        ta = 32 + 2 * (idx & 3)
        A("v_and_b32 v%d, v%d, v89" % (ta, 64 + idx))
        A("v_and_b32 v%d, v%d, v90" % (ta + 1, 64 + idx))
        A("s_waitcnt vmcnt(%d)" % (15 - idx))
        c0 = "0" if idx == 0 else "v[80:83]"
        c1 = "0" if idx == 0 else "v[84:87]"
        A("s_nop 0")
        A("v_mfma_f32_16x16x16_bf16 v[80:83], v[%d:%d], v[%d:%d], %s" % (VB + 4 * idx, VB + 4 * idx + 1, ta, ta + 1, c0))
        A("v_mfma_f32_16x16x16_bf16 v[84:87], v[%d:%d], v[%d:%d], %s" % (VB + 4 * idx + 2, VB + 4 * idx + 3, ta, ta + 1, c1))
    stamp(6)
    A("s_nop 6")
    for i in range(8): A("v_mul_f32 v%d, v%d, v17" % (80 + i, 80 + i))
    A("ds_write_b128 v92, v[80:83]")
    A("ds_write_b128 v92, v[84:87] offset:1024")
    lds_inc(93, 94, 24)
    stamp(7)
    A("s_cmp_lg_u32 s40, 0")
    A("s_cbranch_scc1 L_s_D")
    A("s_cmp_eq_u32 s39, 0")
    A("s_cbranch_scc1 L_stream_end")
    A("s_lshl_b32 s45, s36, 4\ns_add_u32 s45, s45, s6\ns_mul_i32 s45, s45, %d\ns_lshl_b32 s46, s44, 10\ns_add_u32 s45, s45, s46\ns_add_u32 s45, s45, %d" % (NJ * 128, W_OUT))
    A("v_lshlrev_b32 v6, 4, v0\nv_add_u32 v6, s45, v6")
    A("v_and_b32 v7, 7, v0\nv_lshlrev_b32 v7, 4, v7\ns_lshl_b32 s45, s44, 7\ns_add_u32 s45, s45, %d\nv_add_u32 v7, s45, v7" % L_EP)
    A("s_barrier")
    A("s_barrier")
    A("s_cmp_eq_u32 s44, 7\ns_cbranch_scc1 L_s_e1")
    poll1("global_load_dwordx4 v[16:19], v6, s[32:33]%s" % SC, 19)
    stamp(9)
    red8rows([16, 17, 18, 19], [24, 25, 26, 27])
    A("s_mov_b64 exec, 0xff")
    A("ds_write_b128 v7, v[16:19]")
    A("s_mov_b64 exec, -1")
    A("s_waitcnt lgkmcnt(0)")
    A("L_s_e1:")
    A("s_barrier")
    A("s_branch L_stream_end")
    A("L_s_D:")
    A("; DRY_BEGIN")
    A("v_mov_b32 v90, %d" % L_FL)
    A("v_lshrrev_b32 v8, 2, v3\nv_lshl_add_u32 v8, v2, 3, v8")
    A("v_and_b32 v93, 3, v3\nv_lshlrev_b32 v93, 3, v93")
    A("v_lshl_add_u32 v4, v8, 6, v93\nv_add_u32 v4, s47, v4")
    A("v_lshlrev_b32 v5, 2, v93\nv_lshl_add_u32 v5, v8, 7, v5\nv_add_u32 v5, s47, v5")
    A("v_and_b32 v6, 3, v3\nv_lshlrev_b32 v6, 10, v6\nv_lshl_add_u32 v6, v2, 4, v6")
    A("s_lshl_b32 s58, s44, 7\ns_add_u32 s58, s58, %d" % L_XH)
    A("v_add_u32 v6, s58, v6")
    A("v_lshlrev_b32 v7, 2, v0\ns_lshl_b32 s58, s44, 8\ns_add_u32 s58, s58, %d\nv_add_u32 v7, s58, v7" % L_ZP)
    A("v_lshlrev_b32 v11, 2, v0\ns_lshl_b32 s58, s44, 11\ns_add_u32 s58, s58, %d\nv_add_u32 v11, s58, v11" % L_ZP)
    A("v_lshrrev_b32 v10, 2, v3\nv_lshlrev_b32 v10, 6, v10\nv_lshl_add_u32 v10, v2, 4, v10\nv_add_u32 v10, %d, v10" % L_H1)
    A("v_mov_b32 v92, %d\nv_and_b32 v91, 3, v3" % L_Z)
    for t in range(4):
        A("v_cmp_eq_u32 vcc, %d, v91\ns_nop 1\nv_cndmask_b32 v%d, v92, v10, vcc" % (t, 94 + t))
    A("v_mov_b32 v24, 0\nv_mov_b32 v25, 0\nv_mov_b32 v26, 0\nv_mov_b32 v27, 0\nds_write_b128 v92, v[24:27]")
    A("v_lshrrev_b32 v15, 2, v3")
    A("v_cmp_eq_u32 s[56:57], 1, v15\nv_cmp_eq_u32 s[58:59], 2, v15\nv_cmp_eq_u32 s[48:49], 3, v15")
    A("v_lshrrev_b32 v12, 2, v3\nv_lshlrev_b32 v12, 4, v12\nv_lshrrev_b32 v24, 1, v2\nv_add_u32 v12, v12, v24\nv_mul_u32_u24 v12, %d, v12" % (NJ * 128))
    A("v_and_b32 v24, 1, v2\nv_lshl_add_u32 v12, v24, 6, v12\nv_lshl_add_u32 v12, v91, 4, v12")
    A("s_mul_i32 s45, s44, %d\ns_lshl_b32 s46, s41, 7\ns_add_u32 s45, s45, s46\ns_add_u32 s45, s45, %d" % (2 * NJ * 128, W_OUT))
    A("v_add_u32 v12, s45, v12")
    A("v_lshlrev_b32 v13, 4, v0\ns_lshl_b32 s45, s44, 11\ns_lshl_b32 s46, s34, 13\ns_add_u32 s45, s45, s46\ns_add_u32 s45, s45, %d\nv_add_u32 v13, s45, v13" % W_H)
    A("v_lshlrev_b32 v14, 3, v0\ns_lshl_b32 s45, s44, 10\ns_add_u32 s45, s45, %d\nv_add_u32 v14, s45, v14" % L_XH)
    A("v_lshl_add_u32 v15, v2, 2, v15")
    A("s_and_b32 s45, s44, 1\ns_lshl_b32 s45, s45, 4\nv_add_u32 v15, s45, v15")
    A("v_lshlrev_b32 v9, 2, v15\nv_add_u32 v9, %d, v9" % L_B1)
    A("ds_read_b32 v88, v9")
    A("v_and_b32 v9, 3, v3\nv_lshlrev_b32 v9, 6, v9\nv_lshl_add_u32 v9, v15, 1, v9\nv_add_u32 v9, %d, v9" % L_H1)
    A("v_mov_b32 v89, 0x3d372713")
    lds_spin(90, 28, 1, 91, 1)
    for ft in range(2):
        for ks in range(2):
            fr = 32 + 8 * ft + 4 * ks
            A("ds_read_b64_tr_b16 v[%d:%d], v4 offset:%d" % (fr, fr + 1, ks * 2048 + ft * 32))
            A("ds_read_b64_tr_b16 v[%d:%d], v4 offset:%d" % (fr + 2, fr + 3, ks * 2048 + ft * 32 + 256))
    A("s_waitcnt lgkmcnt(0)")
    for t in range(4):
        A("ds_read_b64_tr_b16 v[%d:%d], v5 offset:%d" % (48 + 4 * t, 49 + 4 * t, 4096 + t * 8))
        A("ds_read_b64_tr_b16 v[%d:%d], v5 offset:%d" % (50 + 4 * t, 51 + 4 * t, 4096 + t * 8 + 512))
    A("s_waitcnt lgkmcnt(0)")
    stamp(8)
    A("s_cmp_ge_u32 s44, 4")
    A("s_cbranch_scc1 L_d1")
    if sD: A("s_sleep %d" % sD)
    hop([("global_load_dwordx4 v[100:103], v13, s[32:33]%s" % SC, [103]), ("global_load_dwordx4 v[104:107], v13, s[32:33] offset:1024%s" % SC, [107])], 24, pipe=PIPE)
    stamp(9)
    A("v_add_f32 v24, v100, v101\nv_add_f32 v25, v102, v103\nv_add_f32 v26, v104, v105\nv_add_f32 v27, v106, v107")
    A("v_add_f32 v24, v24, v25\nv_add_f32 v26, v26, v27\nv_add_f32 v24, v24, v26")
    red16([24]); swap_red([24], [25], 16); swap_red([24], [25], 32)
    A("v_mul_f32 v24, 0x3b000000, v24")
    for i in range(8): A("v_sub_f32 v%d, v%d, v24" % (16 + i, 100 + i))
    A("v_mul_f32 v25, v16, v16\nv_mul_f32 v26, v17, v17")
    for i in range(2, 8, 2): A("v_fma_f32 v25, v%d, v%d, v25\nv_fma_f32 v26, v%d, v%d, v26" % (16 + i, 16 + i, 17 + i, 17 + i))
    A("v_add_f32 v25, v25, v26")
    red16([25]); swap_red([25], [26], 16); swap_red([25], [26], 32)
    A("v_mul_f32 v25, 0x3b000000, v25")
    A("v_add_f32 v26, 0x3727c5ac, v25")
    A("v_rcp_f32 v27, v26\nv_rsq_f32 v26, v26\ns_nop 0")
    A("v_mul_f32 v27, v25, v27")
    A("v_add_f32 v27, 0x3727c5ac, v27")
    A("v_rsq_f32 v27, v27\ns_nop 0")
    A("v_mul_f32 v26, v26, v27")
    for i in range(8): A("v_mul_f32 v%d, v%d, v26" % (16 + i, 16 + i))
    for i in range(4): A("v_cvt_pk_bf16_f32 v%d, v%d, v%d" % (72 + i, 16 + 2 * i, 17 + 2 * i))
    if "dst" in exp: stamp(1)
    A("ds_write_b64 v14, v[72:73]")
    A("ds_write_b64 v14, v[74:75] offset:512")
    A("s_waitcnt lgkmcnt(0)")
    A("L_d1:")
    A("s_barrier")
    if "dst" in exp: stamp(2)
    for ks in range(2):
        A("ds_read_b128 v[%d:%d], v6 offset:%d" % (16 + 4 * ks, 19 + 4 * ks, ks * 64))
    for ks in range(2):
        A("s_waitcnt lgkmcnt(%d)" % (1 - ks))
        for ft in range(2):
            c = "0" if ks == 0 else "v[%d:%d]" % (80 + 4 * ft, 83 + 4 * ft)
            A("v_mfma_f32_16x16x32_bf16 v[%d:%d], v[%d:%d], v[%d:%d], %s" % (80 + 4 * ft, 83 + 4 * ft, 32 + 8 * ft + 4 * ks, 35 + 8 * ft + 4 * ks, 16 + 4 * ks, 19 + 4 * ks, c))
    A("s_nop 6")
    A("v_cndmask_b32 v80, v80, v81, s[56:57]\nv_cndmask_b32 v80, v80, v82, s[58:59]\nv_cndmask_b32 v80, v80, v83, s[48:49]")
    A("v_cndmask_b32 v84, v84, v85, s[56:57]\nv_cndmask_b32 v84, v84, v86, s[58:59]\nv_cndmask_b32 v84, v84, v87, s[48:49]")
    if "dst" in exp: stamp(3)
    A("ds_write_b32 v7, v80")
    A("ds_write_b32 v7, v84 offset:2048")
    A("s_waitcnt lgkmcnt(0)")
    A("s_barrier")
    if "dst" in exp: stamp(4)
    A("s_cmp_ge_u32 s44, 2")
    A("s_cbranch_scc1 L_d3")
    for w_ in range(8): A("ds_read_b32 v%d, v11 offset:%d" % (16 + w_, w_ * 256))
    A("s_waitcnt lgkmcnt(0)")
    A("v_add_f32 v16, v16, v17\nv_add_f32 v18, v18, v19\nv_add_f32 v20, v20, v21\nv_add_f32 v22, v22, v23")
    A("v_add_f32 v16, v16, v18\nv_add_f32 v20, v20, v22\nv_add_f32 v18, v16, v20")
    bf16r(18, 18)
    A("v_add_f32 v18, v18, v88")
    bf16r(18, 18)
    A("v_mul_f32 v19, v18, v18")
    A("v_fma_f32 v19, v19, v89, 1.0")
    A("v_mul_f32 v19, v19, v18")
    A("v_mul_f32 v19, 0xc0135761, v19")
    A("v_exp_f32 v19, v19\ns_nop 0")
    A("v_add_f32 v19, 1.0, v19")
    A("v_rcp_f32 v19, v19\ns_nop 0")
    A("v_mul_f32 v18, v18, v19")
    A("v_cvt_pk_bf16_f32 v18, v18, v18")
    if "dst" in exp: stamp(5)
    A("ds_write_b16 v9, v18")
    A("s_waitcnt lgkmcnt(0)")
    A("L_d3:")
    A("s_barrier")
    if "dst" in exp: stamp(6)
    for t in range(4): A("ds_read_b128 v[%d:%d], v%d" % (16 + 4 * t, 19 + 4 * t, 94 + t))
    for t in range(4):
        A("s_waitcnt lgkmcnt(%d)" % (3 - t))
        c = "0" if t == 0 else "v[64:67]"
        A("v_mfma_f32_16x16x32_bf16 v[64:67], v[%d:%d], v[%d:%d], %s" % (48 + 4 * t, 51 + 4 * t, 16 + 4 * t, 19 + 4 * t, c))
    A("s_nop 7")
    A("global_store_dwordx4 v12, v[64:67], s[32:33]%s" % SC)
    stamp(10)
    A("; DRY_END")
    A("L_stream_end:")
    if DRY: A("s_cbranch_execz L_dry_ret3")
    stamp(11)
    stamp_flush()
    A("s_endpgm")

    A("L_chain:")
    A("s_cmp_lg_u32 s3, 2\ns_cbranch_scc1 L_c_nz")
    A("v_mov_b32 v8, 0\nv_mov_b32 v9, 0\nv_mov_b32 v10, 0\nv_mov_b32 v11, 0")
    A("v_mov_b32 v7, %d" % L_FL)
    for i in range(4): A("ds_write_b128 v7, v[8:11] offset:%d" % (16 * i))
    A("L_c_nz:")
    A("s_lshl_b32 s38, s34, 2\ns_add_u32 s38, s38, s36")
    roles()
    A("s_lshl_b32 s44, s34, 10\ns_lshl_b32 s45, s36, 6\ns_add_u32 s44, s44, s45\ns_and_b32 s45, s37, 1\ns_lshl_b32 s45, s45, 5\ns_add_u32 s44, s44, s45")
    A("s_lshr_b32 s45, s37, 1\ns_lshl_b32 s45, s45, 3\ns_add_u32 s44, s44, s45\ns_add_u32 s44, s44, %d" % W_ML)
    A("v_and_b32 v102, 3, v0\nv_lshlrev_b32 v102, 8, v102\nv_add_u32 v102, s44, v102")
    A("s_lshr_b32 s45, s35, 1\ns_and_b32 s45, s45, 3")
    A("s_lshl_b32 s44, s34, 16\ns_lshl_b32 s46, s45, 12\ns_add_u32 s44, s44, s46\ns_lshl_b32 s46, s36, 10\ns_add_u32 s44, s44, s46")
    A("s_and_b32 s46, s35, 1\ns_lshl_b32 s46, s46, 9\ns_add_u32 s44, s44, s46\ns_add_u32 s44, s44, %d" % W_QP)
    A("v_and_b32 v103, 3, v3\nv_lshlrev_b32 v103, 14, v103\nv_lshl_add_u32 v103, v2, 5, v103\nv_add_u32 v103, s44, v103")
    A("v_mov_b32 v100, %d\nv_mov_b32 v101, 1\nv_mov_b32 v126, 0" % L_FL)
    A("s_waitcnt lgkmcnt(0)")
    A("s_load_dword s62, s[32:33], 0")
    A("s_cmp_eq_u32 s3, 0\ns_cbranch_scc1 L_c0")
    A("s_barrier")
    A("s_cmp_eq_u32 s3, 1\ns_cbranch_scc1 L_c1")
    A("s_cmp_eq_u32 s3, 2\ns_cbranch_scc1 L_c2")
    A("s_branch L_c3")
    A("L_c0:")
    A("v_lshlrev_b32 v6, 10, v2\nv_lshl_add_u32 v7, v3, 6, v6")
    for i in range(4):
        A("global_load_dwordx4 v[%d:%d], v7, s[8:9] offset:%d" % (16 + 4 * i, 19 + 4 * i, i * 16))
    A("s_lshl_b32 s46, s45, 8")
    A("v_lshl_add_u32 v7, v3, 4, v6\nv_add_u32 v7, s46, v7")
    A("global_load_dwordx4 v[12:15], v7, s[8:9]")
    A("s_lshl_b32 s44, s45, 20\ns_lshl_b32 s46, s34, 10\ns_add_u32 s44, s44, s46\ns_lshl_b32 s46, s36, 8\ns_add_u32 s44, s44, s46")
    A("s_and_b32 s46, s35, 1\ns_lshl_b32 s46, s46, 7\ns_add_u32 s44, s44, s46")
    A("s_add_u32 s46, s14, s44\ns_addc_u32 s47, s15, 0")
    A("v_lshrrev_b32 v7, 3, v0\nv_lshlrev_b32 v7, 13, v7\nv_and_b32 v8, 7, v0\nv_lshl_add_u32 v7, v8, 4, v7")
    A("s_mov_b32 s48, %d" % L_ST)
    for i in range(16):
        A("s_mov_b32 m0, s48\ns_add_u32 s48, s48, 1024")
        A("global_load_lds_dwordx4 v7, s[46:47]")
        A("s_add_u32 s46, s46, 0x10000\ns_addc_u32 s47, s47, 0")
    A("s_barrier")
    stamp(1)
    A("s_waitcnt vmcnt(16)")
    tags()
    for i in range(16):
        A("v_lshlrev_b32 v%d, 16, v%d\nv_and_b32 v%d, 0xffff0000, v%d" % (32 + 2 * i, 16 + i, 33 + 2 * i, 16 + i))
    A("v_add_f32 v64, v32, v33\nv_add_f32 v65, v34, v35\nv_add_f32 v66, v36, v37\nv_add_f32 v67, v38, v39")
    for i in range(8, 32, 4):
        A("v_add_f32 v64, v64, v%d\nv_add_f32 v65, v65, v%d\nv_add_f32 v66, v66, v%d\nv_add_f32 v67, v67, v%d" % (32 + i, 33 + i, 34 + i, 35 + i))
    A("v_add_f32 v64, v64, v65\nv_add_f32 v66, v66, v67\nv_add_f32 v64, v64, v66")
    red16([64])
    A("v_mul_f32 v64, 0x3b000000, v64")
    A("v_mov_b32 v65, 0\nv_mov_b32 v66, 0")
    for i in range(0, 32, 2):
        A("v_sub_f32 v67, v%d, v64\nv_sub_f32 v68, v%d, v64\nv_fma_f32 v65, v67, v67, v65\nv_fma_f32 v66, v68, v68, v66" % (32 + i, 33 + i))
    A("v_add_f32 v65, v65, v66")
    red16([65])
    A("v_mul_f32 v65, 0x3b000000, v65")
    bf16r(64, 64); bf16r(65, 65)
    A("v_add_f32 v65, 0x3727c5ac, v65"); bf16r(65, 65)
    A("v_sqrt_f32 v65, v65\ns_nop 0"); bf16r(65, 65)
    A("v_rcp_f32 v65, v65")
    for i in range(4):
        a, b = 32 + 2 * i, 33 + 2 * i
        A("v_lshlrev_b32 v%d, 16, v%d\nv_and_b32 v%d, 0xffff0000, v%d" % (a, 12 + i, b, 12 + i))
        A("v_sub_f32 v%d, v%d, v64\nv_sub_f32 v%d, v%d, v64" % (a, a, b, b))
        A("v_cvt_pk_bf16_f32 v66, v%d, v%d" % (a, b))
        A("v_lshlrev_b32 v%d, 16, v66\nv_and_b32 v%d, 0xffff0000, v66" % (a, b))
        A("v_mul_f32 v%d, v%d, v65\nv_mul_f32 v%d, v%d, v65" % (a, a, b, b))
        A("v_cvt_pk_bf16_f32 v%d, v%d, v%d" % (16 + i, a, b))
    A("v_lshlrev_b32 v6, 8, v2\nv_lshl_add_u32 v6, v3, 4, v6\nv_add_u32 v6, %d, v6" % L_XH)
    A("ds_write_b128 v6, v[16:19]")
    A("v_lshrrev_b32 v8, 2, v3\nv_lshl_add_u32 v8, v2, 3, v8\nv_and_b32 v9, 3, v3\nv_lshlrev_b32 v12, 3, v9")
    A("v_lshl_add_u32 v12, v8, 7, v12\nv_add_u32 v12, %d, v12" % L_ST)
    A("v_lshlrev_b32 v13, 8, v9\nv_lshl_add_u32 v13, v2, 4, v13\nv_add_u32 v13, %d, v13" % L_XH)
    A("s_waitcnt vmcnt(0) lgkmcnt(0)")
    stamp(2)
    for ks in range(4):
        A("ds_read_b128 v[%d:%d], v13 offset:%d" % (16 + 4 * ks, 19 + 4 * ks, ks * 64))
    for ks in range(4):
        for t in range(4):
            A("ds_read_b64_tr_b16 v[%d:%d], v12 offset:%d" % (32 + 4 * t, 33 + 4 * t, ks * 4096 + t * 32))
            A("ds_read_b64_tr_b16 v[%d:%d], v12 offset:%d" % (34 + 4 * t, 35 + 4 * t, ks * 4096 + t * 32 + 512))
        for t in range(4):
            A("s_waitcnt lgkmcnt(%d)" % (6 - 2 * t))
            c = "0" if ks == 0 else "v[%d:%d]" % (64 + 4 * t, 67 + 4 * t)
            A("v_mfma_f32_16x16x32_bf16 v[%d:%d], v[%d:%d], v[%d:%d], %s" % (64 + 4 * t, 67 + 4 * t, 32 + 4 * t, 35 + 4 * t, 16 + 4 * ks, 19 + 4 * ks, c))
    A("v_mov_b32 v34, s42\nv_mov_b32 v35, s43\nv_mov_b32 v38, s42\nv_mov_b32 v39, s43")
    A("s_mov_b32 exec_lo, 0x000f000f\ns_mov_b32 exec_hi, 0x000f000f")
    A("s_nop 4")
    for t in range(4):
        A("v_mov_b32 v32, v%d\nv_mov_b32 v33, v%d\nv_mov_b32 v36, v%d\nv_mov_b32 v37, v%d" % (64 + 4 * t, 65 + 4 * t, 66 + 4 * t, 67 + 4 * t))
        A("global_store_dwordx4 v103, v[32:35], s[32:33] offset:%d%s" % (t * 128, SC))
        A("global_store_dwordx4 v103, v[36:39], s[32:33] offset:%d%s" % (t * 128 + 16, SC))
        A("s_nop 1")
    A("s_mov_b64 exec, -1")
    lds_set(100, 101, 12)
    stamp(3)
    A("s_branch L_c_pre")
    A("L_c1:")
    A("s_lshl_b32 s44, s34, 16\ns_lshl_b32 s45, s36, 14\ns_add_u32 s44, s44, s45\ns_add_u32 s44, s44, %d" % W_QP)
    A("v_lshlrev_b32 v6, 4, v0\nv_add_u32 v6, s44, v6\nv_add_u32 v7, 4096, v6\nv_add_u32 v8, 4096, v7\nv_add_u32 v9, 4096, v8")
    tags()
    p = poll_begin("s61")
    A("ds_read_b32 v20, v100 offset:4")
    A("s_waitcnt lgkmcnt(0)")
    A("v_cmp_gt_u32 vcc, %d, v20" % qk_at)
    poll_end(p, 4, "s61")
    stamp(2)
    p = poll_begin()
    for i in range(16):
        A("global_load_dwordx4 v[%d:%d], v%d, s[32:33] offset:%d%s" % (32 + 4 * i, 35 + 4 * i, 6 + (i >> 2), (i & 3) * 1024, SC))
    lds_set(100, 101, 16)
    A("s_waitcnt vmcnt(0)")
    for i in range(16):
        A("v_xor_b32 v%d, s42, v%d\nv_xor_b32 v%d, s43, v%d" % (34 + 4 * i, 34 + 4 * i, 35 + 4 * i, 35 + 4 * i))
    A("v_or3_b32 v20, v34, v35, v38")
    A("v_or_b32 v20, v20, v39")
    for i in range(2, 16):
        A("v_or3_b32 v20, v20, v%d, v%d" % (34 + 4 * i, 35 + 4 * i))
    A("v_cmp_ne_u32 vcc, 0, v20")
    poll_end(p, sleep_q)
    for j in range(4):
        a = 32 + 4 * j
        A("v_pk_add_f32 v[%d:%d], v[%d:%d], v[%d:%d]" % (a, a + 1, a, a + 1, a + 16, a + 17))
        A("v_pk_add_f32 v[%d:%d], v[%d:%d], v[%d:%d]" % (a + 32, a + 33, a + 32, a + 33, a + 48, a + 49))
        A("v_pk_add_f32 v[%d:%d], v[%d:%d], v[%d:%d]" % (a, a + 1, a, a + 1, a + 32, a + 33))
    for j in range(4): A("v_cvt_pk_bf16_f32 v%d, v%d, v%d" % (16 + j, 32 + 4 * j, 33 + 4 * j))
    A("v_lshlrev_b32 v7, 2, v0\nv_add_u32 v7, %d, v7" % L_Q)
    for j in range(4): A("ds_write_b32 v7, v%d offset:%d" % (16 + j, j * 256))
    lds_set(100, 101, 0)
    stamp(3)
    A("s_branch L_c_pre")
    A("L_c2:")
    A("v_mov_b32 v12, -1\nv_mov_b32 v13, -1\nv_mov_b32 v14, -1\nv_mov_b32 v15, -1")
    A("v_lshrrev_b32 v16, 5, v0\nv_lshlrev_b32 v16, 14, v16\nv_and_b32 v17, 31, v0\nv_lshl_add_u32 v16, v17, 4, v16")
    A("s_lshl_b32 s44, s34, 16\ns_lshl_b32 s45, s36, 12\ns_add_u32 s44, s44, s45\ns_lshl_b32 s45, s37, 9\ns_add_u32 s44, s44, s45\ns_add_u32 s44, s44, %d" % W_OP)
    A("v_add_u32 v16, s44, v16")
    A("global_store_dwordx4 v16, v[12:15], s[32:33]%s" % SC)
    A("v_add_u32 v17, 0x8000, v16")
    A("global_store_dwordx4 v17, v[12:15], s[32:33]%s" % SC)
    A("global_store_dwordx2 v102, v[12:13], s[32:33]%s" % SC)
    A("v_lshlrev_b32 v18, 4, v2\nv_bfe_u32 v19, v0, 3, 1\nv_add_u32 v18, v18, v19\nv_lshlrev_b32 v18, 12, v18\nv_and_b32 v19, 7, v0\nv_lshl_add_u32 v18, v19, 4, v18")
    A("s_lshl_b32 s45, s38, 7\ns_add_u32 s45, s45, %d" % W_HP)
    A("s_cmp_lg_u32 s40, 0\ns_cbranch_scc1 L_c2h")
    A("s_lshl_b32 s44, s37, 13\ns_add_u32 s44, s44, s45")
    A("v_add_u32 v19, s44, v18")
    A("global_store_dwordx4 v19, v[12:15], s[32:33]%s" % SC)
    A("s_cmp_eq_u32 s63, 0\ns_cbranch_scc1 L_c2h")
    A("s_sub_u32 s44, s37, 2\ns_and_b32 s44, s44, 7\ns_lshl_b32 s44, s44, 13\ns_add_u32 s44, s44, s45")
    A("v_add_u32 v19, s44, v18")
    A("global_store_dwordx4 v19, v[12:15], s[32:33]%s" % SC)
    A("L_c2h:")
    A("s_cmp_eq_u32 s39, 0\ns_cbranch_scc1 L_c2a")
    A("s_lshl_b32 s44, s36, 11\ns_lshl_b32 s45, s6, 7\ns_add_u32 s44, s44, s45\ns_add_u32 s44, s44, %d" % W_H)
    A("v_lshrrev_b32 v19, 3, v0\nv_lshlrev_b32 v19, 13, v19\nv_and_b32 v20, 7, v0\nv_lshl_add_u32 v19, v20, 4, v19\nv_add_u32 v19, s44, v19")
    A("global_store_dwordx4 v19, v[12:15], s[32:33]%s" % SC)
    A("L_c2a:")
    A("s_cmp_eq_u32 s40, 0\ns_cbranch_scc1 L_c2b")
    A("v_lshrrev_b32 v19, 3, v0\nv_mul_u32_u24 v19, %d, v19\nv_and_b32 v20, 7, v0\nv_lshl_add_u32 v19, v20, 4, v19" % (NJ * 128))
    A("s_lshl_b32 s44, s41, 7\ns_add_u32 s44, s44, %d" % W_OUT)
    A("v_add_u32 v19, s44, v19")
    for i in range(8):
        A("global_store_dwordx4 v19, v[12:15], s[32:33]%s" % SC)
        A("v_add_u32 v19, %d, v19" % (8 * NJ * 128))
    A("L_c2b:")
    A("s_waitcnt vmcnt(0)")
    tags()
    A("s_getreg_b32 s44, hwreg(HW_REG_XCC_ID)\ns_and_b32 s44, s44, 7\ns_xor_b32 s44, s44, s43")
    A("v_mov_b32 v20, s42\nv_mov_b32 v21, s44")
    A("s_lshl_b32 s44, s34, 5\ns_add_u32 s44, s44, s35\ns_lshl_b32 s44, s44, 3\ns_add_u32 s44, s44, %d\nv_mov_b32 v22, s44" % W_FLAG)
    A("s_mov_b64 exec, 1")
    A("global_store_dwordx2 v22, v[20:21], s[32:33]%s" % SC)
    A("s_mov_b64 exec, -1")
    stamp(3)
    A("s_branch L_c_join")
    A("L_c3:")
    if "stouch" in exp.split(","):
        A("s_lshl_b32 s45, s36, 3\ns_add_u32 s45, s45, s34\ns_lshl_b32 s45, s45, 20\ns_lshl_b32 s46, s37, 17\ns_add_u32 s45, s45, s46")
        A("s_add_u32 s46, s12, s45\ns_addc_u32 s47, s13, 0")
        A("s_load_dword s7, s[46:47], 0")
        A("s_lshl_b32 s45, s38, 17\ns_add_u32 s48, s16, s45\ns_addc_u32 s49, s17, 0")
        A("s_load_dword s7, s[48:49], 0")
        A("s_cmp_eq_u32 s40, 0\ns_cbranch_scc1 L_c3_nt")
        A("s_load_dword s7, s[20:21], 0\ns_load_dword s7, s[20:21], 0xf0000\ns_load_dword s7, s[24:25], 0\ns_load_dword s7, s[24:25], 0xf0000")
        A("s_add_u32 s46, s20, 0x1b0000\ns_addc_u32 s47, s21, 0\ns_load_dword s7, s[46:47], 0")
        A("s_add_u32 s48, s24, 0x1b0000\ns_addc_u32 s49, s25, 0\ns_load_dword s7, s[48:49], 0")
        A("L_c3_nt:")
    if "nopf" not in exp:
        A("s_cmp_ge_u32 s35, 2\ns_cbranch_scc1 L_c3_nopf")
        A("s_getpc_b64 s[44:45]")
        A("L_pc_here:")
        A("s_sub_u32 s44, s44, L_pc_here-%s\ns_subb_u32 s45, s45, 0" % K)
        A("v_lshlrev_b32 v6, 4, v0")
        for i in range(13):
            A("global_load_dwordx4 v[32:35], v6, s[44:45]")
            A("v_add_u32 v6, 1024, v6")
        A("L_c3_nopf:")
    A("s_cmp_eq_u32 s40, 0\ns_cbranch_scc1 L_c3a")
    if DRY:
        A("s_mov_b32 s44, 0\ns_mov_b32 s47, 0\ns_mov_b64 s[4:5], 0\ns_mov_b64 exec, 0\ns_branch L_s_D")
        A("L_dry_ret3:")
        A("s_mov_b64 s[4:5], -1\ns_mov_b64 exec, -1")
    A("s_lshl_b32 s44, s41, 6")
    A("v_and_b32 v6, 31, v0\nv_lshlrev_b32 v7, 1, v6\nv_add_u32 v7, s44, v7")
    A("global_load_ushort v8, v7, s[22:23]")
    A("v_lshlrev_b32 v6, 2, v6\nv_add_u32 v6, %d, v6" % L_B1)
    A("s_waitcnt vmcnt(0)")
    A("v_lshlrev_b32 v8, 16, v8")
    A("ds_write_b32 v6, v8")
    A("L_c3a:")
    tags()
    lds_spin(100, 16, 1, 20, 4)
    A("v_lshlrev_b32 v8, 4, v0\nv_add_u32 v8, %d, v8" % W_FLAG)
    p = poll_begin()
    A("global_load_dwordx4 v[16:19], v8, s[32:33]%s" % SC)
    A("global_load_dwordx4 v[20:23], v8, s[32:33] offset:1024%s" % SC)
    A("s_waitcnt vmcnt(0)")
    for a in (16, 18, 20, 22):
        A("v_xor_b32 v%d, s42, v%d\nv_xor_b32 v%d, s43, v%d" % (a, a, a + 1, a + 1))
    A("v_or3_b32 v24, v16, v18, v20\nv_or_b32 v24, v24, v22")
    A("v_or3_b32 v25, v17, v19, v21\nv_or_b32 v25, v25, v23\nv_lshrrev_b32 v25, 3, v25")
    A("v_or_b32 v24, v24, v25")
    A("v_cmp_ne_u32 vcc, 0, v24")
    poll_end(p, 8)
    A("s_getreg_b32 s44, hwreg(HW_REG_XCC_ID)\ns_and_b32 s44, s44, 7")
    A("s_cmp_lt_u32 s34, 4\ns_cbranch_scc1 L_c3lo")
    A("v_mov_b32 v17, v21\nv_mov_b32 v19, v23")
    A("L_c3lo:")
    A("v_xor_b32 v17, s44, v17\nv_xor_b32 v19, s44, v19\nv_or_b32 v17, v17, v19")
    A("v_xor_b32 v24, s34, v2\nv_and_b32 v24, 3, v24")
    A("v_cmp_eq_u32 vcc, 0, v24\ns_nop 1\nv_cndmask_b32 v17, 0, v17, vcc")
    A("v_cmp_ne_u32 vcc, 0, v17")
    A("s_cmp_eq_u64 vcc, 0\ns_cbranch_scc0 L_c3nf")
    if "nofast" not in exp: lds_set(100, 101, 32)
    A("L_c3nf:")
    lds_set(100, 101, 40)
    stamp(3)
    A("s_branch L_c_join")
    A("L_c_pre:")
    A("L_c_join:")
    A("v_and_b32 v9, 7, v0\nv_lshlrev_b32 v9, 3, v9")
    A("s_lshl_b32 s44, s36, 10\ns_lshl_b32 s45, s6, 6\ns_add_u32 s44, s44, s45")
    A("v_add_u32 v126, s44, v9")
    A("v_add_u32 v11, s45, v9")
    A("global_load_dwordx2 v[120:121], v126, s[8:9]")
    A("global_load_dwordx2 v[122:123], v11, s[26:27]")
    A("global_load_dwordx2 v[124:125], v126, s[28:29]")
    A("s_lshl_b32 s44, s38, 14\ns_lshl_b32 s45, s3, 12\ns_add_u32 s44, s44, s45\ns_add_u32 s44, s44, %d" % W_OP)
    A("v_lshlrev_b32 v6, 4, v0\nv_add_u32 v6, s44, v6")
    A("s_lshl_b32 s44, s38, 8\ns_lshl_b32 s45, s3, 6\ns_add_u32 s44, s44, s45\ns_add_u32 s44, s44, %d" % W_ML)
    A("v_lshrrev_b32 v7, 5, v0\nv_lshlrev_b32 v7, 5, v7\nv_add_u32 v7, s44, v7")
    A("v_and_b32 v8, 31, v0\nv_lshlrev_b32 v8, 3, v8\ns_lshl_b32 s45, s3, 8\ns_add_u32 s45, s45, %d\nv_add_u32 v8, s45, v8" % L_OB)
    A("v_lshrrev_b32 v9, 2, v3\nv_lshlrev_b32 v9, 8, v9\nv_lshl_add_u32 v9, v2, 4, v9\nv_add_u32 v9, %d, v9" % L_OB)
    A("v_lshlrev_b32 v10, 16, v2\nv_lshl_add_u32 v10, v3, 2, v10")
    A("s_lshl_b32 s45, s38, 7\ns_lshr_b32 s46, s3, 1\ns_lshl_b32 s46, s46, 12\ns_add_u32 s45, s45, s46\ns_and_b32 s46, s3, 1\ns_lshl_b32 s46, s46, 6\ns_add_u32 s45, s45, s46\ns_add_u32 s45, s45, %d" % W_HP)
    A("s_sub_u32 s55, s37, 2\ns_and_b32 s55, s55, 7")
    A("s_lshl_b32 s44, s55, 13\ns_add_u32 s44, s44, s45\nv_add_u32 v99, s44, v10")
    A("s_lshl_b32 s44, s37, 13\ns_add_u32 s44, s44, s45\nv_add_u32 v10, s44, v10")
    A("v_lshrrev_b32 v11, 2, v3\nv_lshlrev_b32 v11, 14, v11\nv_lshl_add_u32 v11, v2, 7, v11\nv_and_b32 v13, 3, v3\nv_lshl_add_u32 v11, v13, 4, v11")
    A("s_lshl_b32 s44, s34, 16\ns_lshl_b32 s45, s36, 12\ns_add_u32 s44, s44, s45\ns_lshl_b32 s45, s37, 9\ns_add_u32 s44, s44, s45")
    A("s_lshl_b32 s45, s3, 6\ns_add_u32 s44, s44, s45\ns_add_u32 s44, s44, %d" % W_OP)
    A("v_add_u32 v11, s44, v11")
    A("v_lshlrev_b32 v13, 4, v0\ns_lshl_b32 s45, s3, 10\ns_add_u32 s45, s45, %d\nv_add_u32 v13, s45, v13" % L_OP)
    A("v_lshrrev_b32 v14, 2, v3\nv_lshl_add_u32 v14, v2, 3, v14\nv_and_b32 v15, 3, v3\nv_lshlrev_b32 v12, 3, v15")
    A("v_lshl_add_u32 v12, v14, 7, v12\ns_lshl_b32 s44, s3, 5\nv_add_u32 v98, s44, v12\nv_add_u32 v12, %d, v98" % L_ST)
    A("s_mov_b32 s54, 0x3fb8aa3b")
    A("v_bfe_u32 v16, v0, 3, 2\nv_lshlrev_b32 v16, 3, v16\nv_lshrrev_b32 v17, 5, v0\nv_add_u32 v16, v16, v17\nv_lshlrev_b32 v16, 10, v16")
    A("v_and_b32 v17, 7, v0\nv_lshl_add_u32 v97, v17, 4, v16")
    if DRY:
        A("s_cmp_lg_u32 s3, 0\ns_cbranch_scc1 L_dry_skip0")
        A("s_mov_b64 s[4:5], 0\ns_mov_b64 exec, 0\ns_branch L_c_nodw")
        A("L_dry_ret0:")
        A("s_mov_b64 s[4:5], -1\ns_mov_b64 exec, -1")
        A("L_dry_skip0:")
    A("s_sub_u32 s55, s37, 2\ns_and_b32 s55, s55, 7")
    A("s_lshl_b32 s44, s38, 17\ns_lshl_b32 s45, s3, 15\ns_add_u32 s44, s44, s45")
    A("s_lshl_b32 s45, s37, 7\ns_add_u32 s45, s45, s44\ns_add_u32 s46, s16, s45\ns_addc_u32 s47, s17, 0")
    A("s_lshl_b32 s45, s55, 7\ns_add_u32 s45, s45, s44\ns_add_u32 s50, s16, s45\ns_addc_u32 s51, s17, 0")
    A("s_lshl_b32 s48, s3, 12\ns_add_u32 s48, s48, %d" % L_ST)
    stamp(4)
    A("s_cmp_lg_u32 s40, 0\ns_cbranch_scc1 L_c_nowo")
    lds_spin2(100, 8, 8, 12, 1, 20, 21, 2)
    for i in range(4):
        A("s_mov_b32 m0, s48\ns_add_u32 s48, s48, 1024")
        A("global_load_lds_dwordx4 v97, s[46:47]")
        A("s_add_u32 s46, s46, 2048\ns_addc_u32 s47, s47, 0")
    A("L_c_nowo:")
    A("s_cmp_eq_u32 s63, 0\ns_cbranch_scc1 L_c_nowo2")
    lds_spin(100, 36, 8, 20, 2)
    A("s_lshr_b32 s48, s3, 1\ns_lshl_b32 s48, s48, 14\ns_and_b32 s45, s3, 1\ns_lshl_b32 s45, s45, 12\ns_add_u32 s48, s48, s45")
    for i in range(4):
        A("s_mov_b32 m0, s48\ns_add_u32 s48, s48, 1024")
        A("global_load_lds_dwordx4 v97, s[50:51]")
        A("s_add_u32 s50, s50, 2048\ns_addc_u32 s51, s51, 0")
    A("L_c_nowo2:")
    A("s_cmp_eq_u32 s40, 0\ns_cbranch_scc1 L_c_nodw")
    A("s_cmp_lg_u32 s3, 3\ns_cbranch_scc1 L_c_nodw")
    if dw_late: lds_spin(100, 24, dw_late, 20, 2) if dw_late == 8 else None
    if dw_late and dw_late != 8:
        p = poll_begin("s61")
        A("ds_read_b32 v20, v100 offset:24")
        A("s_waitcnt lgkmcnt(0)")
        A("v_cmp_gt_u32 vcc, %d, v20" % dw_late)
        poll_end(p, 2, "s61")
    lds_spin2(100, 36, 8, 8, 8, 20, 21, 2)
    A("s_lshl_b32 s44, s41, 6\ns_add_u32 s46, s20, s44\ns_addc_u32 s47, s21, 0")
    A("s_lshl_b32 s44, s41, 15\ns_add_u32 s50, s24, s44\ns_addc_u32 s51, s25, 0")
    A("v_lshrrev_b32 v4, 2, v0\nv_mul_u32_u24 v4, 3584, v4\nv_and_b32 v5, 3, v0\nv_lshl_add_u32 v4, v5, 4, v4")
    A("v_lshrrev_b32 v5, 3, v0\nv_lshlrev_b32 v5, 10, v5\nv_and_b32 v6, 7, v0\nv_lshl_add_u32 v5, v6, 4, v5")
    A("s_mov_b32 s48, 0\ns_mov_b32 s49, 8")
    A("L_c_dwl:")
    A("s_waitcnt vmcnt(40)")
    for n in range(4):
        A("s_mov_b32 m0, s48\ns_add_u32 s48, s48, 1024")
        A("global_load_lds_dwordx4 v4, s[46:47]")
        A("s_add_u32 s46, s46, %d\ns_addc_u32 s47, s47, 0" % (16 * 3584))
    for n in range(4):
        A("s_mov_b32 m0, s48\ns_add_u32 s48, s48, 1024")
        A("global_load_lds_dwordx4 v5, s[50:51] offset:0")
        A("s_add_u32 s50, s50, 8192\ns_addc_u32 s51, s51, 0")
    A("s_add_u32 s48, s48, 8192")
    A("s_sub_u32 s50, s50, %d\ns_subb_u32 s51, s51, 0" % (4 * 8192 - 128))
    A("s_sub_u32 s49, s49, 1\ns_cmp_lg_u32 s49, 0\ns_cbranch_scc1 L_c_dwl")
    A("s_waitcnt vmcnt(0)")
    lds_set(100, 101, 28)
    stamp(6)
    A("s_branch L_chain_end")
    A("L_c_nodw:")
    A("; DRY_BEGIN")
    A("v_and_b32 v14, 3, v0\nv_lshlrev_b32 v15, 5, v14\nv_add_u32 v15, %d, v15\nv_add_u32 v14, %d, v15" % (L_MB, L_LB - L_MB))
    A("v_add_u32 v16, 0x10000, v13")
    lds_spin(100, 40, 1, 26, 2)
    A("ds_read_b32 v26, v100 offset:32")
    A("s_waitcnt lgkmcnt(0)")
    A("v_readfirstlane_b32 s55, v26")
    stamp(5)
    A("s_cmp_eq_u32 s3, 3\ns_cbranch_scc1 L_c_b3")
    lds_spin(100, 24, 8, 26, 0)
    A("s_cmp_eq_u32 s3, 2\ns_cbranch_scc1 L_c_pml")
    for w_ in range(8):
        A("ds_read_b128 v[%d:%d], v%d offset:%d" % (56 + 4 * w_, 59 + 4 * w_, 13 if w_ < 4 else 16, (w_ & 3) * 16384))
    A("s_waitcnt lgkmcnt(4)")
    A("v_pk_add_f32 v[56:57], v[56:57], v[60:61]\nv_pk_add_f32 v[58:59], v[58:59], v[62:63]")
    A("v_pk_add_f32 v[64:65], v[64:65], v[68:69]\nv_pk_add_f32 v[66:67], v[66:67], v[70:71]")
    A("v_pk_add_f32 v[56:57], v[56:57], v[64:65]\nv_pk_add_f32 v[58:59], v[58:59], v[66:67]")
    A("s_waitcnt lgkmcnt(0)")
    A("v_pk_add_f32 v[72:73], v[72:73], v[76:77]\nv_pk_add_f32 v[74:75], v[74:75], v[78:79]")
    A("v_pk_add_f32 v[80:81], v[80:81], v[84:85]\nv_pk_add_f32 v[82:83], v[82:83], v[86:87]")
    A("v_pk_add_f32 v[56:57], v[56:57], v[72:73]\nv_pk_add_f32 v[58:59], v[58:59], v[74:75]")
    A("v_pk_add_f32 v[56:57], v[56:57], v[80:81]\nv_pk_add_f32 v[58:59], v[58:59], v[82:83]")
    A("s_cmp_eq_u32 s55, 0\ns_cbranch_scc1 L_c_oslow")
    A("global_store_dwordx4 v11, v[56:59], s[32:33]")
    A("s_branch L_c_b")
    A("L_c_oslow:")
    A("global_store_dwordx4 v11, v[56:59], s[32:33]%s" % SC)
    A("s_branch L_c_b")
    A("L_c_pml:")
    A("ds_read_b128 v[16:19], v14\nds_read_b128 v[20:23], v14 offset:16")
    A("ds_read_b128 v[28:31], v15\nds_read_b128 v[32:35], v15 offset:16")
    A("s_waitcnt lgkmcnt(0)")
    A("v_max3_f32 v24, v28, v29, v30\nv_max3_f32 v24, v24, v31, v32\nv_max3_f32 v24, v24, v33, v34\nv_max_f32 v24, v24, v35")
    A("v_add_f32 v16, v16, v17\nv_add_f32 v18, v18, v19\nv_add_f32 v20, v20, v21\nv_add_f32 v22, v22, v23")
    A("v_add_f32 v16, v16, v18\nv_add_f32 v20, v20, v22\nv_add_f32 v25, v16, v20")
    A("s_mov_b64 exec, 15")
    A("s_cmp_eq_u32 s55, 0\ns_cbranch_scc1 L_c_mslow")
    A("global_store_dwordx2 v102, v[24:25], s[32:33]")
    A("s_branch L_c_mdone")
    A("L_c_mslow:")
    A("global_store_dwordx2 v102, v[24:25], s[32:33]%s" % SC)
    A("L_c_mdone:")
    A("s_mov_b64 exec, -1")
    A("L_c_b:")
    A("s_cmp_lg_u32 s40, 0\ns_cbranch_scc1 L_c_dexit")
    A("s_waitcnt vmcnt(1)")
    A("s_branch L_c_b2")
    A("L_c_dexit:")
    stamp(6)
    A("s_branch L_chain_end")
    A("L_c_b3:")
    A("s_waitcnt vmcnt(0)")
    A("L_c_b2:")
    lds_inc(100, 101, 20)
    stamp(6)
    lds_spin(100, 20, 4, 20, 0)
    for ks in range(4):
        A("ds_read_b64_tr_b16 v[%d:%d], v12 offset:%d" % (104 + 4 * ks, 105 + 4 * ks, ks * 4096))
        A("ds_read_b64_tr_b16 v[%d:%d], v12 offset:%d" % (106 + 4 * ks, 107 + 4 * ks, ks * 4096 + 512))
    A("s_cmp_eq_u32 s63, 0\ns_cbranch_scc1 L_c_nof2")
    A("s_waitcnt lgkmcnt(0)")
    for ks in range(4):
        o_ = (ks >> 1) * 16384 + (ks & 1) * 4096
        A("ds_read_b64_tr_b16 v[%d:%d], v98 offset:%d" % (72 + 4 * ks, 73 + 4 * ks, o_))
        A("ds_read_b64_tr_b16 v[%d:%d], v98 offset:%d" % (74 + 4 * ks, 75 + 4 * ks, o_ + 512))
    A("L_c_nof2:")
    hop([("global_load_dwordx4 v[%d:%d], v6, s[32:33] offset:%d%s" % (32 + 4 * i, 35 + 4 * i, i * 1024, SC), [35 + 4 * i]) for i in range(4)] +
        [("global_load_dwordx4 v[48:51], v7, s[32:33]%s" % SC, [49, 51]), ("global_load_dwordx4 v[52:55], v7, s[32:33] offset:16%s" % SC, [53, 55])], 20, pipe=PIPE)
    stamp(7)
    A("v_max3_f32 v20, v48, v50, v52\nv_max_f32 v20, v20, v54")
    swap_red([20], [21], 32, "max")
    A("v_mul_f32 v20, s54, v20")
    for i in range(4): A("v_fma_f32 v%d, v%d, s54, -v20" % (56 + i, 48 + 2 * i))
    for i in range(4): A("v_exp_f32 v%d, v%d" % (56 + i, 56 + i))
    A("s_nop 0")
    for e in range(4):
        A("v_mul_f32 v%d, v56, v%d" % (20 + e, 32 + e))
    A("v_mul_f32 v24, v56, v49")
    for i in range(1, 4):
        for e in range(4):
            A("v_fma_f32 v%d, v%d, v%d, v%d" % (20 + e, 56 + i, 32 + 4 * i + e, 20 + e))
        A("v_fma_f32 v24, v%d, v%d, v24" % (56 + i, 49 + 2 * i))
    swap_red([20, 21, 22, 23, 24], [25, 26, 27, 28, 29], 32)
    A("v_rcp_f32 v24, v24\ns_nop 0")
    for e in range(4): A("v_mul_f32 v%d, v%d, v24" % (20 + e, 20 + e))
    A("v_cvt_pk_bf16_f32 v20, v20, v21\nv_cvt_pk_bf16_f32 v21, v22, v23")
    A("s_mov_b32 exec_hi, 0")
    A("ds_write_b64 v8, v[20:21]")
    A("s_mov_b64 exec, -1")
    A("s_waitcnt lgkmcnt(0)")
    A("s_barrier")
    for ks in range(4):
        A("ds_read_b128 v[%d:%d], v9 offset:%d" % (128 + 4 * ks, 131 + 4 * ks, ks * 64))
    for ks in range(4):
        A("s_waitcnt lgkmcnt(%d)" % (3 - ks))
        c = "0" if ks == 0 else "v[20:23]"
        A("v_mfma_f32_16x16x32_bf16 v[20:23], v[%d:%d], v[%d:%d], %s" % (128 + 4 * ks, 131 + 4 * ks, 104 + 4 * ks, 107 + 4 * ks, c))
    A("s_cmp_eq_u32 s63, 0\ns_cbranch_scc1 L_c_one")
    for ks in range(4):
        c = "0" if ks == 0 else "v[24:27]"
        A("v_mfma_f32_16x16x32_bf16 v[24:27], v[%d:%d], v[%d:%d], %s" % (128 + 4 * ks, 131 + 4 * ks, 72 + 4 * ks, 75 + 4 * ks, c))
    A("s_nop 1")
    A("global_store_dword v10, v20, s[32:33]%s" % SC)
    A("s_nop 4")
    A("global_store_dword v99, v24, s[32:33]%s" % SC)
    A("s_branch L_c_bdone")
    A("L_c_one:")
    A("s_nop 5")
    A("global_store_dword v10, v20, s[32:33]%s" % SC)
    A("L_c_bdone:")
    A("s_mov_b64 exec, -1")
    stamp(8)
    A("s_cmp_eq_u32 s39, 0\ns_cbranch_scc1 L_chain_end")
    A("s_lshl_b32 s46, s36, 4\ns_add_u32 s46, s46, s6")
    A("v_lshlrev_b32 v6, 4, v0\nv_and_b32 v7, 7, v0")
    A("s_lshl_b32 s44, s46, 12\ns_lshl_b32 s45, s3, 10\ns_add_u32 s44, s44, s45\ns_add_u32 s44, s44, %d\nv_add_u32 v9, s44, v6" % W_HP)
    A("v_lshlrev_b32 v10, 4, v7\nv_add_u32 v10, %d, v10" % L_CP)
    A("s_lshl_b32 s45, s3, 7\nv_add_u32 v11, s45, v10")
    A("s_lshl_b32 s44, s36, 11\ns_lshl_b32 s45, s6, 7\ns_add_u32 s44, s44, s45\ns_add_u32 s44, s44, %d" % W_H)
    A("v_lshrrev_b32 v8, 3, v0\nv_lshlrev_b32 v8, 13, v8\nv_lshl_add_u32 v8, v7, 4, v8\nv_add_u32 v8, s44, v8")
    A("v_lshlrev_b32 v110, 16, v120\nv_and_b32 v111, 0xffff0000, v120\nv_lshlrev_b32 v112, 16, v121\nv_and_b32 v113, 0xffff0000, v121")
    A("v_lshlrev_b32 v114, 16, v122\nv_and_b32 v115, 0xffff0000, v122\nv_lshlrev_b32 v116, 16, v123\nv_and_b32 v117, 0xffff0000, v123")
    poll1("global_load_dwordx4 v[16:19], v9, s[32:33]%s" % SC, 19)
    stamp(2)
    red8rows([16, 17, 18, 19], [24, 25, 26, 27])
    A("s_mov_b64 exec, 0xff")
    A("ds_write_b128 v11, v[16:19]")
    A("s_mov_b64 exec, -1")
    A("s_waitcnt lgkmcnt(0)")
    A("s_barrier")
    A("s_cmp_eq_u32 s3, 0\ns_cbranch_scc1 L_c_c0")
    A("s_barrier")
    A("s_branch L_chain_end")
    A("L_c_c0:")
    for i in range(4): A("ds_read_b128 v[%d:%d], v10 offset:%d" % (32 + 4 * i, 35 + 4 * i, i * 128))
    A("s_waitcnt lgkmcnt(0)")
    A("v_pk_add_f32 v[16:17], v[32:33], v[36:37]\nv_pk_add_f32 v[18:19], v[34:35], v[38:39]")
    A("v_pk_add_f32 v[20:21], v[40:41], v[44:45]\nv_pk_add_f32 v[22:23], v[42:43], v[46:47]")
    A("v_pk_add_f32 v[16:17], v[16:17], v[20:21]\nv_pk_add_f32 v[18:19], v[18:19], v[22:23]")
    A("v_cvt_pk_bf16_f32 v24, v16, v17\nv_cvt_pk_bf16_f32 v25, v18, v19")
    A("v_lshlrev_b32 v16, 16, v24\nv_and_b32 v17, 0xffff0000, v24\nv_lshlrev_b32 v18, 16, v25\nv_and_b32 v19, 0xffff0000, v25")
    for e in range(4): A("v_add_f32 v%d, v%d, v%d" % (16 + e, 16 + e, 110 + e))
    A("v_cvt_pk_bf16_f32 v24, v16, v17\nv_cvt_pk_bf16_f32 v25, v18, v19")
    A("v_lshlrev_b32 v104, 16, v24\nv_and_b32 v105, 0xffff0000, v24\nv_lshlrev_b32 v106, 16, v25\nv_and_b32 v107, 0xffff0000, v25")
    A("global_store_dwordx4 v8, v[104:107], s[32:33]%s" % SC)
    stamp(9)
    A("s_barrier")
    stamp(10)
    for i in range(7): A("ds_read_b128 v[%d:%d], v10 offset:%d" % (32 + 4 * i, 35 + 4 * i, 1024 + i * 128))
    A("s_waitcnt lgkmcnt(3)")
    A("v_pk_add_f32 v[16:17], v[32:33], v[36:37]\nv_pk_add_f32 v[18:19], v[34:35], v[38:39]")
    A("v_pk_add_f32 v[20:21], v[40:41], v[44:45]\nv_pk_add_f32 v[22:23], v[42:43], v[46:47]")
    A("s_waitcnt lgkmcnt(0)")
    A("v_pk_add_f32 v[24:25], v[48:49], v[52:53]\nv_pk_add_f32 v[26:27], v[50:51], v[54:55]")
    A("v_pk_add_f32 v[16:17], v[16:17], v[56:57]\nv_pk_add_f32 v[18:19], v[18:19], v[58:59]")
    A("v_pk_add_f32 v[20:21], v[20:21], v[24:25]\nv_pk_add_f32 v[22:23], v[22:23], v[26:27]")
    A("v_pk_add_f32 v[16:17], v[16:17], v[20:21]\nv_pk_add_f32 v[18:19], v[18:19], v[22:23]")
    A("v_cvt_pk_bf16_f32 v24, v16, v17\nv_cvt_pk_bf16_f32 v25, v18, v19")
    A("v_lshlrev_b32 v16, 16, v24\nv_and_b32 v17, 0xffff0000, v24\nv_lshlrev_b32 v18, 16, v25\nv_and_b32 v19, 0xffff0000, v25")
    for e in range(4): A("v_add_f32 v%d, v%d, v%d" % (16 + e, 16 + e, 114 + e))
    A("v_cvt_pk_bf16_f32 v24, v16, v17\nv_cvt_pk_bf16_f32 v25, v18, v19")
    A("v_lshlrev_b32 v16, 16, v24\nv_and_b32 v17, 0xffff0000, v24\nv_lshlrev_b32 v18, 16, v25\nv_and_b32 v19, 0xffff0000, v25")
    for e in range(4): A("v_add_f32 v%d, v%d, v%d" % (16 + e, 16 + e, 104 + e))
    A("v_cvt_pk_bf16_f32 v24, v16, v17\nv_cvt_pk_bf16_f32 v25, v18, v19")
    A("s_mov_b64 exec, 0xff")
    A("global_store_dwordx2 v126, v[24:25], s[28:29]")
    A("s_or_b32 s44, s36, s6\ns_cmp_lg_u32 s44, 0\ns_cbranch_scc1 L_c_noe")
    A("s_mov_b64 exec, 1")
    A("v_mov_b32 v8, 0\nv_mov_b32 v9, s42")
    A("global_store_dword v8, v9, s[32:33]%s" % SC)
    A("L_c_noe:")
    A("s_mov_b64 exec, -1")
    A("; DRY_END")
    A("L_chain_end:")
    if DRY: A("s_cbranch_execz L_dry_ret0")
    stamp(11)
    stamp_flush()
    A("L_exit:")
    A("s_endpgm")
    A("L_code_end:")
    if "nopf" not in exp: A(".fill 256, 4, 0xbf800000")

    hdr = open("cdna_kernels/%s.s.ref" % NAME).read().split("; Override launch")[0]
    out = hdr
    out += "; @launch grid=(256,1,1) block=(768,1,1) lds=%d\n" % LDS_TOTAL
    out += '.amdgcn_target "amdgcn-amd-amdhsa--gfx950"\n.text\n.globl %s\n.p2align 8\n.type %s,@function\n' % (K, K)
    A.l = dryify(A.l) if DRY else [x for x in A.l if not x.strip().startswith("; DRY_")]
    out += A.text()
    out += '.section .rodata,"a"\n.p2align 6\n.amdhsa_kernel %s\n' % K
    out += "  .amdhsa_next_free_vgpr 168\n  .amdhsa_next_free_sgpr 102\n  .amdhsa_accum_offset 168\n"
    out += "  .amdhsa_group_segment_fixed_size 0\n  .amdhsa_kernarg_size 104\n  .amdhsa_user_sgpr_count 2\n  .amdhsa_user_sgpr_kernarg_segment_ptr 1\n  .amdhsa_system_sgpr_workgroup_id_x 1\n.end_amdhsa_kernel\n"
    return out

if __name__ == "__main__":
    import argparse
    ap = argparse.ArgumentParser()
    ap.add_argument("-o", default="cdna_kernels/%s.s" % NAME)
    ap.add_argument("--stamps", action="store_true")
    ap.add_argument("--W", type=int, default=2)
    ap.add_argument("--no-nt", action="store_true")
    ap.add_argument("--exp", default="")
    ap.add_argument("--qk_at", type=int, default=8)
    ap.add_argument("--vpre", type=int, default=0)
    ap.add_argument("--ends", action="store_true")
    ap.add_argument("--sE", type=int, default=0)
    ap.add_argument("--nv1", type=int, default=10)
    ap.add_argument("--dw", type=int, default=8)
    ap.add_argument("--sD", type=int, default=0)
    a = ap.parse_args()
    open(a.o, "w").write(gen(W=a.W, nt=not a.no_nt, stamps=a.stamps, exp=a.exp, qk_at=a.qk_at, vpre=a.vpre, ends=a.ends, sE=a.sE, nv1=a.nv1, dw_late=a.dw, sD=a.sD))
    print("wrote", a.o)
```

```python
import sys

NAME = "sequential_preLN__gqa_block_cached__mixer_channel_mlp__decode"

L_OP   = 8192
L_ST   = 131072
L_M    = 147456
L_ZP   = L_M
L_LB   = L_M + 4096
L_FL   = L_M + 4224
L_XH   = L_M + 4288
L_Q    = L_M + 8384
L_MB   = L_M + 9408
L_OB   = L_M + 9536
L_H1   = L_M + 10560
L_B1   = L_M + 10816
L_Z    = L_M + 10944
LDS_TOTAL = L_M + 11008

W_E     = 0x0
W_FLAG  = 0x1000
W_ML    = 0x2000
W_H     = 0x1C0000
W_QP    = 0x10000
W_OP    = 0x90000
W_HP    = 0x110000
W_OUT   = 0x150000
W_DBG   = 0x200000

NJ = 56
STREAM_STAMPS = ["start", "Kissued", "V1issued", "q ready", "max done", "V2issued", "PVdone", "bar3", "Dprep", "h got", "Dstore", "end"]
CHAIN_STAMPS = ["start", "s1", "s2", "s3", "prespin", "prebar3", "Opub", "gathered", "hpstore", "hstore", "outgath", "end"]
POLL_LIMIT = 20000

class Asm:
    def __init__(self): self.l = []
    def __call__(self, s):
        for x in s.split("\n"):
            x = x.strip()
            if x: self.l.append(("" if x.endswith(":") else "  ") + x)
    def text(self): return "\n".join(self.l) + "\n"

import re
def dryify(lines):
    out = []; on = False; n = 0; i = 0
    while i < len(lines):
        l = lines[i]; t = l.strip()
        if t == "; DRY_BEGIN": on = True; i += 1; continue
        if t == "; DRY_END": on = False; i += 1; continue
        if not on: out.append(l); i += 1; continue
        m = re.fullmatch(r"s_mov_b64 exec, (-1|\d+|0x[0-9a-f]+)", t)
        if m:
            out.append("  s_mov_b64 exec, s[4:5]" if m.group(1) == "-1" else "  s_and_b64 exec, s[4:5], %s" % m.group(1)); i += 1; continue
        m = re.fullmatch(r"s_mov_b32 exec_(lo|hi), (0x[0-9a-f]+|\d+)", t)
        if m:
            out.append(l if int(m.group(2), 0) == 0 else "  s_and_b32 exec_%s, s%d, %s" % (m.group(1), 4 if m.group(1) == "lo" else 5, m.group(2))); i += 1; continue
        m = re.fullmatch(r"s_mov_b64 (s\[\d+:\d+\]), -1", t)
        if m: out.append("  s_mov_b64 %s, s[4:5]" % m.group(1)); i += 1; continue
        if t == "s_barrier":
            n += 1; out += ["  s_cbranch_execz L_dry_%d" % n, l, "L_dry_%d:" % n]; i += 1; continue
        if t.startswith("global_"):
            prev = out[-1].strip() if out else ""
            if prev.startswith("s_cbranch_execz"):
                out.append(l); i += 1; continue
            n += 1; out.append("  s_cbranch_execz L_dry_%d" % n)
            while i < len(lines) and (lines[i].strip().startswith("global_") or lines[i].strip().startswith("s_nop") or lines[i].strip().startswith("v_add_u32")) and not lines[i].strip().endswith(":"):
                out.append(lines[i]); i += 1
            out.append("L_dry_%d:" % n); continue
        out.append(l); i += 1
    return out

def gen(W=2, nt=True, stamps=False, sleep_q=8, scope=" sc1", exp="", qk_at=8, vpre=0, ends=False, sE=0, sD=0, nv1=10, dw_late=8):
    A = Asm()
    PIPE = "pipe" in exp
    DRY = "dry" in exp.split(",")
    NT = " nt" if nt else ""
    SC = scope
    uid = [0]
    def lab(p):
        uid[0] += 1; return "L_%s_%d" % (p, uid[0])
    def stamp(i):
        if stamps and (not ends or i in (0, 11)): A("s_memrealtime s[%d:%d]" % (64 + 2 * i, 65 + 2 * i))
    def stamp_flush():
        if stamps:
            A("s_waitcnt lgkmcnt(0)")
            A("s_lshl_b32 s44, s2, 4\ns_add_u32 s44, s44, s3\ns_lshl_b32 s44, s44, 7\ns_add_u32 s44, s44, %d" % W_DBG)
            A("s_add_u32 s46, s32, s44\ns_addc_u32 s47, s33, 0")
            A("s_mov_b64 exec, 1\nv_mov_b32 v2, 0")
            for i in range(0, 12, 2):
                A("v_mov_b32 v4, s%d\nv_mov_b32 v5, s%d\nv_mov_b32 v6, s%d\nv_mov_b32 v7, s%d" % (64 + 2 * i, 65 + 2 * i, 66 + 2 * i, 67 + 2 * i))
                A("global_store_dwordx4 v2, v[4:7], s[46:47] offset:%d" % (i * 8))
                A("s_nop 1")
            A("s_mov_b64 exec, -1")
    def bf16r(dst, src):
        A("v_cvt_pk_bf16_f32 v%d, v%d, v%d" % (dst, src, src))
        A("v_and_b32 v%d, 0xffff0000, v%d" % (dst, dst))
    def dpp_red(regs, rors, op="add"):
        for k in rors:
            n = max(0, 2 - (len(regs) - 1))
            if n: A("s_nop %d" % (n - 1))
            for r in regs:
                A("v_%s_f32_dpp v%d, v%d, v%d row_ror:%d row_mask:0xf bank_mask:0xf" % (op, r, r, r, k))
    def red16(regs, op="add"): dpp_red(regs, (8, 4, 2, 1), op)
    def swap_red(regs, tmps, which, op="add"):
        ins = "v_permlane16_swap_b32" if which == 16 else "v_permlane32_swap_b32"
        for r, t in zip(regs, tmps): A("v_mov_b32 v%d, v%d" % (t, r))
        n = max(0, 2 - (len(regs) - 1))
        if n: A("s_nop %d" % (n - 1))
        for r, t in zip(regs, tmps): A("%s v%d, v%d" % (ins, r, t))
        if len(regs) < 2: A("s_nop 0")
        for r, t in zip(regs, tmps): A("v_%s_f32 v%d, v%d, v%d" % (op, r, r, t))
    def poll_begin(cnt="s60"):
        l = lab("poll"); A("s_mov_b32 %s, %d" % (cnt, POLL_LIMIT)); A(l + ":"); return l
    def poll_end(l, sleep, cnt="s60"):
        d = lab("pdone")
        A("s_cbranch_vccz %s" % d)
        A("s_sub_u32 %s, %s, 1" % (cnt, cnt))
        A("s_cbranch_scc1 %s" % d)
        if sleep: A("s_sleep %d" % sleep)
        A("s_branch %s" % l)
        A(d + ":")
    def lds_spin(addr_v, off, val, tmp, sleep=1):
        p = poll_begin("s61")
        A("ds_read_b32 v%d, v%d offset:%d" % (tmp, addr_v, off))
        A("s_waitcnt lgkmcnt(0)")
        A("v_cmp_ne_u32 vcc, %d, v%d" % (val, tmp))
        poll_end(p, sleep, "s61")
    def lds_spin2(addr_v, off1, val1, off2, val2, t1, t2, sleep=1):
        p = poll_begin("s61")
        A("ds_read_b32 v%d, v%d offset:%d\nds_read_b32 v%d, v%d offset:%d" % (t1, addr_v, off1, t2, addr_v, off2))
        A("s_waitcnt lgkmcnt(0)")
        A("v_xor_b32 v%d, %d, v%d\nv_xor_b32 v%d, %d, v%d\nv_or_b32 v%d, v%d, v%d" % (t1, val1, t1, t2, val2, t2, t1, t1, t2))
        A("v_cmp_ne_u32 vcc, 0, v%d" % t1)
        poll_end(p, sleep, "s61")
    def lds_inc(addr_v, one_v, off):
        A("s_mov_b64 exec, 1")
        A("ds_add_u32 v%d, v%d offset:%d" % (addr_v, one_v, off))
        A("s_mov_b64 exec, -1")
    def lds_set(addr_v, one_v, off):
        A("s_mov_b64 exec, 1")
        A("ds_write_b32 v%d, v%d offset:%d" % (addr_v, one_v, off))
        A("s_mov_b64 exec, -1")
    def roles():
        A("s_sub_u32 s56, s37, s34\ns_sub_u32 s56, s56, 1\ns_and_b32 s56, s56, 7")
        A("s_lshl_b32 s57, s36, 3\ns_add_u32 s57, s57, s34")
        A("s_lshl_b32 s41, s57, 1\ns_add_u32 s41, s41, s56")
        A("s_cmp_lt_u32 s56, 2\ns_cselect_b32 s40, 1, 0")
        A("s_lshr_b32 s63, s56, 1\ns_cmp_eq_u32 s63, 1\ns_cselect_b32 s63, 1, 0")
        A("s_cmp_ge_u32 s56, 6\ns_cselect_b32 s39, 1, 0")
        A("s_lshl_b32 s6, s34, 1\ns_and_b32 s7, s56, 1\ns_add_u32 s6, s6, s7")
        A("s_cmp_lt_u32 s57, 28\ns_cselect_b32 s40, s40, 0\ns_cselect_b32 s63, s63, 0")
    def tags():
        A("s_waitcnt lgkmcnt(0)")
        A("s_not_b32 s43, s62\ns_add_u32 s42, s62, 1")
    def hop(loads, tmp, mbase=88, rslot=None, tslot=None, init=None, pipe=True):
        top = lab("hop"); done = lab("hopdone")
        n = len(loads)
        for i in range(n):
            if init and init[i] is not None:
                A("s_mov_b32 s%d, 0x%x\ns_mov_b32 s%d, 0x%x" % (mbase + 2 * i, init[i][0] & 0xffffffff, mbase + 2 * i + 1, init[i][1] & 0xffffffff))
            else:
                A("s_mov_b64 s[%d:%d], -1" % (mbase + 2 * i, mbase + 2 * i + 1))
        A("s_mov_b32 s60, %d" % POLL_LIMIT)
        if tslot is not None and "rounds" in exp: stamp(tslot)
        def issue():
            for i, (ins, _) in enumerate(loads):
                A("s_mov_b64 exec, s[%d:%d]" % (mbase + 2 * i, mbase + 2 * i + 1))
                if pipe:
                    A("s_cbranch_execnz .+8" if False else "s_cmp_eq_u64 s[%d:%d], 0\ns_cselect_b64 exec, 1, exec" % (mbase + 2 * i, mbase + 2 * i + 1))
                    A(ins)
                else:
                    sk = lab("sk")
                    A("s_cbranch_execz %s" % sk)
                    A(ins)
                    A(sk + ":")
        if pipe:
            issue()
            A("s_mov_b64 exec, -1")
            A("s_sleep 1")
        A(top + ":")
        issue()
        A("s_waitcnt vmcnt(%d)" % (n if pipe else 0))
        for i, (_, regs) in enumerate(loads):
            A("s_mov_b64 exec, s[%d:%d]" % (mbase + 2 * i, mbase + 2 * i + 1))
            if len(regs) == 1:
                A("v_cmp_eq_u32 s[%d:%d], -1, v%d" % (mbase + 2 * i, mbase + 2 * i + 1, regs[0]))
            else:
                A("v_max_u32 v%d, v%d, v%d" % (tmp, regs[0], regs[1]))
                A("v_cmp_eq_u32 s[%d:%d], -1, v%d" % (mbase + 2 * i, mbase + 2 * i + 1, tmp))
        if n == 1: A("s_or_b64 vcc, s[%d:%d], s[%d:%d]" % (mbase, mbase + 1, mbase, mbase + 1))
        else: A("s_or_b64 vcc, s[%d:%d], s[%d:%d]" % (mbase, mbase + 1, mbase + 2, mbase + 3))
        for i in range(2, n): A("s_or_b64 vcc, vcc, s[%d:%d]" % (mbase + 2 * i, mbase + 2 * i + 1))
        A("s_cbranch_scc0 %s" % done)
        A("s_sub_u32 s60, s60, 1")
        A("s_cbranch_scc0 %s" % top)
        A(done + ":")
        A("s_mov_b64 exec, -1")
        if rslot is not None and stamps and "rounds" in exp:
            A("s_waitcnt lgkmcnt(0)")
            A("s_sub_u32 s%d, %d, s60\ns_mov_b32 s%d, 0" % (64 + 2 * rslot, POLL_LIMIT, 65 + 2 * rslot))

    def poll1(ins, reg):
        top = lab("p1"); done = lab("p1d")
        A("s_mov_b32 s60, %d" % POLL_LIMIT)
        A(top + ":")
        A(ins)
        A("s_waitcnt vmcnt(0)")
        A("v_cmp_eq_u32 vcc, -1, v%d" % reg)
        A("s_cbranch_vccz %s" % done)
        A("s_mov_b64 exec, vcc")
        A("s_sub_u32 s60, s60, 1")
        A("s_cbranch_scc0 %s" % top)
        A(done + ":")
        A("s_mov_b64 exec, -1")
    def red8rows(regs, tmps):
        dpp_red(regs, (8,))
        swap_red(regs, tmps, 16)
        swap_red(regs, tmps, 32)
    L_CP = L_ZP; L_EP = L_ZP + 1024
    K = NAME + "_kernel"
    A("%s:" % K)
    stamp(0)
    A("s_cmp_ge_u32 s2, 256")
    A("s_cbranch_scc1 L_exit")
    A("s_mov_b64 s[4:5], -1")
    A("s_load_dwordx16 s[8:23], s[0:1], 0")
    A("s_load_dwordx8 s[24:31], s[0:1], 64")
    A("s_load_dwordx2 s[32:33], s[0:1], 96")
    A("v_lshrrev_b32 v1, 6, v0")
    A("v_and_b32 v0, 63, v0")
    A("v_readfirstlane_b32 s3, v1")
    A("s_and_b32 s34, s2, 7")
    A("s_lshr_b32 s35, s2, 3")
    A("s_lshr_b32 s36, s35, 3")
    A("s_and_b32 s37, s35, 7")
    A("v_lshrrev_b32 v2, 4, v0")
    A("v_and_b32 v3, 15, v0")
    A("s_cmp_lt_u32 s3, 4")
    A("s_cbranch_scc1 L_chain")

    A("s_sub_u32 s44, s3, 4")
    A("s_lshl_b32 s45, s36, 3\ns_add_u32 s45, s45, s34\ns_lshl_b32 s45, s45, 20")
    A("s_lshl_b32 s46, s37, 17\ns_add_u32 s45, s45, s46")
    A("s_lshl_b32 s47, s44, 14\ns_add_u32 s45, s45, s47")
    for u in range(4):
        A("v_add_u32 v8, %d, v2" % (4 * u))
        A("v_xor_b32 v8, v8, v3")
        A("v_lshlrev_b32 v8, 4, v8")
        A("v_lshl_add_u32 v%d, v2, 8, v8" % (4 + u))
    A("v_lshlrev_b32 v8, 4, v3")
    A("v_lshl_add_u32 v9, v2, 10, v8")
    A("s_mov_b32 m0, s47")
    A("s_mov_b32 s52, s47")
    A("v_mov_b32 v93, %d\nv_mov_b32 v94, 1" % L_FL)
    A("s_waitcnt lgkmcnt(0)")
    A("s_add_u32 s56, s10, s45\ns_addc_u32 s57, s11, 0")
    A("s_add_u32 s58, s12, s45\ns_addc_u32 s59, s13, 0")
    def tile_base(T, dst, src):
        A("s_add_u32 s55, s44, %d\ns_and_b32 s55, s55, 3\ns_lshl_b32 s55, s55, 12" % T)
        A("s_add_u32 s%d, s%d, s55\ns_addc_u32 s%d, s%d, 0" % (dst, src, dst + 1, src + 1))
    tile_base(0, 48, 56)
    if "latebar" not in exp: A("s_barrier")
    for i in range(16):
        T, u = i >> 2, i & 3
        if u == 0 and T > 0:
            tile_base(T, 48, 56)
            A("s_add_u32 s52, s52, 4096\ns_mov_b32 m0, s52\ns_nop 0")
        A("global_load_lds_dwordx4 v%d, s[48:49] offset:%d%s" % (4 + u, u * 1024, NT))
        if "latebar" in exp and i == W: A("s_barrier")
        if W and i >= W:
            A("s_waitcnt vmcnt(%d)" % W)
    VB = 96
    def vload(idx):
        T, r = idx >> 2, idx & 3
        if r == 0: tile_base(T, 50, 58)
        A("global_load_dwordx4 v[%d:%d], v9, s[50:51] offset:%d%s" % (VB + 4 * idx, VB + 4 * idx + 3, r * 256, NT))
    for idx in range(vpre): vload(idx)
    lds_inc(93, 94, 4)
    stamp(1)
    if "noks" in exp: lds_spin(93, 16, 1, 8)
    else: lds_spin2(93, 4, 8, 16, 1, 8, 10)
    for idx in range(vpre, nv1): vload(idx)
    stamp(2)
    roles()
    for t in range(4):
        A("v_add_u32 v8, %d, v2" % (4 * t))
        A("v_xor_b32 v8, v8, v3")
        A("v_lshlrev_b32 v8, 4, v8")
        A("v_lshl_add_u32 v8, v3, 8, v8")
        A("v_add_u32 v%d, s47, v8" % (10 + t))
    A("v_lshrrev_b32 v8, 2, v3")
    A("v_lshlrev_b32 v14, 8, v8")
    A("v_lshl_add_u32 v14, v2, 4, v14")
    A("v_add_u32 v14, %d, v14" % L_Q)
    A("v_lshlrev_b32 v15, 5, v8")
    A("v_add_u32 v15, %d, v15" % L_MB)
    A("v_lshlrev_b32 v88, 5, v8")
    A("s_lshl_b32 s55, s44, 2\ns_add_u32 s55, s55, %d" % L_LB)
    A("v_add_u32 v88, s55, v88")
    A("v_and_b32 v8, 1, v3\nv_lshlrev_b32 v8, 4, v8\nv_mov_b32 v91, 0xffff\nv_lshlrev_b32 v91, v8, v91")
    A("v_and_b32 v8, 3, v3")
    A("v_cmp_gt_u32 vcc, 2, v8")
    A("v_lshlrev_b32 v92, 4, v0\ns_add_u32 s55, s47, %d\nv_add_u32 v92, s55, v92" % L_OP)
    A("v_cndmask_b32 v89, 0, v91, vcc")
    A("v_cndmask_b32 v90, v91, 0, vcc")
    A("s_mov_b32 s53, 0x3db504f3")
    A("s_mov_b32 s54, 0x3fb8aa3b")
    lds_spin(93, 0, 1, 8)
    stamp(3)
    for t in range(4):
        A("ds_read_b128 v[%d:%d], v14 offset:%d" % (16 + 4 * t, 19 + 4 * t, t * 64))
    A("s_waitcnt vmcnt(%d)" % nv1)
    def kfr(T, buf):
        for t in range(4):
            A("ds_read_b128 v[%d:%d], v%d offset:%d" % (buf + 4 * t, buf + 4 * t + 3, 10 + t, T * 4096))
    def qk(T, buf):
        for t in range(4):
            c = "0" if t == 0 else "v[%d:%d]" % (64 + 4 * T, 67 + 4 * T)
            A("v_mfma_f32_16x16x32_bf16 v[%d:%d], v[%d:%d], v[%d:%d], %s" % (64 + 4 * T, 67 + 4 * T, buf + 4 * t, buf + 4 * t + 3, 16 + 4 * t, 19 + 4 * t, c))
    kfr(0, 32); kfr(1, 48)
    A("s_waitcnt lgkmcnt(4)"); qk(0, 32)
    kfr(2, 32)
    A("s_waitcnt lgkmcnt(4)"); qk(1, 48)
    kfr(3, 48)
    A("s_waitcnt lgkmcnt(4)"); qk(2, 32)
    A("s_waitcnt lgkmcnt(0)"); qk(3, 48)
    def round_pair(a, b):
        A("v_cvt_pk_bf16_f32 v8, v%d, v%d" % (a, b))
        A("v_lshlrev_b32 v%d, 16, v8" % a)
        A("v_and_b32 v%d, 0xffff0000, v8" % b)
        A("v_mul_f32 v%d, s53, v%d" % (a, a))
        A("v_mul_f32 v%d, s53, v%d" % (b, b))
        A("v_cvt_pk_bf16_f32 v8, v%d, v%d" % (a, b))
        A("v_lshlrev_b32 v%d, 16, v8" % a)
        A("v_and_b32 v%d, 0xffff0000, v8" % b)
    for T in range(4):
        round_pair(64 + 4 * T, 65 + 4 * T); round_pair(66 + 4 * T, 67 + 4 * T)
    A("v_max3_f32 v8, v64, v65, v66")
    for i in range(67, 79, 2):
        A("v_max3_f32 v8, v8, v%d, v%d" % (i, i + 1))
    A("v_max_f32 v8, v8, v79")
    swap_red([8], [95], 16, "max"); swap_red([8], [95], 32, "max")
    A("s_lshl_b32 s55, s44, 2")
    A("v_add_u32 v95, s55, v15")
    A("s_mov_b32 exec_lo, 0x1111\ns_mov_b32 exec_hi, 0")
    A("ds_write_b32 v95, v8")
    A("s_mov_b64 exec, 1")
    A("ds_add_u32 v93, v94 offset:36")
    A("s_mov_b64 exec, -1")
    stamp(4)
    A("v_mul_f32 v95, s54, v8")
    for i in range(16):
        A("v_fma_f32 v%d, v%d, s54, -v95" % (64 + i, 64 + i))
    for i in range(16):
        A("v_exp_f32 v%d, v%d" % (64 + i, 64 + i))
    A("s_nop 0")
    A("v_add_f32 v8, v64, v65\nv_add_f32 v87, v66, v67")
    for i in range(4, 16, 2): A("v_add_f32 v8, v8, v%d\nv_add_f32 v87, v87, v%d" % (64 + i, 65 + i))
    A("v_add_f32 v8, v8, v87")
    for i in range(16):
        A("v_cvt_pk_bf16_f32 v%d, v%d, v%d" % (64 + i, 64 + i, 64 + i))
    swap_red([8], [87], 16, "add"); swap_red([8], [87], 32, "add")
    A("v_mov_b32 v16, v8")
    for idx in range(nv1, 16): vload(idx)
    lds_inc(93, 94, 8)
    stamp(5)
    lds_spin(93, 36, 8, 8, 1)
    A("ds_read_b128 v[32:35], v15")
    A("ds_read_b128 v[36:39], v15 offset:16")
    A("s_waitcnt lgkmcnt(0)")
    A("v_max3_f32 v8, v32, v33, v34\nv_max3_f32 v8, v8, v35, v36\nv_max3_f32 v8, v8, v37, v38\nv_max_f32 v8, v8, v39")
    A("v_fma_f32 v17, -v8, s54, v95")
    A("v_exp_f32 v17, v17\ns_nop 0")
    A("v_mul_f32 v16, v16, v17")
    A("s_mov_b32 exec_lo, 0x1111\ns_mov_b32 exec_hi, 0")
    A("ds_write_b32 v88, v16")
    A("s_mov_b64 exec, -1")
    for idx in range(16):
        ta = 32 + 2 * (idx & 3)
        A("v_and_b32 v%d, v%d, v89" % (ta, 64 + idx))
        A("v_and_b32 v%d, v%d, v90" % (ta + 1, 64 + idx))
        A("s_waitcnt vmcnt(%d)" % (15 - idx))
        c0 = "0" if idx == 0 else "v[80:83]"
        c1 = "0" if idx == 0 else "v[84:87]"
        A("s_nop 0")
        A("v_mfma_f32_16x16x16_bf16 v[80:83], v[%d:%d], v[%d:%d], %s" % (VB + 4 * idx, VB + 4 * idx + 1, ta, ta + 1, c0))
        A("v_mfma_f32_16x16x16_bf16 v[84:87], v[%d:%d], v[%d:%d], %s" % (VB + 4 * idx + 2, VB + 4 * idx + 3, ta, ta + 1, c1))
    stamp(6)
    A("s_nop 6")
    for i in range(8): A("v_mul_f32 v%d, v%d, v17" % (80 + i, 80 + i))
    A("ds_write_b128 v92, v[80:83]")
    A("ds_write_b128 v92, v[84:87] offset:1024")
    lds_inc(93, 94, 24)
    stamp(7)
    A("s_cmp_lg_u32 s40, 0")
    A("s_cbranch_scc1 L_s_D")
    A("s_cmp_eq_u32 s39, 0")
    A("s_cbranch_scc1 L_stream_end")
    A("s_lshl_b32 s45, s36, 4\ns_add_u32 s45, s45, s6\ns_mul_i32 s45, s45, %d\ns_lshl_b32 s46, s44, 10\ns_add_u32 s45, s45, s46\ns_add_u32 s45, s45, %d" % (NJ * 128, W_OUT))
    A("v_lshlrev_b32 v6, 4, v0\nv_add_u32 v6, s45, v6")
    A("v_and_b32 v7, 7, v0\nv_lshlrev_b32 v7, 4, v7\ns_lshl_b32 s45, s44, 7\ns_add_u32 s45, s45, %d\nv_add_u32 v7, s45, v7" % L_EP)
    A("s_barrier")
    A("s_barrier")
    A("s_cmp_eq_u32 s44, 7\ns_cbranch_scc1 L_s_e1")
    poll1("global_load_dwordx4 v[16:19], v6, s[32:33]%s" % SC, 19)
    stamp(9)
    red8rows([16, 17, 18, 19], [24, 25, 26, 27])
    A("s_mov_b64 exec, 0xff")
    A("ds_write_b128 v7, v[16:19]")
    A("s_mov_b64 exec, -1")
    A("s_waitcnt lgkmcnt(0)")
    A("L_s_e1:")
    A("s_barrier")
    A("s_branch L_stream_end")
    A("L_s_D:")
    A("; DRY_BEGIN")
    A("v_mov_b32 v90, %d" % L_FL)
    A("v_lshrrev_b32 v8, 2, v3\nv_lshl_add_u32 v8, v2, 3, v8")
    A("v_and_b32 v93, 3, v3\nv_lshlrev_b32 v93, 3, v93")
    A("v_lshl_add_u32 v4, v8, 6, v93\nv_add_u32 v4, s47, v4")
    A("v_lshlrev_b32 v5, 2, v93\nv_lshl_add_u32 v5, v8, 7, v5\nv_add_u32 v5, s47, v5")
    A("v_and_b32 v6, 3, v3\nv_lshlrev_b32 v6, 10, v6\nv_lshl_add_u32 v6, v2, 4, v6")
    A("s_lshl_b32 s58, s44, 7\ns_add_u32 s58, s58, %d" % L_XH)
    A("v_add_u32 v6, s58, v6")
    A("v_lshlrev_b32 v7, 2, v0\ns_lshl_b32 s58, s44, 8\ns_add_u32 s58, s58, %d\nv_add_u32 v7, s58, v7" % L_ZP)
    A("v_lshlrev_b32 v11, 2, v0\ns_lshl_b32 s58, s44, 11\ns_add_u32 s58, s58, %d\nv_add_u32 v11, s58, v11" % L_ZP)
    A("v_lshrrev_b32 v10, 2, v3\nv_lshlrev_b32 v10, 6, v10\nv_lshl_add_u32 v10, v2, 4, v10\nv_add_u32 v10, %d, v10" % L_H1)
    A("v_mov_b32 v92, %d\nv_and_b32 v91, 3, v3" % L_Z)
    for t in range(4):
        A("v_cmp_eq_u32 vcc, %d, v91\ns_nop 1\nv_cndmask_b32 v%d, v92, v10, vcc" % (t, 94 + t))
    A("v_mov_b32 v24, 0\nv_mov_b32 v25, 0\nv_mov_b32 v26, 0\nv_mov_b32 v27, 0\nds_write_b128 v92, v[24:27]")
    A("v_lshrrev_b32 v15, 2, v3")
    A("v_cmp_eq_u32 s[56:57], 1, v15\nv_cmp_eq_u32 s[58:59], 2, v15\nv_cmp_eq_u32 s[48:49], 3, v15")
    A("v_lshrrev_b32 v12, 2, v3\nv_lshlrev_b32 v12, 4, v12\nv_lshrrev_b32 v24, 1, v2\nv_add_u32 v12, v12, v24\nv_mul_u32_u24 v12, %d, v12" % (NJ * 128))
    A("v_and_b32 v24, 1, v2\nv_lshl_add_u32 v12, v24, 6, v12\nv_lshl_add_u32 v12, v91, 4, v12")
    A("s_mul_i32 s45, s44, %d\ns_lshl_b32 s46, s41, 7\ns_add_u32 s45, s45, s46\ns_add_u32 s45, s45, %d" % (2 * NJ * 128, W_OUT))
    A("v_add_u32 v12, s45, v12")
    A("v_lshlrev_b32 v13, 4, v0\ns_lshl_b32 s45, s44, 11\ns_lshl_b32 s46, s34, 13\ns_add_u32 s45, s45, s46\ns_add_u32 s45, s45, %d\nv_add_u32 v13, s45, v13" % W_H)
    A("v_lshlrev_b32 v14, 3, v0\ns_lshl_b32 s45, s44, 10\ns_add_u32 s45, s45, %d\nv_add_u32 v14, s45, v14" % L_XH)
    A("v_lshl_add_u32 v15, v2, 2, v15")
    A("s_and_b32 s45, s44, 1\ns_lshl_b32 s45, s45, 4\nv_add_u32 v15, s45, v15")
    A("v_lshlrev_b32 v9, 2, v15\nv_add_u32 v9, %d, v9" % L_B1)
    A("ds_read_b32 v88, v9")
    A("v_and_b32 v9, 3, v3\nv_lshlrev_b32 v9, 6, v9\nv_lshl_add_u32 v9, v15, 1, v9\nv_add_u32 v9, %d, v9" % L_H1)
    A("v_mov_b32 v89, 0x3d372713")
    lds_spin(90, 28, 4, 91, 1)
    for ft in range(2):
        for ks in range(2):
            fr = 32 + 8 * ft + 4 * ks
            A("ds_read_b64_tr_b16 v[%d:%d], v4 offset:%d" % (fr, fr + 1, ks * 2048 + ft * 32))
            A("ds_read_b64_tr_b16 v[%d:%d], v4 offset:%d" % (fr + 2, fr + 3, ks * 2048 + ft * 32 + 256))
    A("s_waitcnt lgkmcnt(0)")
    for t in range(4):
        A("ds_read_b64_tr_b16 v[%d:%d], v5 offset:%d" % (48 + 4 * t, 49 + 4 * t, 4096 + t * 8))
        A("ds_read_b64_tr_b16 v[%d:%d], v5 offset:%d" % (50 + 4 * t, 51 + 4 * t, 4096 + t * 8 + 512))
    A("s_waitcnt lgkmcnt(0)")
    stamp(8)
    A("s_cmp_ge_u32 s44, 4")
    A("s_cbranch_scc1 L_d1")
    if sD: A("s_sleep %d" % sD)
    hop([("global_load_dwordx4 v[100:103], v13, s[32:33]%s" % SC, [103]), ("global_load_dwordx4 v[104:107], v13, s[32:33] offset:1024%s" % SC, [107])], 24, pipe=PIPE)
    stamp(9)
    A("v_add_f32 v24, v100, v101\nv_add_f32 v25, v102, v103\nv_add_f32 v26, v104, v105\nv_add_f32 v27, v106, v107")
    A("v_add_f32 v24, v24, v25\nv_add_f32 v26, v26, v27\nv_add_f32 v24, v24, v26")
    red16([24]); swap_red([24], [25], 16); swap_red([24], [25], 32)
    A("v_mul_f32 v24, 0x3b000000, v24")
    for i in range(8): A("v_sub_f32 v%d, v%d, v24" % (16 + i, 100 + i))
    A("v_mul_f32 v25, v16, v16\nv_mul_f32 v26, v17, v17")
    for i in range(2, 8, 2): A("v_fma_f32 v25, v%d, v%d, v25\nv_fma_f32 v26, v%d, v%d, v26" % (16 + i, 16 + i, 17 + i, 17 + i))
    A("v_add_f32 v25, v25, v26")
    red16([25]); swap_red([25], [26], 16); swap_red([25], [26], 32)
    A("v_mul_f32 v25, 0x3b000000, v25")
    A("v_add_f32 v26, 0x3727c5ac, v25")
    A("v_rcp_f32 v27, v26\nv_rsq_f32 v26, v26\ns_nop 0")
    A("v_mul_f32 v27, v25, v27")
    A("v_add_f32 v27, 0x3727c5ac, v27")
    A("v_rsq_f32 v27, v27\ns_nop 0")
    A("v_mul_f32 v26, v26, v27")
    for i in range(8): A("v_mul_f32 v%d, v%d, v26" % (16 + i, 16 + i))
    for i in range(4): A("v_cvt_pk_bf16_f32 v%d, v%d, v%d" % (72 + i, 16 + 2 * i, 17 + 2 * i))
    if "dst" in exp: stamp(1)
    A("ds_write_b64 v14, v[72:73]")
    A("ds_write_b64 v14, v[74:75] offset:512")
    A("s_waitcnt lgkmcnt(0)")
    A("L_d1:")
    A("s_barrier")
    if "dst" in exp: stamp(2)
    for ks in range(2):
        A("ds_read_b128 v[%d:%d], v6 offset:%d" % (16 + 4 * ks, 19 + 4 * ks, ks * 64))
    for ks in range(2):
        A("s_waitcnt lgkmcnt(%d)" % (1 - ks))
        for ft in range(2):
            c = "0" if ks == 0 else "v[%d:%d]" % (80 + 4 * ft, 83 + 4 * ft)
            A("v_mfma_f32_16x16x32_bf16 v[%d:%d], v[%d:%d], v[%d:%d], %s" % (80 + 4 * ft, 83 + 4 * ft, 32 + 8 * ft + 4 * ks, 35 + 8 * ft + 4 * ks, 16 + 4 * ks, 19 + 4 * ks, c))
    A("s_nop 6")
    A("v_cndmask_b32 v80, v80, v81, s[56:57]\nv_cndmask_b32 v80, v80, v82, s[58:59]\nv_cndmask_b32 v80, v80, v83, s[48:49]")
    A("v_cndmask_b32 v84, v84, v85, s[56:57]\nv_cndmask_b32 v84, v84, v86, s[58:59]\nv_cndmask_b32 v84, v84, v87, s[48:49]")
    if "dst" in exp: stamp(3)
    A("ds_write_b32 v7, v80")
    A("ds_write_b32 v7, v84 offset:2048")
    A("s_waitcnt lgkmcnt(0)")
    A("s_barrier")
    if "dst" in exp: stamp(4)
    A("s_cmp_ge_u32 s44, 2")
    A("s_cbranch_scc1 L_d3")
    for w_ in range(8): A("ds_read_b32 v%d, v11 offset:%d" % (16 + w_, w_ * 256))
    A("s_waitcnt lgkmcnt(0)")
    A("v_add_f32 v16, v16, v17\nv_add_f32 v18, v18, v19\nv_add_f32 v20, v20, v21\nv_add_f32 v22, v22, v23")
    A("v_add_f32 v16, v16, v18\nv_add_f32 v20, v20, v22\nv_add_f32 v18, v16, v20")
    bf16r(18, 18)
    A("v_add_f32 v18, v18, v88")
    bf16r(18, 18)
    A("v_mul_f32 v19, v18, v18")
    A("v_fma_f32 v19, v19, v89, 1.0")
    A("v_mul_f32 v19, v19, v18")
    A("v_mul_f32 v19, 0xc0135761, v19")
    A("v_exp_f32 v19, v19\ns_nop 0")
    A("v_add_f32 v19, 1.0, v19")
    A("v_rcp_f32 v19, v19\ns_nop 0")
    A("v_mul_f32 v18, v18, v19")
    A("v_cvt_pk_bf16_f32 v18, v18, v18")
    if "dst" in exp: stamp(5)
    A("ds_write_b16 v9, v18")
    A("s_waitcnt lgkmcnt(0)")
    A("L_d3:")
    A("s_barrier")
    if "dst" in exp: stamp(6)
    for t in range(4): A("ds_read_b128 v[%d:%d], v%d" % (16 + 4 * t, 19 + 4 * t, 94 + t))
    for t in range(4):
        A("s_waitcnt lgkmcnt(%d)" % (3 - t))
        c = "0" if t == 0 else "v[64:67]"
        A("v_mfma_f32_16x16x32_bf16 v[64:67], v[%d:%d], v[%d:%d], %s" % (48 + 4 * t, 51 + 4 * t, 16 + 4 * t, 19 + 4 * t, c))
    A("s_nop 7")
    A("global_store_dwordx4 v12, v[64:67], s[32:33]%s" % SC)
    stamp(10)
    A("; DRY_END")
    A("L_stream_end:")
    if DRY: A("s_cbranch_execz L_dry_ret3")
    stamp(11)
    stamp_flush()
    A("s_endpgm")

    A("L_chain:")
    A("s_cmp_lg_u32 s3, 2\ns_cbranch_scc1 L_c_nz")
    A("v_mov_b32 v8, 0\nv_mov_b32 v9, 0\nv_mov_b32 v10, 0\nv_mov_b32 v11, 0")
    A("v_mov_b32 v7, %d" % L_FL)
    for i in range(4): A("ds_write_b128 v7, v[8:11] offset:%d" % (16 * i))
    A("L_c_nz:")
    A("s_lshl_b32 s38, s34, 2\ns_add_u32 s38, s38, s36")
    roles()
    A("s_lshl_b32 s44, s34, 10\ns_lshl_b32 s45, s36, 6\ns_add_u32 s44, s44, s45\ns_and_b32 s45, s37, 1\ns_lshl_b32 s45, s45, 5\ns_add_u32 s44, s44, s45")
    A("s_lshr_b32 s45, s37, 1\ns_lshl_b32 s45, s45, 3\ns_add_u32 s44, s44, s45\ns_add_u32 s44, s44, %d" % W_ML)
    A("v_and_b32 v102, 3, v0\nv_lshlrev_b32 v102, 8, v102\nv_add_u32 v102, s44, v102")
    A("s_lshr_b32 s45, s35, 1\ns_and_b32 s45, s45, 3")
    A("s_lshl_b32 s44, s34, 16\ns_lshl_b32 s46, s45, 12\ns_add_u32 s44, s44, s46\ns_lshl_b32 s46, s36, 10\ns_add_u32 s44, s44, s46")
    A("s_and_b32 s46, s35, 1\ns_lshl_b32 s46, s46, 9\ns_add_u32 s44, s44, s46\ns_add_u32 s44, s44, %d" % W_QP)
    A("v_and_b32 v103, 3, v3\nv_lshlrev_b32 v103, 14, v103\nv_lshl_add_u32 v103, v2, 5, v103\nv_add_u32 v103, s44, v103")
    A("v_mov_b32 v100, %d\nv_mov_b32 v101, 1\nv_mov_b32 v126, 0" % L_FL)
    A("s_waitcnt lgkmcnt(0)")
    A("s_load_dword s62, s[32:33], 0")
    A("s_cmp_eq_u32 s3, 0\ns_cbranch_scc1 L_c0")
    A("s_barrier")
    A("s_cmp_eq_u32 s3, 1\ns_cbranch_scc1 L_c1")
    A("s_cmp_eq_u32 s3, 2\ns_cbranch_scc1 L_c2")
    A("s_branch L_c3")
    A("L_c0:")
    A("v_lshlrev_b32 v6, 10, v2\nv_lshl_add_u32 v7, v3, 6, v6")
    for i in range(4):
        A("global_load_dwordx4 v[%d:%d], v7, s[8:9] offset:%d" % (16 + 4 * i, 19 + 4 * i, i * 16))
    A("s_lshl_b32 s46, s45, 8")
    A("v_lshl_add_u32 v7, v3, 4, v6\nv_add_u32 v7, s46, v7")
    A("global_load_dwordx4 v[12:15], v7, s[8:9]")
    A("s_lshl_b32 s44, s45, 20\ns_lshl_b32 s46, s34, 10\ns_add_u32 s44, s44, s46\ns_lshl_b32 s46, s36, 8\ns_add_u32 s44, s44, s46")
    A("s_and_b32 s46, s35, 1\ns_lshl_b32 s46, s46, 7\ns_add_u32 s44, s44, s46")
    A("s_add_u32 s46, s14, s44\ns_addc_u32 s47, s15, 0")
    A("v_lshrrev_b32 v7, 3, v0\nv_lshlrev_b32 v7, 13, v7\nv_and_b32 v8, 7, v0\nv_lshl_add_u32 v7, v8, 4, v7")
    A("s_mov_b32 s48, %d" % L_ST)
    for i in range(16):
        A("s_mov_b32 m0, s48\ns_add_u32 s48, s48, 1024")
        A("global_load_lds_dwordx4 v7, s[46:47]")
        A("s_add_u32 s46, s46, 0x10000\ns_addc_u32 s47, s47, 0")
    A("s_barrier")
    stamp(1)
    A("s_waitcnt vmcnt(16)")
    tags()
    for i in range(16):
        A("v_lshlrev_b32 v%d, 16, v%d\nv_and_b32 v%d, 0xffff0000, v%d" % (32 + 2 * i, 16 + i, 33 + 2 * i, 16 + i))
    A("v_add_f32 v64, v32, v33\nv_add_f32 v65, v34, v35\nv_add_f32 v66, v36, v37\nv_add_f32 v67, v38, v39")
    for i in range(8, 32, 4):
        A("v_add_f32 v64, v64, v%d\nv_add_f32 v65, v65, v%d\nv_add_f32 v66, v66, v%d\nv_add_f32 v67, v67, v%d" % (32 + i, 33 + i, 34 + i, 35 + i))
    A("v_add_f32 v64, v64, v65\nv_add_f32 v66, v66, v67\nv_add_f32 v64, v64, v66")
    red16([64])
    A("v_mul_f32 v64, 0x3b000000, v64")
    A("v_mov_b32 v65, 0\nv_mov_b32 v66, 0")
    for i in range(0, 32, 2):
        A("v_sub_f32 v67, v%d, v64\nv_sub_f32 v68, v%d, v64\nv_fma_f32 v65, v67, v67, v65\nv_fma_f32 v66, v68, v68, v66" % (32 + i, 33 + i))
    A("v_add_f32 v65, v65, v66")
    red16([65])
    A("v_mul_f32 v65, 0x3b000000, v65")
    bf16r(64, 64); bf16r(65, 65)
    A("v_add_f32 v65, 0x3727c5ac, v65"); bf16r(65, 65)
    A("v_sqrt_f32 v65, v65\ns_nop 0"); bf16r(65, 65)
    A("v_rcp_f32 v65, v65")
    for i in range(4):
        a, b = 32 + 2 * i, 33 + 2 * i
        A("v_lshlrev_b32 v%d, 16, v%d\nv_and_b32 v%d, 0xffff0000, v%d" % (a, 12 + i, b, 12 + i))
        A("v_sub_f32 v%d, v%d, v64\nv_sub_f32 v%d, v%d, v64" % (a, a, b, b))
        A("v_cvt_pk_bf16_f32 v66, v%d, v%d" % (a, b))
        A("v_lshlrev_b32 v%d, 16, v66\nv_and_b32 v%d, 0xffff0000, v66" % (a, b))
        A("v_mul_f32 v%d, v%d, v65\nv_mul_f32 v%d, v%d, v65" % (a, a, b, b))
        A("v_cvt_pk_bf16_f32 v%d, v%d, v%d" % (16 + i, a, b))
    A("v_lshlrev_b32 v6, 8, v2\nv_lshl_add_u32 v6, v3, 4, v6\nv_add_u32 v6, %d, v6" % L_XH)
    A("ds_write_b128 v6, v[16:19]")
    A("v_lshrrev_b32 v8, 2, v3\nv_lshl_add_u32 v8, v2, 3, v8\nv_and_b32 v9, 3, v3\nv_lshlrev_b32 v12, 3, v9")
    A("v_lshl_add_u32 v12, v8, 7, v12\nv_add_u32 v12, %d, v12" % L_ST)
    A("v_lshlrev_b32 v13, 8, v9\nv_lshl_add_u32 v13, v2, 4, v13\nv_add_u32 v13, %d, v13" % L_XH)
    A("s_waitcnt vmcnt(0) lgkmcnt(0)")
    stamp(2)
    for ks in range(4):
        A("ds_read_b128 v[%d:%d], v13 offset:%d" % (16 + 4 * ks, 19 + 4 * ks, ks * 64))
    for ks in range(4):
        for t in range(4):
            A("ds_read_b64_tr_b16 v[%d:%d], v12 offset:%d" % (32 + 4 * t, 33 + 4 * t, ks * 4096 + t * 32))
            A("ds_read_b64_tr_b16 v[%d:%d], v12 offset:%d" % (34 + 4 * t, 35 + 4 * t, ks * 4096 + t * 32 + 512))
        for t in range(4):
            A("s_waitcnt lgkmcnt(%d)" % (6 - 2 * t))
            c = "0" if ks == 0 else "v[%d:%d]" % (64 + 4 * t, 67 + 4 * t)
            A("v_mfma_f32_16x16x32_bf16 v[%d:%d], v[%d:%d], v[%d:%d], %s" % (64 + 4 * t, 67 + 4 * t, 32 + 4 * t, 35 + 4 * t, 16 + 4 * ks, 19 + 4 * ks, c))
    A("v_mov_b32 v34, s42\nv_mov_b32 v35, s43\nv_mov_b32 v38, s42\nv_mov_b32 v39, s43")
    A("s_mov_b32 exec_lo, 0x000f000f\ns_mov_b32 exec_hi, 0x000f000f")
    A("s_nop 4")
    for t in range(4):
        A("v_mov_b32 v32, v%d\nv_mov_b32 v33, v%d\nv_mov_b32 v36, v%d\nv_mov_b32 v37, v%d" % (64 + 4 * t, 65 + 4 * t, 66 + 4 * t, 67 + 4 * t))
        A("global_store_dwordx4 v103, v[32:35], s[32:33] offset:%d%s" % (t * 128, SC))
        A("global_store_dwordx4 v103, v[36:39], s[32:33] offset:%d%s" % (t * 128 + 16, SC))
        A("s_nop 1")
    A("s_mov_b64 exec, -1")
    lds_set(100, 101, 12)
    stamp(3)
    A("s_branch L_c_pre")
    A("L_c1:")
    A("s_lshl_b32 s44, s34, 16\ns_lshl_b32 s45, s36, 14\ns_add_u32 s44, s44, s45\ns_add_u32 s44, s44, %d" % W_QP)
    A("v_lshlrev_b32 v6, 4, v0\nv_add_u32 v6, s44, v6\nv_add_u32 v7, 4096, v6\nv_add_u32 v8, 4096, v7\nv_add_u32 v9, 4096, v8")
    tags()
    p = poll_begin("s61")
    A("ds_read_b32 v20, v100 offset:4")
    A("s_waitcnt lgkmcnt(0)")
    A("v_cmp_gt_u32 vcc, %d, v20" % qk_at)
    poll_end(p, 4, "s61")
    stamp(2)
    p = poll_begin()
    for i in range(16):
        A("global_load_dwordx4 v[%d:%d], v%d, s[32:33] offset:%d%s" % (32 + 4 * i, 35 + 4 * i, 6 + (i >> 2), (i & 3) * 1024, SC))
    lds_set(100, 101, 16)
    A("s_waitcnt vmcnt(0)")
    for i in range(16):
        A("v_xor_b32 v%d, s42, v%d\nv_xor_b32 v%d, s43, v%d" % (34 + 4 * i, 34 + 4 * i, 35 + 4 * i, 35 + 4 * i))
    A("v_or3_b32 v20, v34, v35, v38")
    A("v_or_b32 v20, v20, v39")
    for i in range(2, 16):
        A("v_or3_b32 v20, v20, v%d, v%d" % (34 + 4 * i, 35 + 4 * i))
    A("v_cmp_ne_u32 vcc, 0, v20")
    poll_end(p, sleep_q)
    for j in range(4):
        a = 32 + 4 * j
        A("v_pk_add_f32 v[%d:%d], v[%d:%d], v[%d:%d]" % (a, a + 1, a, a + 1, a + 16, a + 17))
        A("v_pk_add_f32 v[%d:%d], v[%d:%d], v[%d:%d]" % (a + 32, a + 33, a + 32, a + 33, a + 48, a + 49))
        A("v_pk_add_f32 v[%d:%d], v[%d:%d], v[%d:%d]" % (a, a + 1, a, a + 1, a + 32, a + 33))
    for j in range(4): A("v_cvt_pk_bf16_f32 v%d, v%d, v%d" % (16 + j, 32 + 4 * j, 33 + 4 * j))
    A("v_lshlrev_b32 v7, 2, v0\nv_add_u32 v7, %d, v7" % L_Q)
    for j in range(4): A("ds_write_b32 v7, v%d offset:%d" % (16 + j, j * 256))
    lds_set(100, 101, 0)
    stamp(3)
    A("s_branch L_c_pre")
    A("L_c2:")
    A("v_mov_b32 v12, -1\nv_mov_b32 v13, -1\nv_mov_b32 v14, -1\nv_mov_b32 v15, -1")
    A("v_lshrrev_b32 v16, 5, v0\nv_lshlrev_b32 v16, 14, v16\nv_and_b32 v17, 31, v0\nv_lshl_add_u32 v16, v17, 4, v16")
    A("s_lshl_b32 s44, s34, 16\ns_lshl_b32 s45, s36, 12\ns_add_u32 s44, s44, s45\ns_lshl_b32 s45, s37, 9\ns_add_u32 s44, s44, s45\ns_add_u32 s44, s44, %d" % W_OP)
    A("v_add_u32 v16, s44, v16")
    A("global_store_dwordx4 v16, v[12:15], s[32:33]%s" % SC)
    A("v_add_u32 v17, 0x8000, v16")
    A("global_store_dwordx4 v17, v[12:15], s[32:33]%s" % SC)
    A("global_store_dwordx2 v102, v[12:13], s[32:33]%s" % SC)
    A("v_lshlrev_b32 v18, 4, v2\nv_bfe_u32 v19, v0, 3, 1\nv_add_u32 v18, v18, v19\nv_lshlrev_b32 v18, 12, v18\nv_and_b32 v19, 7, v0\nv_lshl_add_u32 v18, v19, 4, v18")
    A("s_lshl_b32 s45, s38, 7\ns_add_u32 s45, s45, %d" % W_HP)
    A("s_cmp_lg_u32 s40, 0\ns_cbranch_scc1 L_c2h")
    A("s_lshl_b32 s44, s37, 13\ns_add_u32 s44, s44, s45")
    A("v_add_u32 v19, s44, v18")
    A("global_store_dwordx4 v19, v[12:15], s[32:33]%s" % SC)
    A("s_cmp_eq_u32 s63, 0\ns_cbranch_scc1 L_c2h")
    A("s_sub_u32 s44, s37, 2\ns_and_b32 s44, s44, 7\ns_lshl_b32 s44, s44, 13\ns_add_u32 s44, s44, s45")
    A("v_add_u32 v19, s44, v18")
    A("global_store_dwordx4 v19, v[12:15], s[32:33]%s" % SC)
    A("L_c2h:")
    A("s_cmp_eq_u32 s39, 0\ns_cbranch_scc1 L_c2a")
    A("s_lshl_b32 s44, s36, 11\ns_lshl_b32 s45, s6, 7\ns_add_u32 s44, s44, s45\ns_add_u32 s44, s44, %d" % W_H)
    A("v_lshrrev_b32 v19, 3, v0\nv_lshlrev_b32 v19, 13, v19\nv_and_b32 v20, 7, v0\nv_lshl_add_u32 v19, v20, 4, v19\nv_add_u32 v19, s44, v19")
    A("global_store_dwordx4 v19, v[12:15], s[32:33]%s" % SC)
    A("L_c2a:")
    A("s_cmp_eq_u32 s40, 0\ns_cbranch_scc1 L_c2b")
    A("v_lshrrev_b32 v19, 3, v0\nv_mul_u32_u24 v19, %d, v19\nv_and_b32 v20, 7, v0\nv_lshl_add_u32 v19, v20, 4, v19" % (NJ * 128))
    A("s_lshl_b32 s44, s41, 7\ns_add_u32 s44, s44, %d" % W_OUT)
    A("v_add_u32 v19, s44, v19")
    for i in range(8):
        A("global_store_dwordx4 v19, v[12:15], s[32:33]%s" % SC)
        A("v_add_u32 v19, %d, v19" % (8 * NJ * 128))
    A("L_c2b:")
    A("s_waitcnt vmcnt(0)")
    tags()
    A("s_getreg_b32 s44, hwreg(HW_REG_XCC_ID)\ns_and_b32 s44, s44, 7\ns_xor_b32 s44, s44, s43")
    A("v_mov_b32 v20, s42\nv_mov_b32 v21, s44")
    A("s_lshl_b32 s44, s34, 5\ns_add_u32 s44, s44, s35\ns_lshl_b32 s44, s44, 3\ns_add_u32 s44, s44, %d\nv_mov_b32 v22, s44" % W_FLAG)
    A("s_mov_b64 exec, 1")
    A("global_store_dwordx2 v22, v[20:21], s[32:33]%s" % SC)
    A("s_mov_b64 exec, -1")
    stamp(3)
    A("s_branch L_c_join")
    A("L_c3:")
    if "nostouch" not in exp.split(","):
        A("s_lshl_b32 s45, s36, 3\ns_add_u32 s45, s45, s34\ns_lshl_b32 s45, s45, 20\ns_lshl_b32 s46, s37, 17\ns_add_u32 s45, s45, s46")
        A("s_add_u32 s46, s12, s45\ns_addc_u32 s47, s13, 0")
        A("s_load_dword s7, s[46:47], 0")
        A("s_lshl_b32 s45, s38, 17\ns_add_u32 s48, s16, s45\ns_addc_u32 s49, s17, 0")
        A("s_load_dword s7, s[48:49], 0")
        A("s_cmp_eq_u32 s40, 0\ns_cbranch_scc1 L_c3_nt")
        A("s_load_dword s7, s[20:21], 0\ns_load_dword s7, s[20:21], 0xf0000\ns_load_dword s7, s[24:25], 0\ns_load_dword s7, s[24:25], 0xf0000")
        A("s_add_u32 s46, s20, 0x1b0000\ns_addc_u32 s47, s21, 0\ns_load_dword s7, s[46:47], 0")
        A("s_add_u32 s48, s24, 0x1b0000\ns_addc_u32 s49, s25, 0\ns_load_dword s7, s[48:49], 0")
        A("L_c3_nt:")
    if "nopf" not in exp:
        A("s_cmp_ge_u32 s35, 2\ns_cbranch_scc1 L_c3_nopf")
        A("s_getpc_b64 s[44:45]")
        A("L_pc_here:")
        A("s_sub_u32 s44, s44, L_pc_here-%s\ns_subb_u32 s45, s45, 0" % K)
        A("v_lshlrev_b32 v6, 4, v0")
        for i in range(13):
            A("global_load_dwordx4 v[32:35], v6, s[44:45]")
            A("v_add_u32 v6, 1024, v6")
        A("L_c3_nopf:")
    A("s_cmp_eq_u32 s40, 0\ns_cbranch_scc1 L_c3a")
    if DRY:
        A("s_mov_b32 s44, 0\ns_mov_b32 s47, 0\ns_mov_b64 s[4:5], 0\ns_mov_b64 exec, 0\ns_branch L_s_D")
        A("L_dry_ret3:")
        A("s_mov_b64 s[4:5], -1\ns_mov_b64 exec, -1")
    A("s_lshl_b32 s44, s41, 6")
    A("v_and_b32 v6, 31, v0\nv_lshlrev_b32 v7, 1, v6\nv_add_u32 v7, s44, v7")
    A("global_load_ushort v8, v7, s[22:23]")
    A("v_lshlrev_b32 v6, 2, v6\nv_add_u32 v6, %d, v6" % L_B1)
    A("s_waitcnt vmcnt(0)")
    A("v_lshlrev_b32 v8, 16, v8")
    A("ds_write_b32 v6, v8")
    A("L_c3a:")
    tags()
    lds_spin(100, 16, 1, 20, 4)
    A("v_lshlrev_b32 v8, 4, v0\nv_add_u32 v8, %d, v8" % W_FLAG)
    p = poll_begin()
    A("global_load_dwordx4 v[16:19], v8, s[32:33]%s" % SC)
    A("global_load_dwordx4 v[20:23], v8, s[32:33] offset:1024%s" % SC)
    A("s_waitcnt vmcnt(0)")
    for a in (16, 18, 20, 22):
        A("v_xor_b32 v%d, s42, v%d\nv_xor_b32 v%d, s43, v%d" % (a, a, a + 1, a + 1))
    A("v_or3_b32 v24, v16, v18, v20\nv_or_b32 v24, v24, v22")
    A("v_or3_b32 v25, v17, v19, v21\nv_or_b32 v25, v25, v23\nv_lshrrev_b32 v25, 3, v25")
    A("v_or_b32 v24, v24, v25")
    A("v_cmp_ne_u32 vcc, 0, v24")
    poll_end(p, 8)
    A("s_getreg_b32 s44, hwreg(HW_REG_XCC_ID)\ns_and_b32 s44, s44, 7")
    A("s_cmp_lt_u32 s34, 4\ns_cbranch_scc1 L_c3lo")
    A("v_mov_b32 v17, v21\nv_mov_b32 v19, v23")
    A("L_c3lo:")
    A("v_xor_b32 v17, s44, v17\nv_xor_b32 v19, s44, v19\nv_or_b32 v17, v17, v19")
    A("v_xor_b32 v24, s34, v2\nv_and_b32 v24, 3, v24")
    A("v_cmp_eq_u32 vcc, 0, v24\ns_nop 1\nv_cndmask_b32 v17, 0, v17, vcc")
    A("v_cmp_ne_u32 vcc, 0, v17")
    A("s_cmp_eq_u64 vcc, 0\ns_cbranch_scc0 L_c3nf")
    if "nofast" not in exp: lds_set(100, 101, 32)
    A("L_c3nf:")
    lds_set(100, 101, 40)
    stamp(3)
    A("s_branch L_c_join")
    A("L_c_pre:")
    A("L_c_join:")
    A("v_and_b32 v9, 7, v0\nv_lshlrev_b32 v9, 3, v9")
    A("s_lshl_b32 s44, s36, 10\ns_lshl_b32 s45, s6, 6\ns_add_u32 s44, s44, s45")
    A("v_add_u32 v126, s44, v9")
    A("v_add_u32 v11, s45, v9")
    A("global_load_dwordx2 v[120:121], v126, s[8:9]")
    A("global_load_dwordx2 v[122:123], v11, s[26:27]")
    A("global_load_dwordx2 v[124:125], v126, s[28:29]")
    A("s_lshl_b32 s44, s38, 14\ns_lshl_b32 s45, s3, 12\ns_add_u32 s44, s44, s45\ns_add_u32 s44, s44, %d" % W_OP)
    A("v_lshlrev_b32 v6, 4, v0\nv_add_u32 v6, s44, v6")
    A("s_lshl_b32 s44, s38, 8\ns_lshl_b32 s45, s3, 6\ns_add_u32 s44, s44, s45\ns_add_u32 s44, s44, %d" % W_ML)
    A("v_lshrrev_b32 v7, 5, v0\nv_lshlrev_b32 v7, 5, v7\nv_add_u32 v7, s44, v7")
    A("v_and_b32 v8, 31, v0\nv_lshlrev_b32 v8, 3, v8\ns_lshl_b32 s45, s3, 8\ns_add_u32 s45, s45, %d\nv_add_u32 v8, s45, v8" % L_OB)
    A("v_lshrrev_b32 v9, 2, v3\nv_lshlrev_b32 v9, 8, v9\nv_lshl_add_u32 v9, v2, 4, v9\nv_add_u32 v9, %d, v9" % L_OB)
    A("v_lshlrev_b32 v10, 16, v2\nv_lshl_add_u32 v10, v3, 2, v10")
    A("s_lshl_b32 s45, s38, 7\ns_lshr_b32 s46, s3, 1\ns_lshl_b32 s46, s46, 12\ns_add_u32 s45, s45, s46\ns_and_b32 s46, s3, 1\ns_lshl_b32 s46, s46, 6\ns_add_u32 s45, s45, s46\ns_add_u32 s45, s45, %d" % W_HP)
    A("s_sub_u32 s55, s37, 2\ns_and_b32 s55, s55, 7")
    A("s_lshl_b32 s44, s55, 13\ns_add_u32 s44, s44, s45\nv_add_u32 v99, s44, v10")
    A("s_lshl_b32 s44, s37, 13\ns_add_u32 s44, s44, s45\nv_add_u32 v10, s44, v10")
    A("v_lshrrev_b32 v11, 2, v3\nv_lshlrev_b32 v11, 14, v11\nv_lshl_add_u32 v11, v2, 7, v11\nv_and_b32 v13, 3, v3\nv_lshl_add_u32 v11, v13, 4, v11")
    A("s_lshl_b32 s44, s34, 16\ns_lshl_b32 s45, s36, 12\ns_add_u32 s44, s44, s45\ns_lshl_b32 s45, s37, 9\ns_add_u32 s44, s44, s45")
    A("s_lshl_b32 s45, s3, 6\ns_add_u32 s44, s44, s45\ns_add_u32 s44, s44, %d" % W_OP)
    A("v_add_u32 v11, s44, v11")
    A("v_lshlrev_b32 v13, 4, v0\ns_lshl_b32 s45, s3, 10\ns_add_u32 s45, s45, %d\nv_add_u32 v13, s45, v13" % L_OP)
    A("v_lshrrev_b32 v14, 2, v3\nv_lshl_add_u32 v14, v2, 3, v14\nv_and_b32 v15, 3, v3\nv_lshlrev_b32 v12, 3, v15")
    A("v_lshl_add_u32 v12, v14, 7, v12\ns_lshl_b32 s44, s3, 5\nv_add_u32 v98, s44, v12\nv_add_u32 v12, %d, v98" % L_ST)
    A("s_mov_b32 s54, 0x3fb8aa3b")
    A("v_bfe_u32 v16, v0, 3, 2\nv_lshlrev_b32 v16, 3, v16\nv_lshrrev_b32 v17, 5, v0\nv_add_u32 v16, v16, v17\nv_lshlrev_b32 v16, 10, v16")
    A("v_and_b32 v17, 7, v0\nv_lshl_add_u32 v97, v17, 4, v16")
    if DRY:
        A("s_cmp_lg_u32 s3, 0\ns_cbranch_scc1 L_dry_skip0")
        A("s_mov_b64 s[4:5], 0\ns_mov_b64 exec, 0\ns_branch L_c_nodw")
        A("L_dry_ret0:")
        A("s_mov_b64 s[4:5], -1\ns_mov_b64 exec, -1")
        A("L_dry_skip0:")
    A("s_sub_u32 s55, s37, 2\ns_and_b32 s55, s55, 7")
    A("s_lshl_b32 s44, s38, 17\ns_lshl_b32 s45, s3, 15\ns_add_u32 s44, s44, s45")
    A("s_lshl_b32 s45, s37, 7\ns_add_u32 s45, s45, s44\ns_add_u32 s46, s16, s45\ns_addc_u32 s47, s17, 0")
    A("s_lshl_b32 s45, s55, 7\ns_add_u32 s45, s45, s44\ns_add_u32 s50, s16, s45\ns_addc_u32 s51, s17, 0")
    A("s_lshl_b32 s48, s3, 12\ns_add_u32 s48, s48, %d" % L_ST)
    stamp(4)
    A("s_cmp_lg_u32 s40, 0\ns_cbranch_scc1 L_c_nowo")
    lds_spin2(100, 8, 8, 12, 1, 20, 21, 2)
    for i in range(4):
        A("s_mov_b32 m0, s48\ns_add_u32 s48, s48, 1024")
        A("global_load_lds_dwordx4 v97, s[46:47]")
        A("s_add_u32 s46, s46, 2048\ns_addc_u32 s47, s47, 0")
    A("L_c_nowo:")
    A("s_cmp_eq_u32 s63, 0\ns_cbranch_scc1 L_c_nowo2")
    lds_spin(100, 36, 8, 20, 2)
    A("s_lshr_b32 s48, s3, 1\ns_lshl_b32 s48, s48, 14\ns_and_b32 s45, s3, 1\ns_lshl_b32 s45, s45, 12\ns_add_u32 s48, s48, s45")
    for i in range(4):
        A("s_mov_b32 m0, s48\ns_add_u32 s48, s48, 1024")
        A("global_load_lds_dwordx4 v97, s[50:51]")
        A("s_add_u32 s50, s50, 2048\ns_addc_u32 s51, s51, 0")
    A("L_c_nowo2:")
    A("s_cmp_eq_u32 s40, 0\ns_cbranch_scc1 L_c_nodw")
    A("s_cmp_lg_u32 s3, 3\ns_cbranch_scc1 L_c_nodw")
    if dw_late == 8: lds_spin(100, 24, 8, 20, 2)
    elif dw_late:
        p = poll_begin("s61")
        A("ds_read_b32 v20, v100 offset:24")
        A("s_waitcnt lgkmcnt(0)")
        A("v_cmp_gt_u32 vcc, %d, v20" % dw_late)
        poll_end(p, 2, "s61")
    lds_spin2(100, 36, 8, 8, 8, 20, 21, 2)
    A("L_c_dw:")
    A("s_mul_i32 s44, s3, %d\ns_lshl_b32 s45, s41, 6\ns_add_u32 s44, s44, s45\ns_add_u32 s46, s20, s44\ns_addc_u32 s47, s21, 0" % (128 * 3584))
    A("s_lshl_b32 s44, s41, 15\ns_lshl_b32 s45, s3, 8\ns_add_u32 s44, s44, s45\ns_add_u32 s50, s24, s44\ns_addc_u32 s51, s25, 0")
    A("v_lshrrev_b32 v4, 2, v0\nv_mul_u32_u24 v4, 3584, v4\nv_and_b32 v5, 3, v0\nv_lshl_add_u32 v4, v5, 4, v4")
    A("v_lshrrev_b32 v5, 3, v0\nv_lshlrev_b32 v5, 10, v5\nv_and_b32 v6, 7, v0\nv_lshl_add_u32 v5, v6, 4, v5")
    A("s_lshl_b32 s48, s3, 15")
    for ww in range(2):
        for n in range(4):
            A("s_mov_b32 m0, s48\ns_add_u32 s48, s48, 1024")
            A("global_load_lds_dwordx4 v4, s[46:47]")
            A("s_add_u32 s46, s46, %d\ns_addc_u32 s47, s47, 0" % (16 * 3584))
        for n in range(4):
            A("s_mov_b32 m0, s48\ns_add_u32 s48, s48, 1024")
            A("global_load_lds_dwordx4 v5, s[50:51]")
            A("s_add_u32 s50, s50, 8192\ns_addc_u32 s51, s51, 0")
        if ww == 0:
            A("s_add_u32 s48, s48, 8192")
            A("s_sub_u32 s50, s50, %d\ns_subb_u32 s51, s51, 0" % (4 * 8192 - 128))
    A("s_waitcnt vmcnt(0)")
    lds_inc(100, 101, 28)
    stamp(6)
    A("s_branch L_chain_end")
    A("L_c_nodw:")
    A("; DRY_BEGIN")
    A("v_and_b32 v14, 3, v0\nv_lshlrev_b32 v15, 5, v14\nv_add_u32 v15, %d, v15\nv_add_u32 v14, %d, v15" % (L_MB, L_LB - L_MB))
    A("v_add_u32 v16, 0x10000, v13")
    lds_spin(100, 40, 1, 26, 2)
    A("ds_read_b32 v26, v100 offset:32")
    A("s_waitcnt lgkmcnt(0)")
    A("v_readfirstlane_b32 s55, v26")
    stamp(5)
    A("s_cmp_eq_u32 s3, 3\ns_cbranch_scc1 L_c_b3")
    lds_spin(100, 24, 8, 26, 0)
    A("s_cmp_eq_u32 s3, 2\ns_cbranch_scc1 L_c_pml")
    for w_ in range(8):
        A("ds_read_b128 v[%d:%d], v%d offset:%d" % (56 + 4 * w_, 59 + 4 * w_, 13 if w_ < 4 else 16, (w_ & 3) * 16384))
    A("s_waitcnt lgkmcnt(4)")
    A("v_pk_add_f32 v[56:57], v[56:57], v[60:61]\nv_pk_add_f32 v[58:59], v[58:59], v[62:63]")
    A("v_pk_add_f32 v[64:65], v[64:65], v[68:69]\nv_pk_add_f32 v[66:67], v[66:67], v[70:71]")
    A("v_pk_add_f32 v[56:57], v[56:57], v[64:65]\nv_pk_add_f32 v[58:59], v[58:59], v[66:67]")
    A("s_waitcnt lgkmcnt(0)")
    A("v_pk_add_f32 v[72:73], v[72:73], v[76:77]\nv_pk_add_f32 v[74:75], v[74:75], v[78:79]")
    A("v_pk_add_f32 v[80:81], v[80:81], v[84:85]\nv_pk_add_f32 v[82:83], v[82:83], v[86:87]")
    A("v_pk_add_f32 v[56:57], v[56:57], v[72:73]\nv_pk_add_f32 v[58:59], v[58:59], v[74:75]")
    A("v_pk_add_f32 v[56:57], v[56:57], v[80:81]\nv_pk_add_f32 v[58:59], v[58:59], v[82:83]")
    A("s_cmp_eq_u32 s55, 0\ns_cbranch_scc1 L_c_oslow")
    A("global_store_dwordx4 v11, v[56:59], s[32:33]")
    A("s_branch L_c_b")
    A("L_c_oslow:")
    A("global_store_dwordx4 v11, v[56:59], s[32:33]%s" % SC)
    A("s_branch L_c_b")
    A("L_c_pml:")
    A("ds_read_b128 v[16:19], v14\nds_read_b128 v[20:23], v14 offset:16")
    A("ds_read_b128 v[28:31], v15\nds_read_b128 v[32:35], v15 offset:16")
    A("s_waitcnt lgkmcnt(0)")
    A("v_max3_f32 v24, v28, v29, v30\nv_max3_f32 v24, v24, v31, v32\nv_max3_f32 v24, v24, v33, v34\nv_max_f32 v24, v24, v35")
    A("v_add_f32 v16, v16, v17\nv_add_f32 v18, v18, v19\nv_add_f32 v20, v20, v21\nv_add_f32 v22, v22, v23")
    A("v_add_f32 v16, v16, v18\nv_add_f32 v20, v20, v22\nv_add_f32 v25, v16, v20")
    A("s_mov_b64 exec, 15")
    A("s_cmp_eq_u32 s55, 0\ns_cbranch_scc1 L_c_mslow")
    A("global_store_dwordx2 v102, v[24:25], s[32:33]")
    A("s_branch L_c_mdone")
    A("L_c_mslow:")
    A("global_store_dwordx2 v102, v[24:25], s[32:33]%s" % SC)
    A("L_c_mdone:")
    A("s_mov_b64 exec, -1")
    A("L_c_b:")
    A("s_cmp_lg_u32 s40, 0\ns_cbranch_scc1 L_c_dexit")
    A("s_waitcnt vmcnt(1)")
    A("s_branch L_c_b2")
    A("L_c_dexit:")
    A("s_branch L_c_dw")
    A("L_c_b3:")
    A("s_waitcnt vmcnt(0)")
    A("L_c_b2:")
    lds_inc(100, 101, 20)
    stamp(6)
    lds_spin(100, 20, 4, 20, 0)
    for ks in range(4):
        A("ds_read_b64_tr_b16 v[%d:%d], v12 offset:%d" % (104 + 4 * ks, 105 + 4 * ks, ks * 4096))
        A("ds_read_b64_tr_b16 v[%d:%d], v12 offset:%d" % (106 + 4 * ks, 107 + 4 * ks, ks * 4096 + 512))
    A("s_cmp_eq_u32 s63, 0\ns_cbranch_scc1 L_c_nof2")
    A("s_waitcnt lgkmcnt(0)")
    for ks in range(4):
        o_ = (ks >> 1) * 16384 + (ks & 1) * 4096
        A("ds_read_b64_tr_b16 v[%d:%d], v98 offset:%d" % (72 + 4 * ks, 73 + 4 * ks, o_))
        A("ds_read_b64_tr_b16 v[%d:%d], v98 offset:%d" % (74 + 4 * ks, 75 + 4 * ks, o_ + 512))
    A("L_c_nof2:")
    hop([("global_load_dwordx4 v[%d:%d], v6, s[32:33] offset:%d%s" % (32 + 4 * i, 35 + 4 * i, i * 1024, SC), [35 + 4 * i]) for i in range(4)] +
        [("global_load_dwordx4 v[48:51], v7, s[32:33]%s" % SC, [49, 51]), ("global_load_dwordx4 v[52:55], v7, s[32:33] offset:16%s" % SC, [53, 55])], 20, pipe=PIPE)
    stamp(7)
    A("v_max3_f32 v20, v48, v50, v52\nv_max_f32 v20, v20, v54")
    swap_red([20], [21], 32, "max")
    A("v_mul_f32 v20, s54, v20")
    for i in range(4): A("v_fma_f32 v%d, v%d, s54, -v20" % (56 + i, 48 + 2 * i))
    for i in range(4): A("v_exp_f32 v%d, v%d" % (56 + i, 56 + i))
    A("s_nop 0")
    for e in range(4):
        A("v_mul_f32 v%d, v56, v%d" % (20 + e, 32 + e))
    A("v_mul_f32 v24, v56, v49")
    for i in range(1, 4):
        for e in range(4):
            A("v_fma_f32 v%d, v%d, v%d, v%d" % (20 + e, 56 + i, 32 + 4 * i + e, 20 + e))
        A("v_fma_f32 v24, v%d, v%d, v24" % (56 + i, 49 + 2 * i))
    swap_red([20, 21, 22, 23, 24], [25, 26, 27, 28, 29], 32)
    A("v_rcp_f32 v24, v24\ns_nop 0")
    for e in range(4): A("v_mul_f32 v%d, v%d, v24" % (20 + e, 20 + e))
    A("v_cvt_pk_bf16_f32 v20, v20, v21\nv_cvt_pk_bf16_f32 v21, v22, v23")
    A("s_mov_b32 exec_hi, 0")
    A("ds_write_b64 v8, v[20:21]")
    A("s_mov_b64 exec, -1")
    A("s_waitcnt lgkmcnt(0)")
    A("s_barrier")
    for ks in range(4):
        A("ds_read_b128 v[%d:%d], v9 offset:%d" % (128 + 4 * ks, 131 + 4 * ks, ks * 64))
    for ks in range(4):
        A("s_waitcnt lgkmcnt(%d)" % (3 - ks))
        c = "0" if ks == 0 else "v[20:23]"
        A("v_mfma_f32_16x16x32_bf16 v[20:23], v[%d:%d], v[%d:%d], %s" % (128 + 4 * ks, 131 + 4 * ks, 104 + 4 * ks, 107 + 4 * ks, c))
    A("s_cmp_eq_u32 s63, 0\ns_cbranch_scc1 L_c_one")
    for ks in range(4):
        c = "0" if ks == 0 else "v[24:27]"
        A("v_mfma_f32_16x16x32_bf16 v[24:27], v[%d:%d], v[%d:%d], %s" % (128 + 4 * ks, 131 + 4 * ks, 72 + 4 * ks, 75 + 4 * ks, c))
    A("s_nop 1")
    A("global_store_dword v10, v20, s[32:33]%s" % SC)
    A("s_nop 4")
    A("global_store_dword v99, v24, s[32:33]%s" % SC)
    A("s_branch L_c_bdone")
    A("L_c_one:")
    A("s_nop 5")
    A("global_store_dword v10, v20, s[32:33]%s" % SC)
    A("L_c_bdone:")
    A("s_mov_b64 exec, -1")
    stamp(8)
    A("s_cmp_eq_u32 s39, 0\ns_cbranch_scc1 L_chain_end")
    A("s_lshl_b32 s46, s36, 4\ns_add_u32 s46, s46, s6")
    A("v_lshlrev_b32 v6, 4, v0\nv_and_b32 v7, 7, v0")
    A("s_lshl_b32 s44, s46, 12\ns_lshl_b32 s45, s3, 10\ns_add_u32 s44, s44, s45\ns_add_u32 s44, s44, %d\nv_add_u32 v9, s44, v6" % W_HP)
    A("v_lshlrev_b32 v10, 4, v7\nv_add_u32 v10, %d, v10" % L_CP)
    A("s_lshl_b32 s45, s3, 7\nv_add_u32 v11, s45, v10")
    A("s_lshl_b32 s44, s36, 11\ns_lshl_b32 s45, s6, 7\ns_add_u32 s44, s44, s45\ns_add_u32 s44, s44, %d" % W_H)
    A("v_lshrrev_b32 v8, 3, v0\nv_lshlrev_b32 v8, 13, v8\nv_lshl_add_u32 v8, v7, 4, v8\nv_add_u32 v8, s44, v8")
    A("v_lshlrev_b32 v110, 16, v120\nv_and_b32 v111, 0xffff0000, v120\nv_lshlrev_b32 v112, 16, v121\nv_and_b32 v113, 0xffff0000, v121")
    A("v_lshlrev_b32 v114, 16, v122\nv_and_b32 v115, 0xffff0000, v122\nv_lshlrev_b32 v116, 16, v123\nv_and_b32 v117, 0xffff0000, v123")
    poll1("global_load_dwordx4 v[16:19], v9, s[32:33]%s" % SC, 19)
    stamp(2)
    red8rows([16, 17, 18, 19], [24, 25, 26, 27])
    A("s_mov_b64 exec, 0xff")
    A("ds_write_b128 v11, v[16:19]")
    A("s_mov_b64 exec, -1")
    A("s_waitcnt lgkmcnt(0)")
    A("s_barrier")
    A("s_cmp_eq_u32 s3, 0\ns_cbranch_scc1 L_c_c0")
    A("s_barrier")
    A("s_branch L_chain_end")
    A("L_c_c0:")
    for i in range(4): A("ds_read_b128 v[%d:%d], v10 offset:%d" % (32 + 4 * i, 35 + 4 * i, i * 128))
    A("s_waitcnt lgkmcnt(0)")
    A("v_pk_add_f32 v[16:17], v[32:33], v[36:37]\nv_pk_add_f32 v[18:19], v[34:35], v[38:39]")
    A("v_pk_add_f32 v[20:21], v[40:41], v[44:45]\nv_pk_add_f32 v[22:23], v[42:43], v[46:47]")
    A("v_pk_add_f32 v[16:17], v[16:17], v[20:21]\nv_pk_add_f32 v[18:19], v[18:19], v[22:23]")
    A("v_cvt_pk_bf16_f32 v24, v16, v17\nv_cvt_pk_bf16_f32 v25, v18, v19")
    A("v_lshlrev_b32 v16, 16, v24\nv_and_b32 v17, 0xffff0000, v24\nv_lshlrev_b32 v18, 16, v25\nv_and_b32 v19, 0xffff0000, v25")
    for e in range(4): A("v_add_f32 v%d, v%d, v%d" % (16 + e, 16 + e, 110 + e))
    A("v_cvt_pk_bf16_f32 v24, v16, v17\nv_cvt_pk_bf16_f32 v25, v18, v19")
    A("v_lshlrev_b32 v104, 16, v24\nv_and_b32 v105, 0xffff0000, v24\nv_lshlrev_b32 v106, 16, v25\nv_and_b32 v107, 0xffff0000, v25")
    A("global_store_dwordx4 v8, v[104:107], s[32:33]%s" % SC)
    stamp(9)
    A("s_barrier")
    stamp(10)
    for i in range(7): A("ds_read_b128 v[%d:%d], v10 offset:%d" % (32 + 4 * i, 35 + 4 * i, 1024 + i * 128))
    A("s_waitcnt lgkmcnt(3)")
    A("v_pk_add_f32 v[16:17], v[32:33], v[36:37]\nv_pk_add_f32 v[18:19], v[34:35], v[38:39]")
    A("v_pk_add_f32 v[20:21], v[40:41], v[44:45]\nv_pk_add_f32 v[22:23], v[42:43], v[46:47]")
    A("s_waitcnt lgkmcnt(0)")
    A("v_pk_add_f32 v[24:25], v[48:49], v[52:53]\nv_pk_add_f32 v[26:27], v[50:51], v[54:55]")
    A("v_pk_add_f32 v[16:17], v[16:17], v[56:57]\nv_pk_add_f32 v[18:19], v[18:19], v[58:59]")
    A("v_pk_add_f32 v[20:21], v[20:21], v[24:25]\nv_pk_add_f32 v[22:23], v[22:23], v[26:27]")
    A("v_pk_add_f32 v[16:17], v[16:17], v[20:21]\nv_pk_add_f32 v[18:19], v[18:19], v[22:23]")
    A("v_cvt_pk_bf16_f32 v24, v16, v17\nv_cvt_pk_bf16_f32 v25, v18, v19")
    A("v_lshlrev_b32 v16, 16, v24\nv_and_b32 v17, 0xffff0000, v24\nv_lshlrev_b32 v18, 16, v25\nv_and_b32 v19, 0xffff0000, v25")
    for e in range(4): A("v_add_f32 v%d, v%d, v%d" % (16 + e, 16 + e, 114 + e))
    A("v_cvt_pk_bf16_f32 v24, v16, v17\nv_cvt_pk_bf16_f32 v25, v18, v19")
    A("v_lshlrev_b32 v16, 16, v24\nv_and_b32 v17, 0xffff0000, v24\nv_lshlrev_b32 v18, 16, v25\nv_and_b32 v19, 0xffff0000, v25")
    for e in range(4): A("v_add_f32 v%d, v%d, v%d" % (16 + e, 16 + e, 104 + e))
    A("v_cvt_pk_bf16_f32 v24, v16, v17\nv_cvt_pk_bf16_f32 v25, v18, v19")
    A("s_mov_b64 exec, 0xff")
    A("global_store_dwordx2 v126, v[24:25], s[28:29]")
    A("s_or_b32 s44, s36, s6\ns_cmp_lg_u32 s44, 0\ns_cbranch_scc1 L_c_noe")
    A("s_mov_b64 exec, 1")
    A("v_mov_b32 v8, 0\nv_mov_b32 v9, s42")
    A("global_store_dword v8, v9, s[32:33]%s" % SC)
    A("L_c_noe:")
    A("s_mov_b64 exec, -1")
    A("; DRY_END")
    A("L_chain_end:")
    if DRY: A("s_cbranch_execz L_dry_ret0")
    stamp(11)
    stamp_flush()
    A("L_exit:")
    A("s_endpgm")
    A("L_code_end:")
    if "nopf" not in exp: A(".fill 256, 4, 0xbf800000")

    hdr = open("cdna_kernels/%s.s.ref" % NAME).read().split("; Override launch")[0]
    out = hdr
    out += "; @launch grid=(256,1,1) block=(768,1,1) lds=%d\n" % LDS_TOTAL
    out += '.amdgcn_target "amdgcn-amd-amdhsa--gfx950"\n.text\n.globl %s\n.p2align 8\n.type %s,@function\n' % (K, K)
    A.l = dryify(A.l) if DRY else [x for x in A.l if not x.strip().startswith("; DRY_")]
    out += A.text()
    out += '.section .rodata,"a"\n.p2align 6\n.amdhsa_kernel %s\n' % K
    out += "  .amdhsa_next_free_vgpr 168\n  .amdhsa_next_free_sgpr 102\n  .amdhsa_accum_offset 168\n"
    out += "  .amdhsa_group_segment_fixed_size 0\n  .amdhsa_kernarg_size 104\n  .amdhsa_user_sgpr_count 2\n  .amdhsa_user_sgpr_kernarg_segment_ptr 1\n  .amdhsa_system_sgpr_workgroup_id_x 1\n.end_amdhsa_kernel\n"
    return out

if __name__ == "__main__":
    import argparse
    ap = argparse.ArgumentParser()
    ap.add_argument("-o", default="cdna_kernels/%s.s" % NAME)
    ap.add_argument("--stamps", action="store_true")
    ap.add_argument("--W", type=int, default=2)
    ap.add_argument("--no-nt", action="store_true")
    ap.add_argument("--exp", default="")
    ap.add_argument("--qk_at", type=int, default=8)
    ap.add_argument("--vpre", type=int, default=0)
    ap.add_argument("--ends", action="store_true")
    ap.add_argument("--sE", type=int, default=0)
    ap.add_argument("--nv1", type=int, default=10)
    ap.add_argument("--dw", type=int, default=8)
    ap.add_argument("--sD", type=int, default=0)
    a = ap.parse_args()
    open(a.o, "w").write(gen(W=a.W, nt=not a.no_nt, stamps=a.stamps, exp=a.exp, qk_at=a.qk_at, vpre=a.vpre, ends=a.ends, sE=a.sE, nv1=a.nv1, dw_late=a.dw, sD=a.sD))
    print("wrote", a.o)
```

```python
import sys

NAME = "sequential_preLN__gqa_block_cached__mixer_channel_mlp__decode"

L_OP   = 8192
L_ST   = 131072
L_M    = 147456
L_ZP   = L_M
L_LB   = L_M + 4096
L_FL   = L_M + 4224
L_XH   = L_M + 4288
L_Q    = L_M + 8384
L_MB   = L_M + 9408
L_OB   = L_M + 9536
L_H1   = L_M + 10560
L_B1   = L_M + 10816
L_Z    = L_M + 10944
LDS_TOTAL = L_M + 11008

W_E     = 0x0
W_FLAG  = 0x1000
W_ML    = 0x2000
W_H     = 0x1C0000
W_QP    = 0x10000
W_OP    = 0x90000
W_HP    = 0x110000
W_OUT   = 0x150000
W_DBG   = 0x200000

NJ = 56
STREAM_STAMPS = ["start", "Kissued", "V1issued", "q ready", "max done", "V2issued", "PVdone", "bar3", "Dprep", "h got", "Dstore", "end"]
CHAIN_STAMPS = ["start", "s1", "s2", "s3", "prespin", "prebar3", "Opub", "gathered", "hpstore", "hstore", "outgath", "end"]
POLL_LIMIT = 100000

DESCRIPTION = """;
; Hand-offs between workgroups go through d_ws: write-through (sc1) stores / sc1 loads; payload slots are pre-set to a sentinel by
;
"""

class Asm:
    def __init__(self): self.l = []
    def __call__(self, s):
        for x in s.split("\n"):
            x = x.strip()
            if x: self.l.append(("" if x.endswith(":") else "  ") + x)
    def text(self): return "\n".join(self.l) + "\n"

import re
def dryify(lines):
    out = []; on = False; n = 0; i = 0
    while i < len(lines):
        l = lines[i]; t = l.strip()
        if t == "; DRY_BEGIN": on = True; i += 1; continue
        if t == "; DRY_END": on = False; i += 1; continue
        if not on: out.append(l); i += 1; continue
        m = re.fullmatch(r"s_mov_b64 exec, (-1|\d+|0x[0-9a-f]+)", t)
        if m:
            out.append("  s_mov_b64 exec, s[4:5]" if m.group(1) == "-1" else "  s_and_b64 exec, s[4:5], %s" % m.group(1)); i += 1; continue
        m = re.fullmatch(r"s_mov_b32 exec_(lo|hi), (0x[0-9a-f]+|\d+)", t)
        if m:
            out.append(l if int(m.group(2), 0) == 0 else "  s_and_b32 exec_%s, s%d, %s" % (m.group(1), 4 if m.group(1) == "lo" else 5, m.group(2))); i += 1; continue
        m = re.fullmatch(r"s_mov_b64 (s\[\d+:\d+\]), -1", t)
        if m: out.append("  s_mov_b64 %s, s[4:5]" % m.group(1)); i += 1; continue
        if t == "s_barrier":
            n += 1; out += ["  s_cbranch_execz L_dry_%d" % n, l, "L_dry_%d:" % n]; i += 1; continue
        if t.startswith("global_"):
            prev = out[-1].strip() if out else ""
            if prev.startswith("s_cbranch_execz"):
                out.append(l); i += 1; continue
            n += 1; out.append("  s_cbranch_execz L_dry_%d" % n)
            while i < len(lines) and (lines[i].strip().startswith("global_") or lines[i].strip().startswith("s_nop") or lines[i].strip().startswith("v_add_u32")) and not lines[i].strip().endswith(":"):
                out.append(lines[i]); i += 1
            out.append("L_dry_%d:" % n); continue
        out.append(l); i += 1
    return out

def gen(W=2, nt=True, stamps=False, sleep_q=8, scope=" sc1", exp="", qk_at=6, vpre=0, ends=False, sE=0, sD=0, nv1=12, dw_late=8):
    A = Asm()
    WNT = "" if "nownt" in exp.split(",") else " nt"
    W1NT = " nt" if "w1nt" in exp.split(",") else (" sc1" if "w1sc1" in exp.split(",") else "")
    PIPE = "pipe" in exp
    DRY = "dry" in exp.split(",")
    NT = " nt" if nt else ""
    for e_ in exp.split(","):
        if e_.startswith("kv="): NT = " " + e_[3:].replace("+", " ")
    SC = scope
    uid = [0]
    def lab(p):
        uid[0] += 1; return "L_%s_%d" % (p, uid[0])
    def stamp(i):
        if stamps and (not ends or i in (0, 11)): A("s_memrealtime s[%d:%d]" % (64 + 2 * i, 65 + 2 * i))
    def stamp_flush():
        if stamps:
            A("s_waitcnt lgkmcnt(0)")
            A("s_lshl_b32 s44, s2, 4\ns_add_u32 s44, s44, s3\ns_lshl_b32 s44, s44, 7\ns_add_u32 s44, s44, %d" % W_DBG)
            A("s_add_u32 s46, s32, s44\ns_addc_u32 s47, s33, 0")
            A("s_mov_b64 exec, 1\nv_mov_b32 v2, 0")
            for i in range(0, 12, 2):
                A("v_mov_b32 v4, s%d\nv_mov_b32 v5, s%d\nv_mov_b32 v6, s%d\nv_mov_b32 v7, s%d" % (64 + 2 * i, 65 + 2 * i, 66 + 2 * i, 67 + 2 * i))
                A("global_store_dwordx4 v2, v[4:7], s[46:47] offset:%d" % (i * 8))
                A("s_nop 1")
            A("s_mov_b64 exec, -1")
    def bf16r(dst, src):
        A("v_cvt_pk_bf16_f32 v%d, v%d, v%d" % (dst, src, src))
        A("v_and_b32 v%d, 0xffff0000, v%d" % (dst, dst))
    def dpp_red(regs, rors, op="add"):
        for k in rors:
            n = max(0, 2 - (len(regs) - 1))
            if n: A("s_nop %d" % (n - 1))
            for r in regs:
                A("v_%s_f32_dpp v%d, v%d, v%d row_ror:%d row_mask:0xf bank_mask:0xf" % (op, r, r, r, k))
    def red16(regs, op="add"): dpp_red(regs, (8, 4, 2, 1), op)
    def swap_red(regs, tmps, which, op="add"):
        ins = "v_permlane16_swap_b32" if which == 16 else "v_permlane32_swap_b32"
        for r, t in zip(regs, tmps): A("v_mov_b32 v%d, v%d" % (t, r))
        n = max(0, 2 - (len(regs) - 1))
        if n: A("s_nop %d" % (n - 1))
        for r, t in zip(regs, tmps): A("%s v%d, v%d" % (ins, r, t))
        if len(regs) < 2: A("s_nop 0")
        for r, t in zip(regs, tmps): A("v_%s_f32 v%d, v%d, v%d" % (op, r, r, t))
    def poll_begin(cnt="s60"):
        l = lab("poll"); A("s_mov_b32 %s, %d" % (cnt, POLL_LIMIT)); A(l + ":"); return l
    def poll_end(l, sleep, cnt="s60"):
        d = lab("pdone")
        A("s_cbranch_vccz %s" % d)
        A("s_sub_u32 %s, %s, 1" % (cnt, cnt))
        A("s_cbranch_scc1 %s" % d)
        if sleep: A("s_sleep %d" % sleep)
        A("s_branch %s" % l)
        A(d + ":")
    def lds_spin(addr_v, off, val, tmp, sleep=1):
        p = poll_begin("s61")
        A("ds_read_b32 v%d, v%d offset:%d" % (tmp, addr_v, off))
        A("s_waitcnt lgkmcnt(0)")
        A("v_cmp_ne_u32 vcc, %d, v%d" % (val, tmp))
        poll_end(p, sleep, "s61")
    def lds_spin2(addr_v, off1, val1, off2, val2, t1, t2, sleep=1):
        p = poll_begin("s61")
        A("ds_read_b32 v%d, v%d offset:%d\nds_read_b32 v%d, v%d offset:%d" % (t1, addr_v, off1, t2, addr_v, off2))
        A("s_waitcnt lgkmcnt(0)")
        A("v_xor_b32 v%d, %d, v%d\nv_xor_b32 v%d, %d, v%d\nv_or_b32 v%d, v%d, v%d" % (t1, val1, t1, t2, val2, t2, t1, t1, t2))
        A("v_cmp_ne_u32 vcc, 0, v%d" % t1)
        poll_end(p, sleep, "s61")
    def lds_inc(addr_v, one_v, off):
        A("s_mov_b64 exec, 1")
        A("ds_add_u32 v%d, v%d offset:%d" % (addr_v, one_v, off))
        A("s_mov_b64 exec, -1")
    def lds_set(addr_v, one_v, off):
        A("s_mov_b64 exec, 1")
        A("ds_write_b32 v%d, v%d offset:%d" % (addr_v, one_v, off))
        A("s_mov_b64 exec, -1")
    def roles():
        A("s_sub_u32 s56, s37, s34\ns_sub_u32 s56, s56, 1\ns_and_b32 s56, s56, 7")
        A("s_lshl_b32 s57, s36, 3\ns_add_u32 s57, s57, s34")
        A("s_lshl_b32 s41, s57, 1\ns_add_u32 s41, s41, s56")
        A("s_cmp_lt_u32 s56, 2\ns_cselect_b32 s40, 1, 0")
        A("s_lshr_b32 s63, s56, 1\ns_cmp_eq_u32 s63, 1\ns_cselect_b32 s63, 1, 0")
        A("s_cmp_ge_u32 s56, 6\ns_cselect_b32 s39, 1, 0")
        A("s_lshl_b32 s6, s34, 1\ns_and_b32 s7, s56, 1\ns_add_u32 s6, s6, s7")
        A("s_cmp_lt_u32 s57, 28\ns_cselect_b32 s40, s40, 0\ns_cselect_b32 s63, s63, 0")
    def tags():
        A("s_waitcnt lgkmcnt(0)")
        A("s_not_b32 s43, s62\ns_add_u32 s42, s62, 1")
    def hop(loads, tmp, mbase=88, rslot=None, tslot=None, init=None, pipe=True):
        top = lab("hop"); done = lab("hopdone")
        n = len(loads)
        for i in range(n):
            if init and init[i] is not None:
                A("s_mov_b32 s%d, 0x%x\ns_mov_b32 s%d, 0x%x" % (mbase + 2 * i, init[i][0] & 0xffffffff, mbase + 2 * i + 1, init[i][1] & 0xffffffff))
            else:
                A("s_mov_b64 s[%d:%d], -1" % (mbase + 2 * i, mbase + 2 * i + 1))
        A("s_mov_b32 s60, %d" % POLL_LIMIT)
        if tslot is not None and "rounds" in exp: stamp(tslot)
        def issue():
            for i, (ins, _) in enumerate(loads):
                A("s_mov_b64 exec, s[%d:%d]" % (mbase + 2 * i, mbase + 2 * i + 1))
                if pipe:
                    A("s_cbranch_execnz .+8" if False else "s_cmp_eq_u64 s[%d:%d], 0\ns_cselect_b64 exec, 1, exec" % (mbase + 2 * i, mbase + 2 * i + 1))
                    A(ins)
                else:
                    sk = lab("sk")
                    A("s_cbranch_execz %s" % sk)
                    A(ins)
                    A(sk + ":")
        if pipe:
            issue()
            A("s_mov_b64 exec, -1")
            A("s_sleep 1")
        A(top + ":")
        issue()
        A("s_waitcnt vmcnt(%d)" % (n if pipe else 0))
        for i, (_, regs) in enumerate(loads):
            A("s_mov_b64 exec, s[%d:%d]" % (mbase + 2 * i, mbase + 2 * i + 1))
            if len(regs) == 1:
                A("v_cmp_eq_u32 s[%d:%d], -1, v%d" % (mbase + 2 * i, mbase + 2 * i + 1, regs[0]))
            else:
                A("v_max_u32 v%d, v%d, v%d" % (tmp, regs[0], regs[1]))
                A("v_cmp_eq_u32 s[%d:%d], -1, v%d" % (mbase + 2 * i, mbase + 2 * i + 1, tmp))
        if n == 1: A("s_or_b64 vcc, s[%d:%d], s[%d:%d]" % (mbase, mbase + 1, mbase, mbase + 1))
        else: A("s_or_b64 vcc, s[%d:%d], s[%d:%d]" % (mbase, mbase + 1, mbase + 2, mbase + 3))
        for i in range(2, n): A("s_or_b64 vcc, vcc, s[%d:%d]" % (mbase + 2 * i, mbase + 2 * i + 1))
        A("s_cbranch_scc0 %s" % done)
        A("s_sub_u32 s60, s60, 1")
        A("s_cbranch_scc0 %s" % top)
        A(done + ":")
        A("s_mov_b64 exec, -1")
        if rslot is not None and stamps and "rounds" in exp:
            A("s_waitcnt lgkmcnt(0)")
            A("s_sub_u32 s%d, %d, s60\ns_mov_b32 s%d, 0" % (64 + 2 * rslot, POLL_LIMIT, 65 + 2 * rslot))

    def poll1(ins, reg):
        top = lab("p1"); done = lab("p1d")
        A("s_mov_b32 s60, %d" % POLL_LIMIT)
        A(top + ":")
        A(ins)
        A("s_waitcnt vmcnt(0)")
        A("v_cmp_eq_u32 vcc, -1, v%d" % reg)
        A("s_cbranch_vccz %s" % done)
        A("s_mov_b64 exec, vcc")
        A("s_sub_u32 s60, s60, 1")
        A("s_cbranch_scc0 %s" % top)
        A(done + ":")
        A("s_mov_b64 exec, -1")
    def red8rows(regs, tmps):
        dpp_red(regs, (8,))
        swap_red(regs, tmps, 16)
        swap_red(regs, tmps, 32)
    L_CP = L_ZP; L_EP = L_ZP + 1024
    K = NAME + "_kernel"
    A("%s:" % K)
    stamp(0)
    A("s_cmp_ge_u32 s2, 256")
    A("s_cbranch_scc1 L_exit")
    A("s_mov_b64 s[4:5], -1")
    A("s_load_dwordx16 s[8:23], s[0:1], 0")
    A("s_load_dwordx8 s[24:31], s[0:1], 64")
    A("s_load_dwordx2 s[32:33], s[0:1], 96")
    A("v_lshrrev_b32 v1, 6, v0")
    A("v_and_b32 v0, 63, v0")
    A("v_readfirstlane_b32 s3, v1")
    A("s_and_b32 s34, s2, 7")
    A("s_lshr_b32 s35, s2, 3")
    A("s_lshr_b32 s36, s35, 3")
    A("s_and_b32 s37, s35, 7")
    A("v_lshrrev_b32 v2, 4, v0")
    A("v_and_b32 v3, 15, v0")
    A("s_cmp_lt_u32 s3, 4")
    A("s_cbranch_scc1 L_chain")

    A("s_sub_u32 s44, s3, 4")
    A("s_lshl_b32 s45, s36, 3\ns_add_u32 s45, s45, s34\ns_lshl_b32 s45, s45, 20")
    A("s_lshl_b32 s46, s37, 17\ns_add_u32 s45, s45, s46")
    A("s_lshl_b32 s47, s44, 14\ns_add_u32 s45, s45, s47")
    for u in range(4):
        A("v_add_u32 v8, %d, v2" % (4 * u))
        A("v_xor_b32 v8, v8, v3")
        A("v_lshlrev_b32 v8, 4, v8")
        A("v_lshl_add_u32 v%d, v2, 8, v8" % (4 + u))
    A("v_lshlrev_b32 v8, 4, v3")
    A("v_lshl_add_u32 v9, v2, 10, v8")
    A("s_mov_b32 m0, s47")
    A("s_mov_b32 s52, s47")
    A("v_mov_b32 v93, %d\nv_mov_b32 v94, 1" % L_FL)
    A("s_waitcnt lgkmcnt(0)")
    A("s_add_u32 s56, s10, s45\ns_addc_u32 s57, s11, 0")
    A("s_add_u32 s58, s12, s45\ns_addc_u32 s59, s13, 0")
    def tile_base(T, dst, src):
        A("s_add_u32 s55, s44, %d\ns_and_b32 s55, s55, 3\ns_lshl_b32 s55, s55, 12" % T)
        A("s_add_u32 s%d, s%d, s55\ns_addc_u32 s%d, s%d, 0" % (dst, src, dst + 1, src + 1))
    tile_base(0, 48, 56)
    if "latebar" not in exp: A("s_barrier")
    for i in range(16):
        T, u = i >> 2, i & 3
        if u == 0 and T > 0:
            tile_base(T, 48, 56)
            A("s_add_u32 s52, s52, 4096\ns_mov_b32 m0, s52\ns_nop 0")
        A("global_load_lds_dwordx4 v%d, s[48:49] offset:%d%s" % (4 + u, u * 1024, NT))
        if "latebar" in exp and i == W: A("s_barrier")
        if W and i >= W:
            A("s_waitcnt vmcnt(%d)" % W)
    VB = 96
    def vload(idx):
        T, r = idx >> 2, idx & 3
        if r == 0: tile_base(T, 50, 58)
        A("global_load_dwordx4 v[%d:%d], v9, s[50:51] offset:%d%s" % (VB + 4 * idx, VB + 4 * idx + 3, r * 256, NT))
    for idx in range(vpre): vload(idx)
    lds_inc(93, 94, 4)
    stamp(1)
    if "noks" in exp: lds_spin(93, 16, 1, 8)
    else: lds_spin2(93, 4, 8, 16, 1, 8, 10)
    for idx in range(vpre, nv1): vload(idx)
    stamp(2)
    roles()
    for t in range(4):
        A("v_add_u32 v8, %d, v2" % (4 * t))
        A("v_xor_b32 v8, v8, v3")
        A("v_lshlrev_b32 v8, 4, v8")
        A("v_lshl_add_u32 v8, v3, 8, v8")
        A("v_add_u32 v%d, s47, v8" % (10 + t))
    A("v_lshrrev_b32 v8, 2, v3")
    A("v_lshlrev_b32 v14, 8, v8")
    A("v_lshl_add_u32 v14, v2, 4, v14")
    A("v_add_u32 v14, %d, v14" % L_Q)
    A("v_lshlrev_b32 v15, 5, v8")
    A("v_add_u32 v15, %d, v15" % L_MB)
    A("v_lshlrev_b32 v88, 5, v8")
    A("s_lshl_b32 s55, s44, 2\ns_add_u32 s55, s55, %d" % L_LB)
    A("v_add_u32 v88, s55, v88")
    A("v_and_b32 v8, 1, v3\nv_lshlrev_b32 v8, 4, v8\nv_mov_b32 v91, 0xffff\nv_lshlrev_b32 v91, v8, v91")
    A("v_and_b32 v8, 3, v3")
    A("v_cmp_gt_u32 vcc, 2, v8")
    A("v_lshlrev_b32 v92, 4, v0\ns_add_u32 s55, s47, %d\nv_add_u32 v92, s55, v92" % L_OP)
    A("v_cndmask_b32 v89, 0, v91, vcc")
    A("v_cndmask_b32 v90, v91, 0, vcc")
    A("s_mov_b32 s53, 0x3db504f3")
    A("s_mov_b32 s54, 0x3fb8aa3b")
    lds_spin(93, 0, 1, 8)
    stamp(3)
    for t in range(4):
        A("ds_read_b128 v[%d:%d], v14 offset:%d" % (16 + 4 * t, 19 + 4 * t, t * 64))
    A("s_waitcnt vmcnt(%d)" % nv1)
    def kfr(T, buf):
        for t in range(4):
            A("ds_read_b128 v[%d:%d], v%d offset:%d" % (buf + 4 * t, buf + 4 * t + 3, 10 + t, T * 4096))
    def qk(T, buf):
        for t in range(4):
            c = "0" if t == 0 else "v[%d:%d]" % (64 + 4 * T, 67 + 4 * T)
            A("v_mfma_f32_16x16x32_bf16 v[%d:%d], v[%d:%d], v[%d:%d], %s" % (64 + 4 * T, 67 + 4 * T, buf + 4 * t, buf + 4 * t + 3, 16 + 4 * t, 19 + 4 * t, c))
    kfr(0, 32); kfr(1, 48)
    A("s_waitcnt lgkmcnt(4)"); qk(0, 32)
    kfr(2, 32)
    A("s_waitcnt lgkmcnt(4)"); qk(1, 48)
    kfr(3, 48)
    A("s_waitcnt lgkmcnt(4)"); qk(2, 32)
    A("s_waitcnt lgkmcnt(0)"); qk(3, 48)
    def round_pair(a, b):
        A("v_cvt_pk_bf16_f32 v8, v%d, v%d" % (a, b))
        A("v_lshlrev_b32 v%d, 16, v8" % a)
        A("v_and_b32 v%d, 0xffff0000, v8" % b)
        A("v_mul_f32 v%d, s53, v%d" % (a, a))
        A("v_mul_f32 v%d, s53, v%d" % (b, b))
        A("v_cvt_pk_bf16_f32 v8, v%d, v%d" % (a, b))
        A("v_lshlrev_b32 v%d, 16, v8" % a)
        A("v_and_b32 v%d, 0xffff0000, v8" % b)
    for T in range(4):
        round_pair(64 + 4 * T, 65 + 4 * T); round_pair(66 + 4 * T, 67 + 4 * T)
    A("v_max3_f32 v8, v64, v65, v66")
    for i in range(67, 79, 2):
        A("v_max3_f32 v8, v8, v%d, v%d" % (i, i + 1))
    A("v_max_f32 v8, v8, v79")
    swap_red([8], [95], 16, "max"); swap_red([8], [95], 32, "max")
    A("s_lshl_b32 s55, s44, 2")
    A("v_add_u32 v95, s55, v15")
    A("s_mov_b32 exec_lo, 0x1111\ns_mov_b32 exec_hi, 0")
    A("ds_write_b32 v95, v8")
    A("s_mov_b64 exec, 1")
    A("ds_add_u32 v93, v94 offset:36")
    A("s_mov_b64 exec, -1")
    stamp(4)
    A("v_mul_f32 v95, s54, v8")
    for i in range(16):
        A("v_fma_f32 v%d, v%d, s54, -v95" % (64 + i, 64 + i))
    for i in range(16):
        A("v_exp_f32 v%d, v%d" % (64 + i, 64 + i))
    A("s_nop 0")
    A("v_add_f32 v8, v64, v65\nv_add_f32 v87, v66, v67")
    for i in range(4, 16, 2): A("v_add_f32 v8, v8, v%d\nv_add_f32 v87, v87, v%d" % (64 + i, 65 + i))
    A("v_add_f32 v8, v8, v87")
    for i in range(16):
        A("v_cvt_pk_bf16_f32 v%d, v%d, v%d" % (64 + i, 64 + i, 64 + i))
    swap_red([8], [87], 16, "add"); swap_red([8], [87], 32, "add")
    A("v_mov_b32 v16, v8")
    for idx in range(nv1, 16): vload(idx)
    lds_inc(93, 94, 8)
    stamp(5)
    lds_spin(93, 36, 8, 8, 1)
    A("ds_read_b128 v[32:35], v15")
    A("ds_read_b128 v[36:39], v15 offset:16")
    A("s_waitcnt lgkmcnt(0)")
    A("v_max3_f32 v8, v32, v33, v34\nv_max3_f32 v8, v8, v35, v36\nv_max3_f32 v8, v8, v37, v38\nv_max_f32 v8, v8, v39")
    A("v_fma_f32 v17, -v8, s54, v95")
    A("v_exp_f32 v17, v17\ns_nop 0")
    A("v_mul_f32 v16, v16, v17")
    A("s_mov_b32 exec_lo, 0x1111\ns_mov_b32 exec_hi, 0")
    A("ds_write_b32 v88, v16")
    A("s_mov_b64 exec, -1")
    for idx in range(16):
        ta = 32 + 2 * (idx & 3)
        A("v_and_b32 v%d, v%d, v89" % (ta, 64 + idx))
        A("v_and_b32 v%d, v%d, v90" % (ta + 1, 64 + idx))
        A("s_waitcnt vmcnt(%d)" % (15 - idx))
        c0 = "0" if idx == 0 else "v[80:83]"
        c1 = "0" if idx == 0 else "v[84:87]"
        A("s_nop 0")
        A("v_mfma_f32_16x16x16_bf16 v[80:83], v[%d:%d], v[%d:%d], %s" % (VB + 4 * idx, VB + 4 * idx + 1, ta, ta + 1, c0))
        A("v_mfma_f32_16x16x16_bf16 v[84:87], v[%d:%d], v[%d:%d], %s" % (VB + 4 * idx + 2, VB + 4 * idx + 3, ta, ta + 1, c1))
    stamp(6)
    A("s_nop 6")
    for i in range(8): A("v_mul_f32 v%d, v%d, v17" % (80 + i, 80 + i))
    A("ds_write_b128 v92, v[80:83]")
    A("ds_write_b128 v92, v[84:87] offset:1024")
    lds_inc(93, 94, 24)
    stamp(7)
    A("s_cmp_lg_u32 s40, 0")
    A("s_cbranch_scc1 L_s_D")
    A("s_cmp_eq_u32 s39, 0")
    A("s_cbranch_scc1 L_stream_end")
    A("s_lshl_b32 s45, s36, 4\ns_add_u32 s45, s45, s6\ns_mul_i32 s45, s45, %d\ns_lshl_b32 s46, s44, 10\ns_add_u32 s45, s45, s46\ns_add_u32 s45, s45, %d" % (NJ * 128, W_OUT))
    A("v_lshlrev_b32 v6, 4, v0\nv_add_u32 v6, s45, v6")
    A("v_and_b32 v7, 7, v0\nv_lshlrev_b32 v7, 4, v7\ns_lshl_b32 s45, s44, 7\ns_add_u32 s45, s45, %d\nv_add_u32 v7, s45, v7" % L_EP)
    A("s_barrier")
    A("s_barrier")
    A("s_cmp_eq_u32 s44, 7\ns_cbranch_scc1 L_s_e1")
    poll1("global_load_dwordx4 v[16:19], v6, s[32:33]%s" % SC, 19)
    stamp(9)
    red8rows([16, 17, 18, 19], [24, 25, 26, 27])
    A("s_mov_b64 exec, 0xff")
    A("ds_write_b128 v7, v[16:19]")
    A("s_mov_b64 exec, -1")
    A("s_waitcnt lgkmcnt(0)")
    A("L_s_e1:")
    A("s_barrier")
    A("s_branch L_stream_end")
    A("L_s_D:")
    A("; DRY_BEGIN")
    A("v_mov_b32 v90, %d" % L_FL)
    A("v_lshrrev_b32 v8, 2, v3\nv_lshl_add_u32 v8, v2, 3, v8")
    A("v_and_b32 v93, 3, v3\nv_lshlrev_b32 v93, 3, v93")
    A("v_lshl_add_u32 v4, v8, 6, v93\nv_add_u32 v4, s47, v4")
    A("v_lshlrev_b32 v5, 2, v93\nv_lshl_add_u32 v5, v8, 7, v5\nv_add_u32 v5, s47, v5")
    A("v_and_b32 v6, 3, v3\nv_lshlrev_b32 v6, 10, v6\nv_lshl_add_u32 v6, v2, 4, v6")
    A("s_lshl_b32 s58, s44, 7\ns_add_u32 s58, s58, %d" % L_XH)
    A("v_add_u32 v6, s58, v6")
    A("v_lshlrev_b32 v7, 2, v0\ns_lshl_b32 s58, s44, 8\ns_add_u32 s58, s58, %d\nv_add_u32 v7, s58, v7" % L_ZP)
    A("v_lshlrev_b32 v11, 2, v0\ns_lshl_b32 s58, s44, 11\ns_add_u32 s58, s58, %d\nv_add_u32 v11, s58, v11" % L_ZP)
    A("v_lshrrev_b32 v10, 2, v3\nv_lshlrev_b32 v10, 6, v10\nv_lshl_add_u32 v10, v2, 4, v10\nv_add_u32 v10, %d, v10" % L_H1)
    A("v_mov_b32 v92, %d\nv_and_b32 v91, 3, v3" % L_Z)
    for t in range(4):
        A("v_cmp_eq_u32 vcc, %d, v91\ns_nop 1\nv_cndmask_b32 v%d, v92, v10, vcc" % (t, 94 + t))
    A("v_mov_b32 v24, 0\nv_mov_b32 v25, 0\nv_mov_b32 v26, 0\nv_mov_b32 v27, 0\nds_write_b128 v92, v[24:27]")
    A("v_lshrrev_b32 v15, 2, v3")
    A("v_cmp_eq_u32 s[56:57], 1, v15\nv_cmp_eq_u32 s[58:59], 2, v15\nv_cmp_eq_u32 s[48:49], 3, v15")
    A("v_lshrrev_b32 v12, 2, v3\nv_lshlrev_b32 v12, 4, v12\nv_lshrrev_b32 v24, 1, v2\nv_add_u32 v12, v12, v24\nv_mul_u32_u24 v12, %d, v12" % (NJ * 128))
    A("v_and_b32 v24, 1, v2\nv_lshl_add_u32 v12, v24, 6, v12\nv_lshl_add_u32 v12, v91, 4, v12")
    A("s_mul_i32 s45, s44, %d\ns_lshl_b32 s46, s41, 7\ns_add_u32 s45, s45, s46\ns_add_u32 s45, s45, %d" % (2 * NJ * 128, W_OUT))
    A("v_add_u32 v12, s45, v12")
    A("v_lshlrev_b32 v13, 4, v0\ns_lshl_b32 s45, s44, 11\ns_lshl_b32 s46, s34, 13\ns_add_u32 s45, s45, s46\ns_add_u32 s45, s45, %d\nv_add_u32 v13, s45, v13" % W_H)
    A("v_lshlrev_b32 v14, 3, v0\ns_lshl_b32 s45, s44, 10\ns_add_u32 s45, s45, %d\nv_add_u32 v14, s45, v14" % L_XH)
    A("v_lshl_add_u32 v15, v2, 2, v15")
    A("s_and_b32 s45, s44, 1\ns_lshl_b32 s45, s45, 4\nv_add_u32 v15, s45, v15")
    A("v_lshlrev_b32 v9, 2, v15\nv_add_u32 v9, %d, v9" % L_B1)
    A("ds_read_b32 v88, v9")
    A("v_and_b32 v9, 3, v3\nv_lshlrev_b32 v9, 6, v9\nv_lshl_add_u32 v9, v15, 1, v9\nv_add_u32 v9, %d, v9" % L_H1)
    A("v_mov_b32 v89, 0x3d372713")
    lds_spin(90, 28, 4, 91, 1)
    for ft in range(2):
        for ks in range(2):
            fr = 32 + 8 * ft + 4 * ks
            A("ds_read_b64_tr_b16 v[%d:%d], v4 offset:%d" % (fr, fr + 1, ks * 2048 + ft * 32))
            A("ds_read_b64_tr_b16 v[%d:%d], v4 offset:%d" % (fr + 2, fr + 3, ks * 2048 + ft * 32 + 256))
    A("s_waitcnt lgkmcnt(0)")
    for t in range(4):
        A("ds_read_b64_tr_b16 v[%d:%d], v5 offset:%d" % (48 + 4 * t, 49 + 4 * t, 4096 + t * 8))
        A("ds_read_b64_tr_b16 v[%d:%d], v5 offset:%d" % (50 + 4 * t, 51 + 4 * t, 4096 + t * 8 + 512))
    A("s_waitcnt lgkmcnt(0)")
    stamp(8)
    A("s_cmp_ge_u32 s44, 4")
    A("s_cbranch_scc1 L_d1")
    if sD: A("s_sleep %d" % sD)
    hop([("global_load_dwordx4 v[100:103], v13, s[32:33]%s" % SC, [103]), ("global_load_dwordx4 v[104:107], v13, s[32:33] offset:1024%s" % SC, [107])], 24, pipe=PIPE)
    stamp(9)
    A("v_add_f32 v24, v100, v101\nv_add_f32 v25, v102, v103\nv_add_f32 v26, v104, v105\nv_add_f32 v27, v106, v107")
    A("v_add_f32 v24, v24, v25\nv_add_f32 v26, v26, v27\nv_add_f32 v24, v24, v26")
    red16([24]); swap_red([24], [25], 16); swap_red([24], [25], 32)
    A("v_mul_f32 v24, 0x3b000000, v24")
    for i in range(8): A("v_sub_f32 v%d, v%d, v24" % (16 + i, 100 + i))
    A("v_mul_f32 v25, v16, v16\nv_mul_f32 v26, v17, v17")
    for i in range(2, 8, 2): A("v_fma_f32 v25, v%d, v%d, v25\nv_fma_f32 v26, v%d, v%d, v26" % (16 + i, 16 + i, 17 + i, 17 + i))
    A("v_add_f32 v25, v25, v26")
    red16([25]); swap_red([25], [26], 16); swap_red([25], [26], 32)
    A("v_mul_f32 v25, 0x3b000000, v25")
    A("v_add_f32 v26, 0x3727c5ac, v25")
    A("v_rcp_f32 v27, v26\nv_rsq_f32 v26, v26\ns_nop 0")
    A("v_mul_f32 v27, v25, v27")
    A("v_add_f32 v27, 0x3727c5ac, v27")
    A("v_rsq_f32 v27, v27\ns_nop 0")
    A("v_mul_f32 v26, v26, v27")
    for i in range(8): A("v_mul_f32 v%d, v%d, v26" % (16 + i, 16 + i))
    for i in range(4): A("v_cvt_pk_bf16_f32 v%d, v%d, v%d" % (72 + i, 16 + 2 * i, 17 + 2 * i))
    if "dst" in exp: stamp(1)
    A("ds_write_b64 v14, v[72:73]")
    A("ds_write_b64 v14, v[74:75] offset:512")
    A("s_waitcnt lgkmcnt(0)")
    A("L_d1:")
    A("s_barrier")
    if "dst" in exp: stamp(2)
    for ks in range(2):
        A("ds_read_b128 v[%d:%d], v6 offset:%d" % (16 + 4 * ks, 19 + 4 * ks, ks * 64))
    for ks in range(2):
        A("s_waitcnt lgkmcnt(%d)" % (1 - ks))
        for ft in range(2):
            c = "0" if ks == 0 else "v[%d:%d]" % (80 + 4 * ft, 83 + 4 * ft)
            A("v_mfma_f32_16x16x32_bf16 v[%d:%d], v[%d:%d], v[%d:%d], %s" % (80 + 4 * ft, 83 + 4 * ft, 32 + 8 * ft + 4 * ks, 35 + 8 * ft + 4 * ks, 16 + 4 * ks, 19 + 4 * ks, c))
    A("s_nop 6")
    A("v_cndmask_b32 v80, v80, v81, s[56:57]\nv_cndmask_b32 v80, v80, v82, s[58:59]\nv_cndmask_b32 v80, v80, v83, s[48:49]")
    A("v_cndmask_b32 v84, v84, v85, s[56:57]\nv_cndmask_b32 v84, v84, v86, s[58:59]\nv_cndmask_b32 v84, v84, v87, s[48:49]")
    if "dst" in exp: stamp(3)
    A("ds_write_b32 v7, v80")
    A("ds_write_b32 v7, v84 offset:2048")
    A("s_waitcnt lgkmcnt(0)")
    A("s_barrier")
    if "dst" in exp: stamp(4)
    A("s_cmp_ge_u32 s44, 2")
    A("s_cbranch_scc1 L_d3")
    for w_ in range(8): A("ds_read_b32 v%d, v11 offset:%d" % (16 + w_, w_ * 256))
    A("s_waitcnt lgkmcnt(0)")
    A("v_add_f32 v16, v16, v17\nv_add_f32 v18, v18, v19\nv_add_f32 v20, v20, v21\nv_add_f32 v22, v22, v23")
    A("v_add_f32 v16, v16, v18\nv_add_f32 v20, v20, v22\nv_add_f32 v18, v16, v20")
    bf16r(18, 18)
    A("v_add_f32 v18, v18, v88")
    bf16r(18, 18)
    A("v_mul_f32 v19, v18, v18")
    A("v_fma_f32 v19, v19, v89, 1.0")
    A("v_mul_f32 v19, v19, v18")
    A("v_mul_f32 v19, 0xc0135761, v19")
    A("v_exp_f32 v19, v19\ns_nop 0")
    A("v_add_f32 v19, 1.0, v19")
    A("v_rcp_f32 v19, v19\ns_nop 0")
    A("v_mul_f32 v18, v18, v19")
    A("v_cvt_pk_bf16_f32 v18, v18, v18")
    if "dst" in exp: stamp(5)
    A("ds_write_b16 v9, v18")
    A("s_waitcnt lgkmcnt(0)")
    A("L_d3:")
    A("s_barrier")
    if "dst" in exp: stamp(6)
    for t in range(4): A("ds_read_b128 v[%d:%d], v%d" % (16 + 4 * t, 19 + 4 * t, 94 + t))
    for t in range(4):
        A("s_waitcnt lgkmcnt(%d)" % (3 - t))
        c = "0" if t == 0 else "v[64:67]"
        A("v_mfma_f32_16x16x32_bf16 v[64:67], v[%d:%d], v[%d:%d], %s" % (48 + 4 * t, 51 + 4 * t, 16 + 4 * t, 19 + 4 * t, c))
    A("s_nop 7")
    A("global_store_dwordx4 v12, v[64:67], s[32:33]%s" % SC)
    stamp(10)
    A("; DRY_END")
    A("L_stream_end:")
    if DRY: A("s_cbranch_execz L_dry_ret3")
    stamp(11)
    stamp_flush()
    A("s_endpgm")

    A("L_chain:")
    A("s_cmp_lg_u32 s3, 2\ns_cbranch_scc1 L_c_nz")
    A("v_mov_b32 v8, 0\nv_mov_b32 v9, 0\nv_mov_b32 v10, 0\nv_mov_b32 v11, 0")
    A("v_mov_b32 v7, %d" % L_FL)
    for i in range(4): A("ds_write_b128 v7, v[8:11] offset:%d" % (16 * i))
    A("L_c_nz:")
    A("s_lshl_b32 s38, s34, 2\ns_add_u32 s38, s38, s36")
    roles()
    A("s_lshl_b32 s44, s34, 10\ns_lshl_b32 s45, s36, 6\ns_add_u32 s44, s44, s45\ns_and_b32 s45, s37, 1\ns_lshl_b32 s45, s45, 5\ns_add_u32 s44, s44, s45")
    A("s_lshr_b32 s45, s37, 1\ns_lshl_b32 s45, s45, 3\ns_add_u32 s44, s44, s45\ns_add_u32 s44, s44, %d" % W_ML)
    A("v_and_b32 v102, 3, v0\nv_lshlrev_b32 v102, 8, v102\nv_add_u32 v102, s44, v102")
    A("s_lshr_b32 s45, s35, 1\ns_and_b32 s45, s45, 3")
    A("s_lshl_b32 s44, s34, 16\ns_lshl_b32 s46, s45, 12\ns_add_u32 s44, s44, s46\ns_lshl_b32 s46, s36, 10\ns_add_u32 s44, s44, s46")
    A("s_and_b32 s46, s35, 1\ns_lshl_b32 s46, s46, 9\ns_add_u32 s44, s44, s46\ns_add_u32 s44, s44, %d" % W_QP)
    A("v_and_b32 v103, 3, v3\nv_lshlrev_b32 v103, 14, v103\nv_lshl_add_u32 v103, v2, 5, v103\nv_add_u32 v103, s44, v103")
    A("v_mov_b32 v100, %d\nv_mov_b32 v101, 1\nv_mov_b32 v126, 0" % L_FL)
    A("s_waitcnt lgkmcnt(0)")
    A("s_load_dword s62, s[32:33], 0")
    A("s_cmp_eq_u32 s3, 0\ns_cbranch_scc1 L_c0")
    A("s_barrier")
    A("s_cmp_eq_u32 s3, 1\ns_cbranch_scc1 L_c1")
    A("s_cmp_eq_u32 s3, 2\ns_cbranch_scc1 L_c2")
    A("s_branch L_c3")
    A("L_c0:")
    A("v_lshlrev_b32 v6, 10, v2\nv_lshl_add_u32 v7, v3, 6, v6")
    for i in range(4):
        A("global_load_dwordx4 v[%d:%d], v7, s[8:9] offset:%d" % (16 + 4 * i, 19 + 4 * i, i * 16))
    A("s_lshl_b32 s46, s45, 8")
    A("v_lshl_add_u32 v7, v3, 4, v6\nv_add_u32 v7, s46, v7")
    A("global_load_dwordx4 v[12:15], v7, s[8:9]")
    A("s_lshl_b32 s44, s45, 20\ns_lshl_b32 s46, s34, 10\ns_add_u32 s44, s44, s46\ns_lshl_b32 s46, s36, 8\ns_add_u32 s44, s44, s46")
    A("s_and_b32 s46, s35, 1\ns_lshl_b32 s46, s46, 7\ns_add_u32 s44, s44, s46")
    A("s_add_u32 s46, s14, s44\ns_addc_u32 s47, s15, 0")
    A("v_lshrrev_b32 v7, 3, v0\nv_lshlrev_b32 v7, 13, v7\nv_and_b32 v8, 7, v0\nv_lshl_add_u32 v7, v8, 4, v7")
    A("s_mov_b32 s48, %d" % L_ST)
    for i in range(16):
        A("s_mov_b32 m0, s48\ns_add_u32 s48, s48, 1024")
        A("global_load_lds_dwordx4 v7, s[46:47]%s" % WNT)
        A("s_add_u32 s46, s46, 0x10000\ns_addc_u32 s47, s47, 0")
    A("s_barrier")
    stamp(1)
    A("s_waitcnt vmcnt(16)")
    tags()
    for i in range(16):
        A("v_lshlrev_b32 v%d, 16, v%d\nv_and_b32 v%d, 0xffff0000, v%d" % (32 + 2 * i, 16 + i, 33 + 2 * i, 16 + i))
    A("v_add_f32 v64, v32, v33\nv_add_f32 v65, v34, v35\nv_add_f32 v66, v36, v37\nv_add_f32 v67, v38, v39")
    for i in range(8, 32, 4):
        A("v_add_f32 v64, v64, v%d\nv_add_f32 v65, v65, v%d\nv_add_f32 v66, v66, v%d\nv_add_f32 v67, v67, v%d" % (32 + i, 33 + i, 34 + i, 35 + i))
    A("v_add_f32 v64, v64, v65\nv_add_f32 v66, v66, v67\nv_add_f32 v64, v64, v66")
    red16([64])
    A("v_mul_f32 v64, 0x3b000000, v64")
    A("v_mov_b32 v65, 0\nv_mov_b32 v66, 0")
    for i in range(0, 32, 2):
        A("v_sub_f32 v67, v%d, v64\nv_sub_f32 v68, v%d, v64\nv_fma_f32 v65, v67, v67, v65\nv_fma_f32 v66, v68, v68, v66" % (32 + i, 33 + i))
    A("v_add_f32 v65, v65, v66")
    red16([65])
    A("v_mul_f32 v65, 0x3b000000, v65")
    bf16r(64, 64); bf16r(65, 65)
    A("v_add_f32 v65, 0x3727c5ac, v65"); bf16r(65, 65)
    A("v_sqrt_f32 v65, v65\ns_nop 0"); bf16r(65, 65)
    A("v_rcp_f32 v65, v65")
    for i in range(4):
        a, b = 32 + 2 * i, 33 + 2 * i
        A("v_lshlrev_b32 v%d, 16, v%d\nv_and_b32 v%d, 0xffff0000, v%d" % (a, 12 + i, b, 12 + i))
        A("v_sub_f32 v%d, v%d, v64\nv_sub_f32 v%d, v%d, v64" % (a, a, b, b))
        A("v_cvt_pk_bf16_f32 v66, v%d, v%d" % (a, b))
        A("v_lshlrev_b32 v%d, 16, v66\nv_and_b32 v%d, 0xffff0000, v66" % (a, b))
        A("v_mul_f32 v%d, v%d, v65\nv_mul_f32 v%d, v%d, v65" % (a, a, b, b))
        A("v_cvt_pk_bf16_f32 v%d, v%d, v%d" % (16 + i, a, b))
    A("v_lshlrev_b32 v6, 8, v2\nv_lshl_add_u32 v6, v3, 4, v6\nv_add_u32 v6, %d, v6" % L_XH)
    A("ds_write_b128 v6, v[16:19]")
    A("v_lshrrev_b32 v8, 2, v3\nv_lshl_add_u32 v8, v2, 3, v8\nv_and_b32 v9, 3, v3\nv_lshlrev_b32 v12, 3, v9")
    A("v_lshl_add_u32 v12, v8, 7, v12\nv_add_u32 v12, %d, v12" % L_ST)
    A("v_lshlrev_b32 v13, 8, v9\nv_lshl_add_u32 v13, v2, 4, v13\nv_add_u32 v13, %d, v13" % L_XH)
    A("s_waitcnt vmcnt(0) lgkmcnt(0)")
    stamp(2)
    for ks in range(4):
        A("ds_read_b128 v[%d:%d], v13 offset:%d" % (16 + 4 * ks, 19 + 4 * ks, ks * 64))
    for ks in range(4):
        for t in range(4):
            A("ds_read_b64_tr_b16 v[%d:%d], v12 offset:%d" % (32 + 4 * t, 33 + 4 * t, ks * 4096 + t * 32))
            A("ds_read_b64_tr_b16 v[%d:%d], v12 offset:%d" % (34 + 4 * t, 35 + 4 * t, ks * 4096 + t * 32 + 512))
        for t in range(4):
            A("s_waitcnt lgkmcnt(%d)" % (6 - 2 * t))
            c = "0" if ks == 0 else "v[%d:%d]" % (64 + 4 * t, 67 + 4 * t)
            A("v_mfma_f32_16x16x32_bf16 v[%d:%d], v[%d:%d], v[%d:%d], %s" % (64 + 4 * t, 67 + 4 * t, 32 + 4 * t, 35 + 4 * t, 16 + 4 * ks, 19 + 4 * ks, c))
    A("v_mov_b32 v34, s42\nv_mov_b32 v35, s43\nv_mov_b32 v38, s42\nv_mov_b32 v39, s43")
    A("s_mov_b32 exec_lo, 0x000f000f\ns_mov_b32 exec_hi, 0x000f000f")
    A("s_nop 4")
    for t in range(4):
        A("v_mov_b32 v32, v%d\nv_mov_b32 v33, v%d\nv_mov_b32 v36, v%d\nv_mov_b32 v37, v%d" % (64 + 4 * t, 65 + 4 * t, 66 + 4 * t, 67 + 4 * t))
        A("global_store_dwordx4 v103, v[32:35], s[32:33] offset:%d%s" % (t * 128, SC))
        A("global_store_dwordx4 v103, v[36:39], s[32:33] offset:%d%s" % (t * 128 + 16, SC))
        A("s_nop 1")
    A("s_mov_b64 exec, -1")
    lds_set(100, 101, 12)
    stamp(3)
    A("s_branch L_c_pre")
    A("L_c1:")
    A("s_lshl_b32 s44, s34, 16\ns_lshl_b32 s45, s36, 14\ns_add_u32 s44, s44, s45\ns_add_u32 s44, s44, %d" % W_QP)
    A("v_lshlrev_b32 v6, 4, v0\nv_add_u32 v6, s44, v6\nv_add_u32 v7, 4096, v6\nv_add_u32 v8, 4096, v7\nv_add_u32 v9, 4096, v8")
    tags()
    p = poll_begin("s61")
    A("ds_read_b32 v20, v100 offset:4")
    A("s_waitcnt lgkmcnt(0)")
    A("v_cmp_gt_u32 vcc, %d, v20" % qk_at)
    poll_end(p, 4, "s61")
    stamp(2)
    p = poll_begin()
    for i in range(16):
        A("global_load_dwordx4 v[%d:%d], v%d, s[32:33] offset:%d%s" % (32 + 4 * i, 35 + 4 * i, 6 + (i >> 2), (i & 3) * 1024, SC))
    lds_set(100, 101, 16)
    A("s_waitcnt vmcnt(0)")
    for i in range(16):
        A("v_xor_b32 v%d, s42, v%d\nv_xor_b32 v%d, s43, v%d" % (34 + 4 * i, 34 + 4 * i, 35 + 4 * i, 35 + 4 * i))
    A("v_or3_b32 v20, v34, v35, v38")
    A("v_or_b32 v20, v20, v39")
    for i in range(2, 16):
        A("v_or3_b32 v20, v20, v%d, v%d" % (34 + 4 * i, 35 + 4 * i))
    A("v_cmp_ne_u32 vcc, 0, v20")
    poll_end(p, sleep_q)
    for j in range(4):
        a = 32 + 4 * j
        A("v_pk_add_f32 v[%d:%d], v[%d:%d], v[%d:%d]" % (a, a + 1, a, a + 1, a + 16, a + 17))
        A("v_pk_add_f32 v[%d:%d], v[%d:%d], v[%d:%d]" % (a + 32, a + 33, a + 32, a + 33, a + 48, a + 49))
        A("v_pk_add_f32 v[%d:%d], v[%d:%d], v[%d:%d]" % (a, a + 1, a, a + 1, a + 32, a + 33))
    for j in range(4): A("v_cvt_pk_bf16_f32 v%d, v%d, v%d" % (16 + j, 32 + 4 * j, 33 + 4 * j))
    A("v_lshlrev_b32 v7, 2, v0\nv_add_u32 v7, %d, v7" % L_Q)
    for j in range(4): A("ds_write_b32 v7, v%d offset:%d" % (16 + j, j * 256))
    lds_set(100, 101, 0)
    stamp(3)
    A("s_branch L_c_pre")
    A("L_c2:")
    A("v_mov_b32 v12, -1\nv_mov_b32 v13, -1\nv_mov_b32 v14, -1\nv_mov_b32 v15, -1")
    A("v_lshrrev_b32 v16, 5, v0\nv_lshlrev_b32 v16, 14, v16\nv_and_b32 v17, 31, v0\nv_lshl_add_u32 v16, v17, 4, v16")
    A("s_lshl_b32 s44, s34, 16\ns_lshl_b32 s45, s36, 12\ns_add_u32 s44, s44, s45\ns_lshl_b32 s45, s37, 9\ns_add_u32 s44, s44, s45\ns_add_u32 s44, s44, %d" % W_OP)
    A("v_add_u32 v16, s44, v16")
    A("global_store_dwordx4 v16, v[12:15], s[32:33]%s" % SC)
    A("v_add_u32 v17, 0x8000, v16")
    A("global_store_dwordx4 v17, v[12:15], s[32:33]%s" % SC)
    A("global_store_dwordx2 v102, v[12:13], s[32:33]%s" % SC)
    A("v_lshlrev_b32 v18, 4, v2\nv_bfe_u32 v19, v0, 3, 1\nv_add_u32 v18, v18, v19\nv_lshlrev_b32 v18, 12, v18\nv_and_b32 v19, 7, v0\nv_lshl_add_u32 v18, v19, 4, v18")
    A("s_lshl_b32 s45, s38, 7\ns_add_u32 s45, s45, %d" % W_HP)
    A("s_cmp_lg_u32 s40, 0\ns_cbranch_scc1 L_c2h")
    A("s_lshl_b32 s44, s37, 13\ns_add_u32 s44, s44, s45")
    A("v_add_u32 v19, s44, v18")
    A("global_store_dwordx4 v19, v[12:15], s[32:33]%s" % SC)
    A("s_cmp_eq_u32 s63, 0\ns_cbranch_scc1 L_c2h")
    A("s_sub_u32 s44, s37, 2\ns_and_b32 s44, s44, 7\ns_lshl_b32 s44, s44, 13\ns_add_u32 s44, s44, s45")
    A("v_add_u32 v19, s44, v18")
    A("global_store_dwordx4 v19, v[12:15], s[32:33]%s" % SC)
    A("L_c2h:")
    A("s_cmp_eq_u32 s39, 0\ns_cbranch_scc1 L_c2a")
    A("s_lshl_b32 s44, s36, 11\ns_lshl_b32 s45, s6, 7\ns_add_u32 s44, s44, s45\ns_add_u32 s44, s44, %d" % W_H)
    A("v_lshrrev_b32 v19, 3, v0\nv_lshlrev_b32 v19, 13, v19\nv_and_b32 v20, 7, v0\nv_lshl_add_u32 v19, v20, 4, v19\nv_add_u32 v19, s44, v19")
    A("global_store_dwordx4 v19, v[12:15], s[32:33]%s" % SC)
    A("L_c2a:")
    A("s_cmp_eq_u32 s40, 0\ns_cbranch_scc1 L_c2b")
    A("v_lshrrev_b32 v19, 3, v0\nv_mul_u32_u24 v19, %d, v19\nv_and_b32 v20, 7, v0\nv_lshl_add_u32 v19, v20, 4, v19" % (NJ * 128))
    A("s_lshl_b32 s44, s41, 7\ns_add_u32 s44, s44, %d" % W_OUT)
    A("v_add_u32 v19, s44, v19")
    for i in range(8):
        A("global_store_dwordx4 v19, v[12:15], s[32:33]%s" % SC)
        A("v_add_u32 v19, %d, v19" % (8 * NJ * 128))
    A("L_c2b:")
    A("s_waitcnt vmcnt(0)")
    tags()
    A("s_getreg_b32 s44, hwreg(HW_REG_XCC_ID)\ns_and_b32 s44, s44, 7\ns_xor_b32 s44, s44, s43")
    A("v_mov_b32 v20, s42\nv_mov_b32 v21, s44")
    A("s_lshl_b32 s44, s34, 5\ns_add_u32 s44, s44, s35\ns_lshl_b32 s44, s44, 3\ns_add_u32 s44, s44, %d\nv_mov_b32 v22, s44" % W_FLAG)
    A("s_mov_b64 exec, 1")
    A("global_store_dwordx2 v22, v[20:21], s[32:33]%s" % SC)
    A("s_mov_b64 exec, -1")
    stamp(3)
    A("s_branch L_c_join")
    A("L_c3:")
    if "nostouch" not in exp.split(","):
        A("s_lshl_b32 s45, s36, 3\ns_add_u32 s45, s45, s34\ns_lshl_b32 s45, s45, 20\ns_lshl_b32 s46, s37, 17\ns_add_u32 s45, s45, s46")
        A("s_add_u32 s46, s12, s45\ns_addc_u32 s47, s13, 0")
        A("s_load_dword s7, s[46:47], 0")
        A("s_lshl_b32 s45, s38, 17\ns_add_u32 s48, s16, s45\ns_addc_u32 s49, s17, 0")
        A("s_load_dword s7, s[48:49], 0")
        A("s_cmp_eq_u32 s40, 0\ns_cbranch_scc1 L_c3_nt")
        A("s_load_dword s7, s[20:21], 0\ns_load_dword s7, s[20:21], 0xf0000\ns_load_dword s7, s[24:25], 0\ns_load_dword s7, s[24:25], 0xf0000")
        A("s_add_u32 s46, s20, 0x1b0000\ns_addc_u32 s47, s21, 0\ns_load_dword s7, s[46:47], 0")
        A("s_add_u32 s48, s24, 0x1b0000\ns_addc_u32 s49, s25, 0\ns_load_dword s7, s[48:49], 0")
        A("L_c3_nt:")
    if "nopf" not in exp:
        A("s_cmp_ge_u32 s35, 2\ns_cbranch_scc1 L_c3_nopf")
        A("s_getpc_b64 s[44:45]")
        A("L_pc_here:")
        A("s_sub_u32 s44, s44, L_pc_here-%s\ns_subb_u32 s45, s45, 0" % K)
        A("v_lshlrev_b32 v6, 4, v0")
        for i in range(14):
            A("global_load_dwordx4 v[32:35], v6, s[44:45]")
            A("v_add_u32 v6, 1024, v6")
        A("L_c3_nopf:")
    A("s_cmp_eq_u32 s40, 0\ns_cbranch_scc1 L_c3a")
    if DRY:
        A("s_mov_b32 s44, 0\ns_mov_b32 s47, 0\ns_mov_b64 s[4:5], 0\ns_mov_b64 exec, 0\ns_branch L_s_D")
        A("L_dry_ret3:")
        A("s_mov_b64 s[4:5], -1\ns_mov_b64 exec, -1")
    A("s_lshl_b32 s44, s41, 6")
    A("v_and_b32 v6, 31, v0\nv_lshlrev_b32 v7, 1, v6\nv_add_u32 v7, s44, v7")
    A("global_load_ushort v8, v7, s[22:23]")
    A("v_lshlrev_b32 v6, 2, v6\nv_add_u32 v6, %d, v6" % L_B1)
    A("s_waitcnt vmcnt(0)")
    A("v_lshlrev_b32 v8, 16, v8")
    A("ds_write_b32 v6, v8")
    A("L_c3a:")
    tags()
    lds_spin(100, 16, 1, 20, 4)
    A("v_lshlrev_b32 v8, 4, v0\nv_add_u32 v8, %d, v8" % W_FLAG)
    p = poll_begin()
    A("global_load_dwordx4 v[16:19], v8, s[32:33]%s" % SC)
    A("global_load_dwordx4 v[20:23], v8, s[32:33] offset:1024%s" % SC)
    A("s_waitcnt vmcnt(0)")
    for a in (16, 18, 20, 22):
        A("v_xor_b32 v%d, s42, v%d\nv_xor_b32 v%d, s43, v%d" % (a, a, a + 1, a + 1))
    A("v_or3_b32 v24, v16, v18, v20\nv_or_b32 v24, v24, v22")
    A("v_or3_b32 v25, v17, v19, v21\nv_or_b32 v25, v25, v23\nv_lshrrev_b32 v25, 3, v25")
    A("v_or_b32 v24, v24, v25")
    A("v_cmp_ne_u32 vcc, 0, v24")
    poll_end(p, 8)
    A("s_getreg_b32 s44, hwreg(HW_REG_XCC_ID)\ns_and_b32 s44, s44, 7")
    A("s_cmp_lt_u32 s34, 4\ns_cbranch_scc1 L_c3lo")
    A("v_mov_b32 v17, v21\nv_mov_b32 v19, v23")
    A("L_c3lo:")
    A("v_xor_b32 v17, s44, v17\nv_xor_b32 v19, s44, v19\nv_or_b32 v17, v17, v19")
    A("v_xor_b32 v24, s34, v2\nv_and_b32 v24, 3, v24")
    A("v_cmp_eq_u32 vcc, 0, v24\ns_nop 1\nv_cndmask_b32 v17, 0, v17, vcc")
    A("v_cmp_ne_u32 vcc, 0, v17")
    A("s_cmp_eq_u64 vcc, 0\ns_cbranch_scc0 L_c3nf")
    if "nofast" not in exp: lds_set(100, 101, 32)
    A("L_c3nf:")
    lds_set(100, 101, 40)
    stamp(3)
    A("s_branch L_c_join")
    A("L_c_pre:")
    A("L_c_join:")
    A("v_and_b32 v9, 7, v0\nv_lshlrev_b32 v9, 3, v9")
    A("s_lshl_b32 s44, s36, 10\ns_lshl_b32 s45, s6, 6\ns_add_u32 s44, s44, s45")
    A("v_add_u32 v126, s44, v9")
    A("v_add_u32 v11, s45, v9")
    A("global_load_dwordx2 v[120:121], v126, s[8:9]")
    A("global_load_dwordx2 v[122:123], v11, s[26:27]")
    A("global_load_dwordx2 v[124:125], v126, s[28:29]")
    A("s_lshl_b32 s44, s38, 14\ns_lshl_b32 s45, s3, 12\ns_add_u32 s44, s44, s45\ns_add_u32 s44, s44, %d" % W_OP)
    A("v_lshlrev_b32 v6, 4, v0\nv_add_u32 v6, s44, v6")
    A("s_lshl_b32 s44, s38, 8\ns_lshl_b32 s45, s3, 6\ns_add_u32 s44, s44, s45\ns_add_u32 s44, s44, %d" % W_ML)
    A("v_lshrrev_b32 v7, 5, v0\nv_lshlrev_b32 v7, 5, v7\nv_add_u32 v7, s44, v7")
    A("v_and_b32 v8, 31, v0\nv_lshlrev_b32 v8, 3, v8\ns_lshl_b32 s45, s3, 8\ns_add_u32 s45, s45, %d\nv_add_u32 v8, s45, v8" % L_OB)
    A("v_lshrrev_b32 v9, 2, v3\nv_lshlrev_b32 v9, 8, v9\nv_lshl_add_u32 v9, v2, 4, v9\nv_add_u32 v9, %d, v9" % L_OB)
    A("v_lshlrev_b32 v10, 16, v2\nv_lshl_add_u32 v10, v3, 2, v10")
    A("s_lshl_b32 s45, s38, 7\ns_lshr_b32 s46, s3, 1\ns_lshl_b32 s46, s46, 12\ns_add_u32 s45, s45, s46\ns_and_b32 s46, s3, 1\ns_lshl_b32 s46, s46, 6\ns_add_u32 s45, s45, s46\ns_add_u32 s45, s45, %d" % W_HP)
    A("s_sub_u32 s55, s37, 2\ns_and_b32 s55, s55, 7")
    A("s_lshl_b32 s44, s55, 13\ns_add_u32 s44, s44, s45\nv_add_u32 v99, s44, v10")
    A("s_lshl_b32 s44, s37, 13\ns_add_u32 s44, s44, s45\nv_add_u32 v10, s44, v10")
    A("v_lshrrev_b32 v11, 2, v3\nv_lshlrev_b32 v11, 14, v11\nv_lshl_add_u32 v11, v2, 7, v11\nv_and_b32 v13, 3, v3\nv_lshl_add_u32 v11, v13, 4, v11")
    A("s_lshl_b32 s44, s34, 16\ns_lshl_b32 s45, s36, 12\ns_add_u32 s44, s44, s45\ns_lshl_b32 s45, s37, 9\ns_add_u32 s44, s44, s45")
    A("s_lshl_b32 s45, s3, 6\ns_add_u32 s44, s44, s45\ns_add_u32 s44, s44, %d" % W_OP)
    A("v_add_u32 v11, s44, v11")
    A("v_lshlrev_b32 v13, 4, v0\ns_lshl_b32 s45, s3, 10\ns_add_u32 s45, s45, %d\nv_add_u32 v13, s45, v13" % L_OP)
    A("v_lshrrev_b32 v14, 2, v3\nv_lshl_add_u32 v14, v2, 3, v14\nv_and_b32 v15, 3, v3\nv_lshlrev_b32 v12, 3, v15")
    A("v_lshl_add_u32 v12, v14, 7, v12\ns_lshl_b32 s44, s3, 5\nv_add_u32 v98, s44, v12\nv_add_u32 v12, %d, v98" % L_ST)
    A("s_mov_b32 s54, 0x3fb8aa3b")
    A("v_bfe_u32 v16, v0, 3, 2\nv_lshlrev_b32 v16, 3, v16\nv_lshrrev_b32 v17, 5, v0\nv_add_u32 v16, v16, v17\nv_lshlrev_b32 v16, 10, v16")
    A("v_and_b32 v17, 7, v0\nv_lshl_add_u32 v97, v17, 4, v16")
    if DRY:
        A("s_cmp_lg_u32 s3, 0\ns_cbranch_scc1 L_dry_skip0")
        A("s_mov_b64 s[4:5], 0\ns_mov_b64 exec, 0\ns_branch L_c_nodw")
        A("L_dry_ret0:")
        A("s_mov_b64 s[4:5], -1\ns_mov_b64 exec, -1")
        A("L_dry_skip0:")
    A("s_sub_u32 s55, s37, 2\ns_and_b32 s55, s55, 7")
    A("s_lshl_b32 s44, s38, 17\ns_lshl_b32 s45, s3, 15\ns_add_u32 s44, s44, s45")
    A("s_lshl_b32 s45, s37, 7\ns_add_u32 s45, s45, s44\ns_add_u32 s46, s16, s45\ns_addc_u32 s47, s17, 0")
    A("s_lshl_b32 s45, s55, 7\ns_add_u32 s45, s45, s44\ns_add_u32 s50, s16, s45\ns_addc_u32 s51, s17, 0")
    A("s_lshl_b32 s48, s3, 12\ns_add_u32 s48, s48, %d" % L_ST)
    stamp(4)
    A("s_cmp_lg_u32 s40, 0\ns_cbranch_scc1 L_c_nowo")
    lds_spin2(100, 8, 8, 12, 1, 20, 21, 2)
    for i in range(4):
        A("s_mov_b32 m0, s48\ns_add_u32 s48, s48, 1024")
        A("global_load_lds_dwordx4 v97, s[46:47]%s" % WNT)
        A("s_add_u32 s46, s46, 2048\ns_addc_u32 s47, s47, 0")
    A("L_c_nowo:")
    A("s_cmp_eq_u32 s63, 0\ns_cbranch_scc1 L_c_nowo2")
    lds_spin(100, 36, 8, 20, 2)
    A("s_lshr_b32 s48, s3, 1\ns_lshl_b32 s48, s48, 14\ns_and_b32 s45, s3, 1\ns_lshl_b32 s45, s45, 12\ns_add_u32 s48, s48, s45")
    for i in range(4):
        A("s_mov_b32 m0, s48\ns_add_u32 s48, s48, 1024")
        A("global_load_lds_dwordx4 v97, s[50:51]%s" % WNT)
        A("s_add_u32 s50, s50, 2048\ns_addc_u32 s51, s51, 0")
    A("L_c_nowo2:")
    A("s_cmp_eq_u32 s40, 0\ns_cbranch_scc1 L_c_nodw")
    A("s_cmp_lg_u32 s3, 3\ns_cbranch_scc1 L_c_nodw")
    if dw_late == 8: lds_spin(100, 24, 8, 20, 2)
    elif dw_late:
        p = poll_begin("s61")
        A("ds_read_b32 v20, v100 offset:24")
        A("s_waitcnt lgkmcnt(0)")
        A("v_cmp_gt_u32 vcc, %d, v20" % dw_late)
        poll_end(p, 2, "s61")
    lds_spin2(100, 36, 8, 8, 8, 20, 21, 2)
    if "dwgrp" in exp:
        A("s_lshl_b32 s44, s34, 10\ns_add_u32 s44, s44, %d\nv_lshlrev_b32 v20, 4, v0\nv_add_u32 v20, s44, v20" % W_ML)
        top = lab("dg"); dn = lab("dgd")
        A("s_mov_b32 s60, %d" % POLL_LIMIT)
        A(top + ":")
        A("global_load_dwordx4 v[24:27], v20, s[32:33]%s" % SC)
        A("s_waitcnt vmcnt(0)")
        A("v_max_u32 v21, v25, v27")
        A("v_cmp_eq_u32 vcc, -1, v21")
        A("s_cbranch_vccz %s" % dn)
        A("s_sub_u32 s60, s60, 1")
        A("s_cbranch_scc1 %s" % dn)
        A("s_sleep 2")
        A("s_branch %s" % top)
        A(dn + ":")
        lds_set(100, 101, 44)
    A("L_c_dw:")
    A("s_mul_i32 s44, s3, %d\ns_lshl_b32 s45, s41, 6\ns_add_u32 s44, s44, s45\ns_add_u32 s46, s20, s44\ns_addc_u32 s47, s21, 0" % (128 * 3584))
    A("s_lshl_b32 s44, s41, 15\ns_lshl_b32 s45, s3, 8\ns_add_u32 s44, s44, s45\ns_add_u32 s50, s24, s44\ns_addc_u32 s51, s25, 0")
    A("v_lshrrev_b32 v4, 2, v0\nv_mul_u32_u24 v4, 3584, v4\nv_and_b32 v5, 3, v0\nv_lshl_add_u32 v4, v5, 4, v4")
    A("v_lshrrev_b32 v5, 3, v0\nv_lshlrev_b32 v5, 10, v5\nv_and_b32 v6, 7, v0\nv_lshl_add_u32 v5, v6, 4, v5")
    A("s_lshl_b32 s48, s3, 15")
    for ww in range(2):
        for n in range(4):
            A("s_mov_b32 m0, s48\ns_add_u32 s48, s48, 1024")
            A("global_load_lds_dwordx4 v4, s[46:47]%s" % W1NT)
            A("s_add_u32 s46, s46, %d\ns_addc_u32 s47, s47, 0" % (16 * 3584))
        for n in range(4):
            A("s_mov_b32 m0, s48\ns_add_u32 s48, s48, 1024")
            A("global_load_lds_dwordx4 v5, s[50:51]%s" % WNT)
            A("s_add_u32 s50, s50, 8192\ns_addc_u32 s51, s51, 0")
        if ww == 0:
            A("s_add_u32 s48, s48, 8192")
            A("s_sub_u32 s50, s50, %d\ns_subb_u32 s51, s51, 0" % (4 * 8192 - 128))
    A("s_waitcnt vmcnt(0)")
    lds_inc(100, 101, 28)
    stamp(6)
    A("s_branch L_chain_end")
    A("L_c_nodw:")
    A("; DRY_BEGIN")
    A("v_and_b32 v14, 3, v0\nv_lshlrev_b32 v15, 5, v14\nv_add_u32 v15, %d, v15\nv_add_u32 v14, %d, v15" % (L_MB, L_LB - L_MB))
    A("v_add_u32 v16, 0x10000, v13")
    lds_spin(100, 40, 1, 26, 2)
    A("ds_read_b32 v26, v100 offset:32")
    A("s_waitcnt lgkmcnt(0)")
    A("v_readfirstlane_b32 s55, v26")
    stamp(5)
    A("s_cmp_eq_u32 s3, 3\ns_cbranch_scc1 L_c_b3")
    lds_spin(100, 24, 8, 26, 0)
    A("s_cmp_eq_u32 s3, 2\ns_cbranch_scc1 L_c_pml")
    for w_ in range(8):
        A("ds_read_b128 v[%d:%d], v%d offset:%d" % (56 + 4 * w_, 59 + 4 * w_, 13 if w_ < 4 else 16, (w_ & 3) * 16384))
    A("s_waitcnt lgkmcnt(4)")
    A("v_pk_add_f32 v[56:57], v[56:57], v[60:61]\nv_pk_add_f32 v[58:59], v[58:59], v[62:63]")
    A("v_pk_add_f32 v[64:65], v[64:65], v[68:69]\nv_pk_add_f32 v[66:67], v[66:67], v[70:71]")
    A("v_pk_add_f32 v[56:57], v[56:57], v[64:65]\nv_pk_add_f32 v[58:59], v[58:59], v[66:67]")
    A("s_waitcnt lgkmcnt(0)")
    A("v_pk_add_f32 v[72:73], v[72:73], v[76:77]\nv_pk_add_f32 v[74:75], v[74:75], v[78:79]")
    A("v_pk_add_f32 v[80:81], v[80:81], v[84:85]\nv_pk_add_f32 v[82:83], v[82:83], v[86:87]")
    A("v_pk_add_f32 v[56:57], v[56:57], v[72:73]\nv_pk_add_f32 v[58:59], v[58:59], v[74:75]")
    A("v_pk_add_f32 v[56:57], v[56:57], v[80:81]\nv_pk_add_f32 v[58:59], v[58:59], v[82:83]")
    A("s_cmp_eq_u32 s55, 0\ns_cbranch_scc1 L_c_oslow")
    A("global_store_dwordx4 v11, v[56:59], s[32:33]")
    A("s_branch L_c_b")
    A("L_c_oslow:")
    A("global_store_dwordx4 v11, v[56:59], s[32:33]%s" % SC)
    A("s_branch L_c_b")
    A("L_c_pml:")
    A("ds_read_b128 v[16:19], v14\nds_read_b128 v[20:23], v14 offset:16")
    A("ds_read_b128 v[28:31], v15\nds_read_b128 v[32:35], v15 offset:16")
    A("s_waitcnt lgkmcnt(0)")
    A("v_max3_f32 v24, v28, v29, v30\nv_max3_f32 v24, v24, v31, v32\nv_max3_f32 v24, v24, v33, v34\nv_max_f32 v24, v24, v35")
    A("v_add_f32 v16, v16, v17\nv_add_f32 v18, v18, v19\nv_add_f32 v20, v20, v21\nv_add_f32 v22, v22, v23")
    A("v_add_f32 v16, v16, v18\nv_add_f32 v20, v20, v22\nv_add_f32 v25, v16, v20")
    A("s_mov_b64 exec, 15")
    A("s_cmp_eq_u32 s55, 0\ns_cbranch_scc1 L_c_mslow")
    A("global_store_dwordx2 v102, v[24:25], s[32:33]")
    A("s_branch L_c_mdone")
    A("L_c_mslow:")
    A("global_store_dwordx2 v102, v[24:25], s[32:33]%s" % SC)
    A("L_c_mdone:")
    A("s_mov_b64 exec, -1")
    A("L_c_b:")
    A("s_cmp_lg_u32 s40, 0\ns_cbranch_scc1 L_c_dexit")
    A("s_waitcnt vmcnt(1)")
    A("s_branch L_c_b2")
    A("L_c_dexit:")
    if "dwgrp" in exp: lds_spin(100, 44, 1, 20, 2)
    A("s_branch L_c_dw")
    A("L_c_b3:")
    A("s_waitcnt vmcnt(0)")
    A("L_c_b2:")
    lds_inc(100, 101, 20)
    stamp(6)
    lds_spin(100, 20, 4, 20, 0)
    for ks in range(4):
        A("ds_read_b64_tr_b16 v[%d:%d], v12 offset:%d" % (104 + 4 * ks, 105 + 4 * ks, ks * 4096))
        A("ds_read_b64_tr_b16 v[%d:%d], v12 offset:%d" % (106 + 4 * ks, 107 + 4 * ks, ks * 4096 + 512))
    A("s_cmp_eq_u32 s63, 0\ns_cbranch_scc1 L_c_nof2")
    A("s_waitcnt lgkmcnt(0)")
    for ks in range(4):
        o_ = (ks >> 1) * 16384 + (ks & 1) * 4096
        A("ds_read_b64_tr_b16 v[%d:%d], v98 offset:%d" % (72 + 4 * ks, 73 + 4 * ks, o_))
        A("ds_read_b64_tr_b16 v[%d:%d], v98 offset:%d" % (74 + 4 * ks, 75 + 4 * ks, o_ + 512))
    A("L_c_nof2:")
    hop([("global_load_dwordx4 v[%d:%d], v6, s[32:33] offset:%d%s" % (32 + 4 * i, 35 + 4 * i, i * 1024, SC), [35 + 4 * i]) for i in range(4)] +
        [("global_load_dwordx4 v[48:51], v7, s[32:33]%s" % SC, [49, 51]), ("global_load_dwordx4 v[52:55], v7, s[32:33] offset:16%s" % SC, [53, 55])], 20, pipe=PIPE)
    stamp(7)
    A("v_max3_f32 v20, v48, v50, v52\nv_max_f32 v20, v20, v54")
    swap_red([20], [21], 32, "max")
    A("v_mul_f32 v20, s54, v20")
    for i in range(4): A("v_fma_f32 v%d, v%d, s54, -v20" % (56 + i, 48 + 2 * i))
    for i in range(4): A("v_exp_f32 v%d, v%d" % (56 + i, 56 + i))
    A("s_nop 0")
    for e in range(4):
        A("v_mul_f32 v%d, v56, v%d" % (20 + e, 32 + e))
    A("v_mul_f32 v24, v56, v49")
    for i in range(1, 4):
        for e in range(4):
            A("v_fma_f32 v%d, v%d, v%d, v%d" % (20 + e, 56 + i, 32 + 4 * i + e, 20 + e))
        A("v_fma_f32 v24, v%d, v%d, v24" % (56 + i, 49 + 2 * i))
    swap_red([20, 21, 22, 23, 24], [25, 26, 27, 28, 29], 32)
    A("v_rcp_f32 v24, v24\ns_nop 0")
    for e in range(4): A("v_mul_f32 v%d, v%d, v24" % (20 + e, 20 + e))
    A("v_cvt_pk_bf16_f32 v20, v20, v21\nv_cvt_pk_bf16_f32 v21, v22, v23")
    A("s_mov_b32 exec_hi, 0")
    A("ds_write_b64 v8, v[20:21]")
    A("s_mov_b64 exec, -1")
    A("s_waitcnt lgkmcnt(0)")
    A("s_barrier")
    for ks in range(4):
        A("ds_read_b128 v[%d:%d], v9 offset:%d" % (128 + 4 * ks, 131 + 4 * ks, ks * 64))
    for ks in range(4):
        A("s_waitcnt lgkmcnt(%d)" % (3 - ks))
        c = "0" if ks == 0 else "v[20:23]"
        A("v_mfma_f32_16x16x32_bf16 v[20:23], v[%d:%d], v[%d:%d], %s" % (128 + 4 * ks, 131 + 4 * ks, 104 + 4 * ks, 107 + 4 * ks, c))
    A("s_cmp_eq_u32 s63, 0\ns_cbranch_scc1 L_c_one")
    for ks in range(4):
        c = "0" if ks == 0 else "v[24:27]"
        A("v_mfma_f32_16x16x32_bf16 v[24:27], v[%d:%d], v[%d:%d], %s" % (128 + 4 * ks, 131 + 4 * ks, 72 + 4 * ks, 75 + 4 * ks, c))
    A("s_nop 1")
    A("global_store_dword v10, v20, s[32:33]%s" % SC)
    A("s_nop 4")
    A("global_store_dword v99, v24, s[32:33]%s" % SC)
    A("s_branch L_c_bdone")
    A("L_c_one:")
    A("s_nop 5")
    A("global_store_dword v10, v20, s[32:33]%s" % SC)
    A("L_c_bdone:")
    A("s_mov_b64 exec, -1")
    stamp(8)
    A("s_cmp_eq_u32 s39, 0\ns_cbranch_scc1 L_chain_end")
    A("s_lshl_b32 s46, s36, 4\ns_add_u32 s46, s46, s6")
    A("v_lshlrev_b32 v6, 4, v0\nv_and_b32 v7, 7, v0")
    A("s_lshl_b32 s44, s46, 12\ns_lshl_b32 s45, s3, 10\ns_add_u32 s44, s44, s45\ns_add_u32 s44, s44, %d\nv_add_u32 v9, s44, v6" % W_HP)
    A("v_lshlrev_b32 v10, 4, v7\nv_add_u32 v10, %d, v10" % L_CP)
    A("s_lshl_b32 s45, s3, 7\nv_add_u32 v11, s45, v10")
    A("s_lshl_b32 s44, s36, 11\ns_lshl_b32 s45, s6, 7\ns_add_u32 s44, s44, s45\ns_add_u32 s44, s44, %d" % W_H)
    A("v_lshrrev_b32 v8, 3, v0\nv_lshlrev_b32 v8, 13, v8\nv_lshl_add_u32 v8, v7, 4, v8\nv_add_u32 v8, s44, v8")
    A("v_lshlrev_b32 v110, 16, v120\nv_and_b32 v111, 0xffff0000, v120\nv_lshlrev_b32 v112, 16, v121\nv_and_b32 v113, 0xffff0000, v121")
    A("v_lshlrev_b32 v114, 16, v122\nv_and_b32 v115, 0xffff0000, v122\nv_lshlrev_b32 v116, 16, v123\nv_and_b32 v117, 0xffff0000, v123")
    poll1("global_load_dwordx4 v[16:19], v9, s[32:33]%s" % SC, 19)
    stamp(2)
    red8rows([16, 17, 18, 19], [24, 25, 26, 27])
    A("s_mov_b64 exec, 0xff")
    A("ds_write_b128 v11, v[16:19]")
    A("s_mov_b64 exec, -1")
    A("s_waitcnt lgkmcnt(0)")
    A("s_barrier")
    A("s_cmp_eq_u32 s3, 0\ns_cbranch_scc1 L_c_c0")
    A("s_barrier")
    A("s_branch L_chain_end")
    A("L_c_c0:")
    for i in range(4): A("ds_read_b128 v[%d:%d], v10 offset:%d" % (32 + 4 * i, 35 + 4 * i, i * 128))
    A("s_waitcnt lgkmcnt(0)")
    A("v_pk_add_f32 v[16:17], v[32:33], v[36:37]\nv_pk_add_f32 v[18:19], v[34:35], v[38:39]")
    A("v_pk_add_f32 v[20:21], v[40:41], v[44:45]\nv_pk_add_f32 v[22:23], v[42:43], v[46:47]")
    A("v_pk_add_f32 v[16:17], v[16:17], v[20:21]\nv_pk_add_f32 v[18:19], v[18:19], v[22:23]")
    A("v_cvt_pk_bf16_f32 v24, v16, v17\nv_cvt_pk_bf16_f32 v25, v18, v19")
    A("v_lshlrev_b32 v16, 16, v24\nv_and_b32 v17, 0xffff0000, v24\nv_lshlrev_b32 v18, 16, v25\nv_and_b32 v19, 0xffff0000, v25")
    for e in range(4): A("v_add_f32 v%d, v%d, v%d" % (16 + e, 16 + e, 110 + e))
    A("v_cvt_pk_bf16_f32 v24, v16, v17\nv_cvt_pk_bf16_f32 v25, v18, v19")
    A("v_lshlrev_b32 v104, 16, v24\nv_and_b32 v105, 0xffff0000, v24\nv_lshlrev_b32 v106, 16, v25\nv_and_b32 v107, 0xffff0000, v25")
    A("global_store_dwordx4 v8, v[104:107], s[32:33]%s" % SC)
    stamp(9)
    A("s_barrier")
    stamp(10)
    for i in range(7): A("ds_read_b128 v[%d:%d], v10 offset:%d" % (32 + 4 * i, 35 + 4 * i, 1024 + i * 128))
    A("s_waitcnt lgkmcnt(3)")
    A("v_pk_add_f32 v[16:17], v[32:33], v[36:37]\nv_pk_add_f32 v[18:19], v[34:35], v[38:39]")
    A("v_pk_add_f32 v[20:21], v[40:41], v[44:45]\nv_pk_add_f32 v[22:23], v[42:43], v[46:47]")
    A("s_waitcnt lgkmcnt(0)")
    A("v_pk_add_f32 v[24:25], v[48:49], v[52:53]\nv_pk_add_f32 v[26:27], v[50:51], v[54:55]")
    A("v_pk_add_f32 v[16:17], v[16:17], v[56:57]\nv_pk_add_f32 v[18:19], v[18:19], v[58:59]")
    A("v_pk_add_f32 v[20:21], v[20:21], v[24:25]\nv_pk_add_f32 v[22:23], v[22:23], v[26:27]")
    A("v_pk_add_f32 v[16:17], v[16:17], v[20:21]\nv_pk_add_f32 v[18:19], v[18:19], v[22:23]")
    A("v_cvt_pk_bf16_f32 v24, v16, v17\nv_cvt_pk_bf16_f32 v25, v18, v19")
    A("v_lshlrev_b32 v16, 16, v24\nv_and_b32 v17, 0xffff0000, v24\nv_lshlrev_b32 v18, 16, v25\nv_and_b32 v19, 0xffff0000, v25")
    for e in range(4): A("v_add_f32 v%d, v%d, v%d" % (16 + e, 16 + e, 114 + e))
    A("v_cvt_pk_bf16_f32 v24, v16, v17\nv_cvt_pk_bf16_f32 v25, v18, v19")
    A("v_lshlrev_b32 v16, 16, v24\nv_and_b32 v17, 0xffff0000, v24\nv_lshlrev_b32 v18, 16, v25\nv_and_b32 v19, 0xffff0000, v25")
    for e in range(4): A("v_add_f32 v%d, v%d, v%d" % (16 + e, 16 + e, 104 + e))
    A("v_cvt_pk_bf16_f32 v24, v16, v17\nv_cvt_pk_bf16_f32 v25, v18, v19")
    A("s_mov_b64 exec, 0xff")
    A("global_store_dwordx2 v126, v[24:25], s[28:29]")
    A("s_or_b32 s44, s36, s6\ns_cmp_lg_u32 s44, 0\ns_cbranch_scc1 L_c_noe")
    A("s_mov_b64 exec, 1")
    A("v_mov_b32 v8, 0\nv_mov_b32 v9, s42")
    A("global_store_dword v8, v9, s[32:33]%s" % SC)
    A("L_c_noe:")
    A("s_mov_b64 exec, -1")
    A("; DRY_END")
    A("L_chain_end:")
    if DRY: A("s_cbranch_execz L_dry_ret0")
    stamp(11)
    stamp_flush()
    A("L_exit:")
    A("s_endpgm")
    A("L_code_end:")
    if "nopf" not in exp: A(".fill 256, 4, 0xbf800000")

    hdr = open("cdna_kernels/%s.s.ref" % NAME).read().split("; Override launch")[0]
    out = hdr
    out += "; @launch grid=(256,1,1) block=(768,1,1) lds=%d\n" % LDS_TOTAL
    out += DESCRIPTION
    out += '.amdgcn_target "amdgcn-amd-amdhsa--gfx950"\n.text\n.globl %s\n.p2align 8\n.type %s,@function\n' % (K, K)
    A.l = dryify(A.l) if DRY else [x for x in A.l if not x.strip().startswith("; DRY_")]
    out += A.text()
    out += '.section .rodata,"a"\n.p2align 6\n.amdhsa_kernel %s\n' % K
    out += "  .amdhsa_next_free_vgpr 168\n  .amdhsa_next_free_sgpr 102\n  .amdhsa_accum_offset 168\n"
    out += "  .amdhsa_group_segment_fixed_size 0\n  .amdhsa_kernarg_size 104\n  .amdhsa_user_sgpr_count 2\n  .amdhsa_user_sgpr_kernarg_segment_ptr 1\n  .amdhsa_system_sgpr_workgroup_id_x 1\n.end_amdhsa_kernel\n"
    return out

if __name__ == "__main__":
    import argparse
    ap = argparse.ArgumentParser()
    ap.add_argument("-o", default="cdna_kernels/%s.s" % NAME)
    ap.add_argument("--stamps", action="store_true")
    ap.add_argument("--W", type=int, default=2)
    ap.add_argument("--no-nt", action="store_true")
    ap.add_argument("--exp", default="")
    ap.add_argument("--qk_at", type=int, default=6)
    ap.add_argument("--vpre", type=int, default=0)
    ap.add_argument("--ends", action="store_true")
    ap.add_argument("--sE", type=int, default=0)
    ap.add_argument("--nv1", type=int, default=12)
    ap.add_argument("--dw", type=int, default=8)
    ap.add_argument("--sD", type=int, default=0)
    a = ap.parse_args()
    open(a.o, "w").write(gen(W=a.W, nt=not a.no_nt, stamps=a.stamps, exp=a.exp, qk_at=a.qk_at, vpre=a.vpre, ends=a.ends, sE=a.sE, nv1=a.nv1, dw_late=a.dw, sD=a.sD))
    print("wrote", a.o)
```
